```python
import torch

def _softmax(x, axis=-1):
    return torch.softmax(x, dim=axis)
def _gelu(x):
    return torch.nn.functional.gelu(x, approximate="tanh")
def _silu(x):
    return torch.nn.functional.silu(x)
def _sigmoid(x):
    return torch.sigmoid(x)
def _layernorm(x, axis=-1, eps=1e-5):
    m = x.mean(dim=axis, keepdim=True)
    v = x.var(dim=axis, keepdim=True, unbiased=False)
    return (x - m) / torch.sqrt(v + eps)
def _scatter_add(tgt, idx, src, axis=0):
    return tgt.clone().index_add_(axis, idx, src)
def _segment_sum(src, seg, n):
    out = torch.zeros((n,) + src.shape[1:], dtype=src.dtype)
    return out.index_add_(0, seg, src)
def _pad(x, pw):
    flat = tuple(v for pair in reversed(pw) for v in pair)
    return torch.nn.functional.pad(x, flat)

kernel_name = 'interleave_layers__spectral_fnet__dense_activation_squared_relu__prompt'

def setup_inputs():

    _w = (lambda a: (lambda t: t.to(torch.bfloat16) if t.is_floating_point() else t)(torch.as_tensor(a)))
    def _A_setup():
        B, S, D = 1, 2048, 640
        ns = torch.arange(S)[:, None] * torch.arange(S)[None, :]
        nd = torch.arange(D)[:, None] * torch.arange(D)[None, :]
        Ws_re = torch.cos(-2.0 * torch.pi * ns / S).to(float)
        Ws_im = torch.sin(-2.0 * torch.pi * ns / S).to(float)
        Wd_re = torch.cos(-2.0 * torch.pi * nd / D).to(float)
        Wd_im = torch.sin(-2.0 * torch.pi * nd / D).to(float)
        return {
            "x": _w((lambda *s: torch.randn(*s, dtype=torch.bfloat16) * 0.05)(B, S, D)),
            "dft_seq_re": _w(Ws_re),
            "dft_seq_im": _w(Ws_im),
            "dft_hid_re": _w(Wd_re),
            "dft_hid_im": _w(Wd_im),
        }
    _A_in = _A_setup()

    def _B_setup():
        B, S, D, F = 1, 2048, 640, 1728
        return {
            "x": _w((lambda *s: torch.randn(*s, dtype=torch.bfloat16) * 0.05)(B, S, D)),
            "w1": _w((lambda *s: torch.randn(*s, dtype=torch.bfloat16) * 0.4)(D, F)),
            "b1": _w((lambda *s: torch.randn(*s, dtype=torch.bfloat16) * 0.4)(F)),
            "w2": _w((lambda *s: torch.randn(*s, dtype=torch.bfloat16) * 0.4)(F, D)),
            "b2": _w((lambda *s: torch.randn(*s, dtype=torch.bfloat16) * 0.4)(D)),
        }
    _B_in = _B_setup()

    return {
        "A_x": _A_in["x"],
        "A_dft_seq_re": _A_in["dft_seq_re"],
        "A_dft_seq_im": _A_in["dft_seq_im"],
        "A_dft_hid_re": _A_in["dft_hid_re"],
        "A_dft_hid_im": _A_in["dft_hid_im"],
        "B_x": _B_in["x"],
        "B_w1": _B_in["w1"],
        "B_b1": _B_in["b1"],
        "B_w2": _B_in["w2"],
        "B_b2": _B_in["b2"],
    }

def reference(A_x, A_dft_seq_re, A_dft_seq_im, A_dft_hid_re, A_dft_hid_im, B_x, B_w1, B_b1, B_w2, B_b2):
    def _A_ref(x, dft_seq_re, dft_seq_im, dft_hid_re, dft_hid_im):
        a = torch.einsum("bsd,ed->bse", x, dft_hid_re)
        b = torch.einsum("bsd,ed->bse", x, dft_hid_im)
        y = torch.einsum("ts,bse->bte", dft_seq_re, a) - torch.einsum("ts,bse->bte", dft_seq_im, b)
        return y

    def _B_ref(x, w1, b1, w2, b2):
        h = torch.einsum("bsd,df->bsf", x, w1) + b1
        zero = torch.zeros_like(h)
        r = torch.where(h > zero, h, zero)
        h = r * r
        out = torch.einsum("bsf,fd->bsd", h, w2) + b2
        return out

    x = A_x
    x = x + _A_ref(_layernorm(x, axis=-1), A_dft_seq_re, A_dft_seq_im, A_dft_hid_re, A_dft_hid_im)
    x = x + _B_ref(_layernorm(x, axis=-1), B_w1, B_b1, B_w2, B_b2)
    x = x + _A_ref(_layernorm(x, axis=-1), A_dft_seq_re, A_dft_seq_im, A_dft_hid_re, A_dft_hid_im)
    x = x + _B_ref(_layernorm(x, axis=-1), B_w1, B_b1, B_w2, B_b2)
    return x
```

```python
NAME = "interleave_layers__spectral_fnet__dense_activation_squared_relu__prompt"

KA = dict(x=0, seq_re=8, seq_im=16, hid_re=24, hid_im=32, bx=40, w1=48, b1=56, w2=64, b2=72, out=80, dbg=88, ws=96)

class Kern:
    def __init__(self, name, grid, block=256, lds=0, vgpr=256, agpr=0, sgpr=96):
        self.name, self.grid, self.block, self.lds = name, grid, block, lds
        self.vgpr, self.agpr, self.sgpr = vgpr, agpr, sgpr
        self.lines = []
        self.nlab = 0
    def __call__(self, s):
        for l in s.strip("\n").split("\n"):
            self.lines.append("    " + l.strip() if not l.strip().endswith(":") else l.strip())
    def label(self, base):
        self.nlab += 1
        return "L_%s_%s_%d" % (self.name, base, self.nlab)
    def srd(self, s, base, nbytes):
        self("s_mov_b32 s%d, s%d" % (s, base))
        self("s_mov_b32 s%d, s%d" % (s+1, base+1))
        self("s_mov_b32 s%d, 0x%x" % (s+2, nbytes))
        self("s_mov_b32 s%d, 0x00020000" % (s+3))
    def srd_off(self, s, base, off, nbytes):
        self("s_add_u32 s%d, s%d, 0x%x" % (s, base, off))
        self("s_addc_u32 s%d, s%d, 0" % (s+1, base+1))
        self("s_mov_b32 s%d, 0x%x" % (s+2, nbytes))
        self("s_mov_b32 s%d, 0x00020000" % (s+3))
    def text(self):
        acc = (self.vgpr + 3)//4*4
        nfv = acc + self.agpr if self.agpr else self.vgpr
        body = "\n".join(self.lines)
        code = f""".text
.globl {self.name}
.p2align 8
.type {self.name},@function
{self.name}:
{body}
"""
        desc = f""".amdhsa_kernel {self.name}
  .amdhsa_next_free_vgpr {nfv}
  .amdhsa_next_free_sgpr {self.sgpr}
  .amdhsa_accum_offset {acc}
  .amdhsa_group_segment_fixed_size 0
  .amdhsa_kernarg_size 104
  .amdhsa_user_sgpr_count 2
  .amdhsa_user_sgpr_kernarg_segment_ptr 1
  .amdhsa_system_sgpr_workgroup_id_x 1
  .amdhsa_float_denorm_mode_32 3
.end_amdhsa_kernel
"""
        return code, desc

HEADER = """; Kernarg layout (104 bytes, ptrs only, base s[0:1]):
"""

def assemble(kerns, order, extra_text=""):
    out = [HEADER]
    for k in order:
        out.append("; @launch kernel=%s grid=(%d,1,1) block=(%d,1,1) lds=%d\n" % (k.name, k.grid, k.block, k.lds))
    out.append('.amdgcn_target "amdgcn-amd-amdhsa--gfx950"\n')
    descs = []
    for k in kerns:
        c, d = k.text()
        out.append(c); descs.append(d)
    out.append(extra_text)
    out.append('.section .rodata,"a"\n')
    for d in descs:
        out.append(".p2align 6\n" + d)
    return "".join(out)
```

```python
import sys
from asmlib import *
MB = 1 << 20
W1T, W2T, LB, ABT, X1, HB, X2, X3 = 0, 4*MB, 8*MB, 12*MB, 20*MB, 24*MB, 32*MB, 36*MB
S, D, F = 2048, 640, 1728

def load_ptr(k, sreg, src):
    if src[0] == 'ka':
        k("s_load_dwordx2 s[%d:%d], s[0:1], %d" % (sreg, sreg+1, KA[src[1]]))
        k("s_waitcnt lgkmcnt(0)")
        if len(src) > 2:
            k("s_add_u32 s%d, s%d, 0x%x" % (sreg, sreg, src[2])); k("s_addc_u32 s%d, s%d, 0" % (sreg+1, sreg+1))
    else:
        k("s_add_u32 s%d, s6, 0x%x" % (sreg, src[1])); k("s_addc_u32 s%d, s7, 0" % (sreg+1))

def prologue(k, ngrid):
    k("s_cmp_ge_u32 s2, %d" % ngrid)
    k("s_cbranch_scc1 L_%s_end" % k.name)
    k("s_load_dwordx2 s[6:7], s[0:1], %d" % KA['ws'])
    k("s_waitcnt lgkmcnt(0)")

def epilogue(k):
    k("L_%s_end:" % k.name)
    k("s_endpgm")

def transpose(name, src, dst, R, C, block):
    k = Kern(name, C, block, vgpr=8, sgpr=32)
    prologue(k, C)
    load_ptr(k, 4, src); k.srd(8, 4, R*C*2)
    load_ptr(k, 4, dst); k.srd(12, 4, R*C*2)
    for j in range(R // block):
        k("v_add_u32 v1, %d, v0" % (j*block))
        k("s_mov_b32 s16, %d" % (C*2))
        k("v_mul_lo_u32 v2, v1, s16")
        k("s_lshl_b32 s17, s2, 1")
        k("v_add_u32 v2, s17, v2")
        k("buffer_load_ushort v3, v2, s[8:11], 0 offen")
        k("s_mul_i32 s17, s2, %d" % (R*2))
        k("v_lshlrev_b32 v4, 1, v1")
        k("v_add_u32 v4, s17, v4")
        k("s_waitcnt vmcnt(0)")
        k("buffer_store_short v3, v4, s[12:15], 0 offen")
    epilogue(k)
    return k

def wave_sum(k, v, tmp, addr):
    for m in (1, 2, 4, 8, 16, 32):
        k("v_xor_b32 v%d, %d, v%d" % (addr+1, m*4, addr))
        k("ds_bpermute_b32 v%d, v%d, v%d" % (tmp, addr+1, v))
        k("s_waitcnt lgkmcnt(0)")
        k("v_add_f32 v%d, v%d, v%d" % (v, v, tmp))

def layernorm(name, src):
    k = Kern(name, S//4, 256, vgpr=32, sgpr=32)
    prologue(k, S//4)
    load_ptr(k, 4, src); k.srd(8, 4, S*D*2)
    load_ptr(k, 4, ('ws', LB)); k.srd(12, 4, S*D*2)
    k("v_lshrrev_b32 v1, 6, v0")
    k("s_lshl_b32 s16, s2, 2")
    k("v_add_u32 v1, s16, v1")
    k("v_mul_u32_u24 v1, %d, v1" % (D*2))
    k("v_and_b32 v2, 63, v0")
    k("v_lshlrev_b32 v2, 2, v2")
    k("v_add_u32 v1, v1, v2")
    for j in range(5):
        k("buffer_load_dword v%d, v1, s[8:11], 0 offen offset:%d" % (4+j, j*256))
    k("s_waitcnt vmcnt(0)")
    for j in range(5):
        k("v_lshlrev_b32 v%d, 16, v%d" % (10+2*j, 4+j))
        k("v_and_b32 v%d, 0xffff0000, v%d" % (11+2*j, 4+j))
    k("v_mov_b32 v20, 0")
    for j in range(10):
        k("v_add_f32 v20, v20, v%d" % (10+j))
    wave_sum(k, 20, 21, 2)
    k("v_mul_f32 v20, 0x%08x, v20" % f2u(1.0/D))
    k("v_mov_b32 v22, 0")
    for j in range(10):
        k("v_sub_f32 v%d, v%d, v20" % (10+j, 10+j))
        k("v_fmac_f32 v22, v%d, v%d" % (10+j, 10+j))
    wave_sum(k, 22, 21, 2)
    k("v_mul_f32 v22, 0x%08x, v22" % f2u(1.0/D))
    k("v_add_f32 v22, 0x%08x, v22" % f2u(1e-5))
    k("v_rsq_f32 v22, v22")
    k("s_nop 0")
    for j in range(10):
        k("v_mul_f32 v%d, v%d, v22" % (10+j, 10+j))
    for j in range(5):
        k("v_cvt_pk_bf16_f32 v%d, v%d, v%d" % (4+j, 10+2*j, 11+2*j))
        k("buffer_store_dword v%d, v1, s[12:15], 0 offen offset:%d" % (4+j, j*256))
    epilogue(k)
    return k

import struct
def f2u(x):
    return struct.unpack("<I", struct.pack("<f", x))[0]

def gemm(name, M, N, segs, out, ldo, outbytes, epi, bias=None, res=None, neg=False):
    gn = N // 64; ng = (M // 64) * gn
    k = Kern(name, ng, 256, vgpr=64, sgpr=64)
    prologue(k, ng)
    magic = (2**32 + gn - 1) // gn
    k("s_mov_b32 s16, 0x%x" % magic)
    k("s_mul_hi_u32 s20, s2, s16")
    k("s_mul_i32 s16, s20, %d" % gn)
    k("s_sub_u32 s21, s2, s16")
    k("v_lshrrev_b32 v1, 6, v0")
    k("v_lshrrev_b32 v2, 1, v1")
    k("v_and_b32 v3, 1, v1")
    k("v_lshlrev_b32 v2, 5, v2")
    k("v_lshlrev_b32 v3, 5, v3")
    k("s_lshl_b32 s20, s20, 6")
    k("s_lshl_b32 s21, s21, 6")
    k("v_add_u32 v2, s20, v2")
    k("v_add_u32 v3, s21, v3")
    k("v_and_b32 v4, 31, v0")
    k("v_bfe_u32 v5, v0, 5, 1")
    k("v_add_u32 v6, v2, v4")
    k("v_add_u32 v7, v3, v4")
    for r in range(16):
        k("v_mov_b32 v%d, 0" % (32+r))
    for (A, lda, ab, B, ldb, bb, K) in segs:
        load_ptr(k, 4, A); k.srd(8, 4, ab)
        load_ptr(k, 4, B); k.srd(12, 4, bb)
        k("s_mov_b32 s16, %d" % lda); k("v_mul_lo_u32 v8, v6, s16")
        k("s_mov_b32 s16, %d" % ldb); k("v_mul_lo_u32 v9, v7, s16")
        k("v_lshlrev_b32 v10, 4, v5")
        k("v_add_u32 v8, v8, v10"); k("v_add_u32 v9, v9, v10")
        k("s_mov_b32 s17, 0")
        lp = k.label("k")
        k(lp + ":")
        for j in range(2):
            k("buffer_load_dwordx4 v[%d:%d], v8, s[8:11], s17 offen offset:%d" % (12+4*j, 15+4*j, 32*j))
            k("buffer_load_dwordx4 v[%d:%d], v9, s[12:15], s17 offen offset:%d" % (20+4*j, 23+4*j, 32*j))
        k("s_waitcnt vmcnt(0)")
        for j in range(2):
            k("v_mfma_f32_32x32x16_bf16 v[32:47], v[%d:%d], v[%d:%d], v[32:47]" % (12+4*j, 15+4*j, 20+4*j, 23+4*j))
        k("s_add_u32 s17, s17, 64")
        k("s_cmp_lt_u32 s17, %d" % (K*2))
        k("s_cbranch_scc1 " + lp)
    k("s_nop 15"); k("s_nop 7")
    load_ptr(k, 4, out); k.srd(8, 4, outbytes)
    k("v_lshlrev_b32 v10, 2, v5")
    k("v_add_u32 v10, v10, v2")
    k("s_mov_b32 s16, %d" % ldo)
    k("v_mul_lo_u32 v10, v10, s16")
    k("v_lshlrev_b32 v11, 1, v7")
    k("v_add_u32 v10, v10, v11")
    if bias:
        load_ptr(k, 4, bias); k.srd(12, 4, N*2)
        k("buffer_load_ushort v12, v11, s[12:15], 0 offen")
        k("s_waitcnt vmcnt(0)")
        k("v_lshlrev_b32 v12, 16, v12")
    if res:
        load_ptr(k, 4, res); k.srd(12, 4, outbytes)
    for r in range(16):
        row = (r >> 2)*8 + (r & 3)
        k("s_mov_b32 s17, %d" % (row*ldo))
        if res:
            k("buffer_load_ushort v13, v10, s[12:15], s17 offen")
            k("s_waitcnt vmcnt(0)")
            k("v_lshlrev_b32 v13, 16, v13")
        v = 32 + r
        if bias: k("v_add_f32 v%d, v%d, v12" % (v, v))
        if epi == 'relu2':
            k("v_max_f32 v%d, 0, v%d" % (v, v)); k("v_mul_f32 v%d, v%d, v%d" % (v, v, v))
        if neg: k("v_sub_f32 v%d, 0, v%d" % (v, v))
        if res: k("v_add_f32 v%d, v%d, v13" % (v, v))
        k("v_cvt_pk_bf16_f32 v%d, v%d, v%d" % (v, v, v))
        k("buffer_store_short v%d, v10, s[8:11], s17 offen" % v)
    epilogue(k)
    return k

def empty(name):
    k = Kern(name, 256, 256, vgpr=8, sgpr=16)
    k("s_endpgm")
    return k

def main(nempty):
    t1 = transpose("t1_kernel", ('ka', 'w1'), ('ws', W1T), D, F, 640)
    t2 = transpose("t2_kernel", ('ka', 'w2'), ('ws', W2T), F, D, 576)
    ks = [t1, t2]; order = [t1, t2]
    hre = gemm("hre_kernel", D, S, [(('ka','hid_re'), D*2, D*D*2, ('ws', LB), D*2, S*D*2, D)], ('ws', ABT), S*2, D*S*2, None)
    him = gemm("him_kernel", D, S, [(('ka','hid_im'), D*2, D*D*2, ('ws', LB), D*2, S*D*2, D)], ('ws', ABT + D*S*2), S*2, D*S*2, None, neg=True)
    g1 = gemm("g1_kernel", S, F, [(('ws', LB), D*2, S*D*2, ('ws', W1T), D*2, F*D*2, D)], ('ws', HB), F*2, S*F*2, 'relu2', bias=('ka','b1'))
    ks += [hre, him, g1]
    for l, (xin, xmid, xout) in enumerate([(('ka','x'), ('ws', X1), ('ws', X2)), (('ws', X2), ('ws', X3), ('ka','out'))]):
        lna = layernorm("lna%d_kernel" % l, xin)
        sq = gemm("seq%d_kernel" % l, S, D, [(('ka','seq_re'), S*2, S*S*2, ('ws', ABT), S*2, D*S*2, S),
                                           (('ka','seq_im'), S*2, S*S*2, ('ws', ABT + D*S*2), S*2, D*S*2, S)], xmid, D*2, S*D*2, None, res=xin)
        lnb = layernorm("lnb%d_kernel" % l, xmid)
        g2 = gemm("g2%d_kernel" % l, S, D, [(('ws', HB), F*2, S*F*2, ('ws', W2T), F*2, F*D*2, F)], xout, D*2, S*D*2, None, bias=('ka','b2'), res=xmid)
        ks += [lna, sq, lnb, g2]
        order += [lna, hre, him, sq, lnb, g1, g2]
    if nempty:
        e = empty("empty_kernel"); ks.append(e); order += [e]*nempty
    return assemble(ks, order)

if __name__ == "__main__":
    open(sys.argv[1], "w").write(main(int(sys.argv[2])))
```

```python
from emit import *
from layout import *
import tables
TAB, TABTXT = tables.build()

sB, sW, sX, sI = 2, 3, 4, 5
sTAB = 6
WS, AUX, AUX2 = 8, 12, 16
pX, pW1, pB1, pW2, pB2, pOUT, pDBG, pWS = 20, 24, 26, 28, 30, 32, 34, 36
ONES = 0x3f803f80
WSOFF = [0]

def srd(s): return "s[%d:%d]" % (s, s+3)
def v(a, n=1): return "v%d" % a if n == 1 else "v[%d:%d]" % (a, a+n-1)
def a(x, n=1): return "a%d" % x if n == 1 else "a[%d:%d]" % (x, x+n-1)

def prologue(k, ngrid=256):
    k("s_cmp_ge_u32 s2, %d" % ngrid)
    k("s_cbranch_scc1 L_%s_end" % k.name)
    k.stamp("entry")
    k("s_load_dwordx2 s[20:21], s[0:1], 0")
    k("s_load_dwordx8 s[24:31], s[0:1], 48")
    k("s_load_dwordx4 s[32:35], s[0:1], 80")
    k("s_load_dwordx2 s[36:37], s[0:1], 96")
    k("v_lshrrev_b32 v1, 6, v0")
    k("v_and_b32 v0, 63, v0")
    k("v_readfirstlane_b32 s3, v1")
    k("s_and_b32 s4, s2, 7")
    k("s_lshr_b32 s5, s2, 3")
    lab = k.label("pc")
    k("s_getpc_b64 s[6:7]")
    k(lab + ":")
    k("s_add_u32 s6, s6, dft_tables-%s" % lab)
    k("s_addc_u32 s7, s7, 0")
    if WSOFF[0]:
        k("s_add_u32 s36, s36, 0x%x" % WSOFF[0]); k("s_addc_u32 s37, s37, 0")
    k.srd(WS, pWS, WS_USED)

def finish(k):
    k("L_%s_end:" % k.name)
    k("s_endpgm")
    for t in k.tails: t()

def tab_addr(k, vd, voff, const):
    k("v_add_u32 v%d, 0x%x, v%d" % (vd, const, voff))
    k("v_mov_b32 v%d, 0" % (vd+1))
    k("v_lshl_add_u64 %s, %s, 0, s[6:7]" % (v(vd, 2), v(vd, 2)))

def m80_loads(k, dst, vtmp, vl16, kind="v"):
    tab_addr(k, vtmp, vl16, TAB["M80"] + 4096)
    tab_addr(k, vtmp+2, vl16, TAB["M80"] + 12288)
    R = v if kind == "v" else a
    out = []
    for n in range(13):
        base, off = (vtmp, n*1024 - 4096) if n < 8 else (vtmp+2, n*1024 - 12288)
        out.append("global_load_dwordx4 %s, %s, off offset:%d" % (R(dst+4*n, 4), v(base, 2), off))
    return out

def dft80_mfmas(A0, A1, A2, M, Dd, kind="v"):
    R = v if kind == "v" else a
    out = []
    for ot in range(5):
        out.append("v_mfma_f32_16x16x32_bf16 %s, %s, %s, 0" % (v(Dd+4*ot, 4), v(A0, 4), R(M+8*ot, 4)))
    for ot in range(5):
        out.append("v_mfma_f32_16x16x32_bf16 %s, %s, %s, %s" % (v(Dd+4*ot, 4), v(A1, 4), R(M+8*ot+4, 4), v(Dd+4*ot, 4)))
    for ot in range(5):
        out.append("v_mfma_f32_16x16x16_bf16 %s, %s, %s, %s" % (v(Dd+4*ot, 4), v(A2, 2), R(M+40+2*ot, 2), v(Dd+4*ot, 4)))
    return out

def u_addr(k, vd, vt):
    k("v_bfe_u32 v%d, v0, 1, 3" % vd)
    k("v_lshlrev_b32 v%d, 16, v%d" % (vd, vd))
    k("v_and_b32 v%d, 1, v0" % vt)
    k("v_lshl_add_u32 v%d, v%d, 5, v%d" % (vd, vt, vd))
    k("v_lshrrev_b32 v%d, 4, v0" % vt)
    k("v_lshl_add_u32 v%d, v%d, 3, v%d" % (vd, vt, vd))

def u_stores(k, Dd, vU, s0, stmp, tag="ust"):
    for ot in range(5):
        k("v_cvt_pk_bf16_f32 v%d, v%d, v%d" % (Dd+4*ot, Dd+4*ot, Dd+4*ot+1))
        k("v_cvt_pk_bf16_f32 v%d, v%d, v%d" % (Dd+4*ot+1, Dd+4*ot+2, Dd+4*ot+3))
        if ot: k("s_add_u32 s%d, s%d, 0x%x" % (stmp, s0, ot*8*65536))
        k("buffer_store_dwordx2 %s, v%d, %s, s%d offen sc1" % (v(Dd+4*ot, 2), vU, srd(WS), stmp if ot else s0), tag=tag)

def xsum(k, vx, vt, bits):
    for b in bits:
        for n, x in enumerate(vx):
            if b < 2:
                perm = "[1,0,3,2]" if b == 0 else "[2,3,0,1]"
                k("v_add_f32_dpp v%d, v%d, v%d quad_perm:%s row_mask:0xf bank_mask:0xf" % (x, x, x, perm))
            else:
                k("v_mov_b32 v%d, v%d" % (vt+n, x))
        if b >= 2:
            for n, x in enumerate(vx):
                k("v_permlane%d_swap_b32 v%d, v%d" % (16 if b == 4 else 32, x, vt+n))
            for n, x in enumerate(vx):
                k("v_add_f32 v%d, v%d, v%d" % (x, x, vt+n))
```

```python
from common import *

sG, sR = 50, 51
vO = [2, 3, 8, 9]
vXW = 4
vTR, vRSR, vRSW, vXR, vDMA, vST = 10, 11, 12, 13, 14, 15
VA, RES, F0R, FAR, TWR, FBR, RSB, AFB, DB = 16, 48, 64, 96, 104, 112, 128, 160, 192

def role(k, lskip):
    k("s_lshr_b32 s50, s5, 2")
    k("s_lshl_b32 s50, s50, 3")
    k("s_add_u32 s50, s50, s4")
    k("s_and_b32 s51, s5, 3")
    k("s_cmp_gt_u32 s50, 40")
    k("s_cbranch_scc1 " + lskip)

def row_off(k, vd, vk, t):
    k("v_lshrrev_b32 v%d, 9, v%d" % (t, vk))
    k("v_bfe_u32 v%d, v%d, 1, 4" % (vd, vk))
    k("v_lshl_add_u32 v%d, v%d, 4, v%d" % (vd, t, vd))
    k("v_mul_u32_u24 v%d, 40960, v%d" % (vd, vd))
    k("v_and_b32 v%d, 1, v%d" % (t, vk))
    k("v_lshl_add_u32 v%d, v%d, 8, v%d" % (vd, t, vd))
    k("v_bfe_u32 v%d, v%d, 5, 1" % (t, vk))
    k("v_lshl_add_u32 v%d, v%d, 7, v%d" % (vd, t, vd))
    k("v_bfe_u32 v%d, v%d, 6, 3" % (t, vk))
    k("v_lshl_add_u32 v%d, v%d, 4, v%d" % (vd, t, vd))

def pre(k):
    k.comment("column phase: constants and addresses")
    for r in range(32): k("v_mov_b32 v%d, 0" % (F0R+r))
    k("v_lshrrev_b32 v16, 5, v0")
    k("v_and_b32 v17, 7, v0")
    k("v_lshlrev_b32 v16, 7, v16")
    k("v_lshl_add_u32 v16, v17, 4, v16")
    k("v_mov_b32 v17, 0")
    k("s_lshl_b32 s52, s50, 10")
    k("s_add_u32 s52, s52, %d" % TAB["F0"])
    k("s_add_u32 s56, s6, s52")
    k("s_addc_u32 s57, s7, 0")
    for aa in range(4):
        for ri in range(2):
            k("s_mul_i32 s53, s51, %d" % aa)
            k("s_add_u32 s53, s53, %d" % ri)
            k("s_and_b32 s53, s53, 3")
            k("s_lshl_b32 s53, s53, 8")
            k("s_add_u32 s54, s56, s53")
            k("s_addc_u32 s55, s57, 0")
            k("v_lshl_add_u64 %s, v[16:17], 0, s[54:55]" % v(18+4*aa+2*ri, 2))
    k("s_mov_b32 exec_lo, 0xff0000ff")
    k("s_mov_b32 exec_hi, 0xff0000ff")
    for n in range(8):
        k("global_load_dwordx4 %s, %s, off" % (v(F0R+4*n, 4), v(18+2*n, 2)))
    k("s_mov_b64 exec, -1")
    k("v_lshlrev_b32 v%d, 4, v0" % vST)
    k("s_lshl_b32 s52, s51, 11")
    k("v_add_u32 v34, s52, v%d" % vST)
    tab_addr(k, 36, 34, TAB["FA"])
    for ri in range(2):
        k("global_load_dwordx4 %s, v[36:37], off offset:%d" % (v(FAR+4*ri, 4), ri*1024))
    k("s_lshl_b32 s52, s51, 2")
    k("s_add_u32 s52, s52, s3")
    k("s_lshl_b32 s52, s52, 10")
    k("v_lshrrev_b32 v34, 5, v0")
    k("v_and_b32 v35, 15, v0")
    k("v_lshl_add_u32 v34, v34, 4, v35")
    k("v_lshl_add_u32 v34, v34, 3, s52")
    tab_addr(k, 38, 34, TAB["TW"])
    for p in range(4):
        k("global_load_dwordx2 %s, v[38:39], off offset:%d" % (v(TWR+2*p, 2), p*256))
    tab_addr(k, 40, vST, TAB["FB"])
    for n in range(4):
        k("global_load_dwordx4 %s, v[40:41], off offset:%d" % (v(FBR+4*n, 4), n*1024))
    k("s_mul_i32 s58, s3, 18432")
    k("s_add_u32 s58, s58, %d" % L_CU)
    k("s_lshl_b32 s59, s3, 11")
    k("s_add_u32 s59, s59, %d" % L_CRS)
    k("v_lshrrev_b32 v42, 4, v0")
    k("v_lshrrev_b32 v43, 5, v0")
    k("v_bfe_u32 v44, v0, 4, 1")
    k("v_bfe_u32 v45, v0, 3, 1")
    k("v_bfe_u32 v46, v0, 2, 1")
    k("v_and_b32 v47, 3, v0")
    k("v_lshl_add_u32 v1, v43, 1, v45")
    k("v_mul_u32_u24 v1, 1152, v1")
    k("v_lshl_add_u32 v1, v44, 6, v1")
    k("v_lshl_add_u32 v1, v46, 5, v1")
    k("v_lshl_add_u32 v1, v47, 3, v1")
    k("v_add_u32 v%d, s58, v1" % vTR)
    k("v_lshlrev_b32 v1, 6, v45")
    k("v_lshl_add_u32 v1, v42, 4, v1")
    k("v_add_u32 v%d, s59, v1" % vRSR)
    k("v_lshl_add_u32 v%d, v0, 3, s59" % vRSW)
    k("v_and_b32 v1, 31, v0")
    k("v_lshlrev_b32 v1, 4, v1")
    k("v_lshl_add_u32 v%d, v43, 13, v1" % vDMA)
    k("v_lshlrev_b32 v1, 11, v44")
    k("v_bfe_u32 v34, v0, 2, 2")
    k("v_lshl_add_u32 v1, v34, 9, v1")
    k("v_lshl_add_u32 v1, v43, 8, v1")
    k("v_lshl_add_u32 v1, v47, 6, v1")
    k("v_add_u32 v1, s58, v1")
    k("v_bfe_u32 v35, v0, 1, 2")
    for r in range(4):
        k("v_xor_b32 v36, %d, v35" % r)
        k("v_lshl_add_u32 v%d, v36, 4, v1" % (vXW+r))
    k("v_mul_u32_u24 v1, 18432, v43")
    k("v_lshl_add_u32 v1, v44, 8, v1")
    k("v_lshl_add_u32 v1, v34, 6, v1")
    k("s_lshl_b32 s52, s3, 1")
    k("v_add_u32 v36, s52, v45")
    k("v_and_b32 v36, 3, v36")
    k("v_xor_b32 v36, v36, v47")
    k("v_lshl_add_u32 v1, v36, 4, v1")
    k("s_lshl_b32 s52, s3, 9")
    k("s_add_u32 s52, s52, %d" % L_CU)
    k("v_add_u32 v%d, s52, v1" % vXR)
    k("s_lshl_b32 s52, s3, 4")
    k("s_add_u32 s52, s52, s51")
    k("v_and_b32 v34, 15, v0")
    k("v_lshlrev_b32 v34, 6, v34")
    k("v_lshl_add_u32 v34, v42, 2, v34")
    k("v_add_u32 v34, s52, v34")
    row_off(k, vO[0], 34, 1)
    k("v_add_u32 v%d, %d, v%d" % (vO[1], 32*40960, vO[0]))
    k("v_sub_u32 v35, 2048, v34")
    k("v_and_b32 v35, 2047, v35")
    row_off(k, vO[2], 35, 1)
    k("v_sub_u32 v35, 1024, v34")
    k("v_and_b32 v35, 2047, v35")
    row_off(k, vO[3], 35, 1)

def offsets(k, layer):
    k("s_lshl_b32 s60, s3, 10")
    k("s_add_u32 s60, s60, 0x%x" % ST[layer])
    k("s_cmp_eq_u32 s50, 40")
    k("s_cselect_b32 s61, 0, s50")
    k("s_lshl_b32 s62, s61, 16")
    k("s_lshl_b32 s63, s3, 9")
    k("s_add_u32 s62, s62, s63")
    k("s_add_u32 s62, s62, 0x%x" % U[layer])
    k("s_lshl_b32 s63, s50, 9")
    k("s_add_u32 s64, s63, 0x%x" % XG[2*layer])
    k("s_add_u32 s66, s63, 0x%x" % XG[2*layer+1])
    k("s_sub_u32 s65, 0x%x, s63" % (XG[2*layer] + 80*512))
    k("s_sub_u32 s67, 0x%x, s63" % (XG[2*layer+1] + 80*512))
    k("s_cmp_eq_u32 s61, 0")
    k("s_cselect_b32 s65, 0x%x, s65" % OOB)
    k("s_cselect_b32 s67, 0x%x, s67" % OOB)

def main(k, after_loads=None, after_lds=None):
    k.comment("column phase: loads")
    for aa in range(4):
        if aa: k("s_add_u32 s60, s60, 4096")
        k("buffer_load_dwordx4 %s, v%d, %s, s60 offen sc1" % (v(RSB+4*aa, 4), vST, srd(WS)))
    for aa in range(4):
        for dp in range(4):
            k("s_add_u32 m0, s58, %d" % ((4*aa + dp)*1152))
            k("s_add_u32 s63, s62, %d" % (dp*16384 + aa*2048))
            k("buffer_load_dwordx4 v%d, %s, s63 offen sc1 lds" % (vDMA, srd(WS)), tag="u%d" % aa)
    for n in range(4):
        k("buffer_load_dwordx4 %s, v%d, %s, s%d offen sc1" % (v(RES+4*n, 4), vO[n], srd(WS), 64 + (n >> 1)))
    if after_loads: after_loads()
    c = f2u(1.0/D)
    for aa in range(4):
        b = RSB + 4*aa
        for e in range(2):
            k("v_mul_f32 v%d, 0x%x, v%d" % (b+2*e, c, b+2*e))
            k("v_mul_f32 v%d, 0x%x, v%d" % (b+2*e+1, c, b+2*e+1))
        for e in range(2):
            k("v_fma_f32 v%d, -v%d, v%d, v%d" % (b+2*e+1, b+2*e, b+2*e, b+2*e+1))
        for e in range(2):
            k("v_max_f32 v%d, 0, v%d" % (b+2*e+1, b+2*e+1))
        for e in range(2):
            k("v_add_f32 v%d, 0x%x, v%d" % (b+2*e+1, f2u(1e-5), b+2*e+1))
        for e in range(2):
            k("v_rsq_f32 v%d, v%d" % (b+e, b+2*e+1))
        k("ds_write_b64 v%d, %s offset:%d" % (vRSW, v(b, 2), aa*512))
    def reads(aa):
        out = []
        for p in range(4):
            for h in range(2):
                out.append("ds_read_b64_tr_b16 %s, v%d offset:%d" % (v(AFB+16*(aa & 1)+4*p+2*h, 2), vTR, aa*4608 + h*512 + p*128))
        for p in range(4):
            out.append("ds_read_b128 %s, v%d offset:%d" % (v(RSB+16*(aa & 1)+4*p, 4), vRSR, aa*512 + p*128))
        return out
    def mfmas(aa):
        return ["v_mfma_f32_16x16x32_bf16 %s, %s, %s, 0" % (v(DB+32*(aa & 1)+8*p+4*ri, 4), v(AFB+16*(aa & 1)+4*p, 4), v(F0R+8*aa+4*ri, 4))
                for p in range(4) for ri in range(2)]
    def fmas(aa):
        op = "v_mul_f32" if aa == 0 else "v_fmac_f32"
        return ["%s v%d, v%d, v%d" % (op, VA+8*p+e, DB+32*(aa & 1)+8*p+e, RSB+16*(aa & 1)+4*p+(e & 3))
                for p in range(4) for e in range(8)]
    k.wait(vm="u0")
    for l in reads(0): k(l)
    for aa in range(4):
        fill = fmas(aa-1) if aa else []
        m = mfmas(aa)
        if aa == 0:
            for l in m: k(l)
        else:
            rest = interleave(k, m, fill, 4)
            for l in rest: k(l)
        if aa < 3:
            k.wait(vm="u%d" % (aa+1))
            for l in reads(aa+1): k(l)
    fm = fmas(3)
    for p in range(4):
        for l in fm[8*p:8*p+8]: k(l)
        for r in range(4):
            k("v_cvt_pk_bf16_f32 v%d, v%d, v%d" % (AFB+4*p+r, VA+8*p+r, VA+8*p+4+r))
        for ri in range(2):
            k("v_mfma_f32_16x16x32_bf16 %s, %s, %s, 0" % (v(DB+8*p+4*ri, 4), v(AFB+4*p, 4), v(FAR+4*ri, 4)))
    for p in range(4):
        c_, s_ = TWR+2*p, TWR+2*p+1
        for r in range(4):
            k("v_mul_f32 v%d, v%d, v%d" % (RSB+8*p+2*r, DB+8*p+r, c_))
            k("v_mul_f32 v%d, v%d, v%d" % (RSB+8*p+2*r+1, DB+8*p+r, s_))
        for r in range(4):
            k("v_fma_f32 v%d, -v%d, v%d, v%d" % (RSB+8*p+2*r, DB+8*p+4+r, s_, RSB+8*p+2*r))
            k("v_fmac_f32 v%d, v%d, v%d" % (RSB+8*p+2*r+1, DB+8*p+4+r, c_))
        for r in range(4):
            k("v_cvt_pk_bf16_f32 v%d, v%d, v%d" % (VA+4*r+p, RSB+8*p+2*r, RSB+8*p+2*r+1))
    for r in range(4):
        k("ds_write_b128 v%d, %s" % (vXW+r, v(VA+4*r, 4)), tag="xw")
    for n in range(4):
        for jj in range(4):
            lo, hi = (2*jj, 2*jj+1) if n < 2 else (7-2*jj, 6-2*jj)
            k("v_lshlrev_b32 v%d, 16, v%d" % (F0R+8*n+lo, RES+4*n+jj))
            k("v_and_b32 v%d, 0xffff0000, v%d" % (F0R+8*n+hi, RES+4*n+jj))
    k.wait(lg="xw")
    k("s_barrier")
    for ch in range(2):
        for ks in range(2):
            k("ds_read_b128 %s, v%d offset:%d" % (v(AFB+8*ch+4*ks, 4), vXR, ks*36864 + ch*2048), tag="xr")
    for ks in range(2):
        for n in range(4):
            for ch in range(2):
                d = v(DB+8*n+4*ch, 4)
                k("v_mfma_f32_16x16x32_bf16 %s, %s, %s, %s" % (d, v(AFB+8*ch+4*ks, 4), v(FBR+8*ks+4*(n & 1), 4), v(F0R+8*n+4*ch, 4) if ks == 0 else d))
    if after_lds: after_lds()
    for n in range(4):
        for jj in range(4):
            lo, hi = (2*jj, 2*jj+1) if n < 2 else (7-2*jj, 6-2*jj)
            k("v_cvt_pk_bf16_f32 v%d, v%d, v%d" % (DB+32+4*n+jj, DB+8*n+lo, DB+8*n+hi))
        k("buffer_store_dwordx4 %s, v%d, %s, s%d offen sc1" % (v(DB+32+4*n, 4), vO[n], srd(WS), 66 + (n >> 1)), tag="cst")
```

```python
import re, struct

def f2u(x):
    return struct.unpack("<I", struct.pack("<f", x))[0]

_REG = re.compile(r"^(-?)\|?(v|a|s)(?:(\d+)|\[(\d+):(\d+)\])\|?$")

def regs_of(op):
    op = op.strip()
    if op.startswith("abs(") or op.startswith("-abs("):
        op = op[op.index("(")+1:-1]
    if op in ("vcc", "exec", "m0", "scc"):
        return [(op, 0)]
    if op in ("vcc_lo", "vcc_hi"):
        return [("vcc", 0)]
    if op in ("exec_lo", "exec_hi"):
        return [("exec", 0)]
    m = _REG.match(op)
    if not m:
        return []
    kind = m.group(2)
    if m.group(3) is not None:
        return [(kind, int(m.group(3)))]
    return [(kind, i) for i in range(int(m.group(4)), int(m.group(5))+1)]

TRANS = ("v_exp_f32", "v_log_f32", "v_rcp_f32", "v_rsq_f32", "v_sqrt_f32", "v_sin_f32", "v_cos_f32")
RMW = ("v_fmac_f32", "v_dot2c_f32_bf16", "v_writelane_b32", "v_pk_fmac_f16")

class Ins:
    def __init__(self, text):
        self.text = text
        parts = text.split(None, 1)
        self.op = parts[0]
        rest = parts[1] if len(parts) > 1 else ""
        head = re.split(r"\s(?=(?:quad_perm|op_sel|op_sel_hi|neg_lo|neg_hi):)", rest, 1)
        toks = [t.strip() for t in head[0].split(",")]
        ops = []
        self.mods = ""
        for n, t in enumerate(toks):
            if n == len(toks)-1 and " " in t:
                a, b = t.split(None, 1); ops.append(a); self.mods = b
            elif t:
                ops.append(t)
        if len(head) > 1: self.mods += " " + head[1]
        self.ops = ops
        op = self.op
        R = lambda xs: [r for o in xs for r in regs_of(o)]
        self.w, self.r, self.srcc, self.data = [], [], [], []
        self.passes = 0
        if op.startswith("v_mfma"):
            self.cls = "mfma"
            self.w = R(ops[:1]); self.r = R(ops[1:3]); self.srcc = R(ops[3:4])
            self.passes = 8 if "32x32" in op else 4
        elif op.startswith("buffer_") or op.startswith("global_"):
            self.cls = "vmem"
            lds = "lds" in self.mods.split() or "_lds_" in op
            isbuf = op.startswith("buffer_")
            if "_load" in op:
                if lds: self.r = R(ops)
                else: self.w = R(ops[:1]); self.r = R(ops[1:])
            elif "_store" in op or "_atomic" in op:
                self.data = R(ops[:1]) if isbuf else R(ops[1:2])
                self.r = R(ops)
                if "_atomic" in op and "sc0" in self.mods.split():
                    self.w = R(ops[:1])
            if lds: self.r.append(("m0", 0))
        elif op.startswith("ds_"):
            self.cls = "ds"
            if "read" in op or "permute" in op or "swizzle" in op:
                self.w = R(ops[:1]); self.r = R(ops[1:])
            else:
                self.r = R(ops)
        elif op.startswith("s_load") or op in ("s_memtime", "s_memrealtime"):
            self.cls = "smem"; self.w = R(ops[:1]); self.r = R(ops[1:])
        elif op.startswith("v_"):
            self.cls = "valu"
            if op.startswith("v_permlane") and "swap" in op:
                self.w = R(ops[:2]); self.r = R(ops[:2])
            elif op.startswith("v_cmp"):
                self.w = R(ops[:1]); self.r = R(ops[1:])
            elif "_co_" in op:
                self.w = R(ops[:2]); self.r = R(ops[2:])
            else:
                self.w = R(ops[:1]); self.r = R(ops[1:])
                base = op.replace("_e32", "").replace("_e64", "")
                if base in RMW or "dpp" in op or "quad_perm" in self.mods or "row_" in self.mods:
                    self.r += self.w
        elif op.startswith("s_"):
            self.cls = "salu"
            if op.startswith("s_cmp") or op.startswith("s_cbranch") or op in ("s_branch", "s_barrier", "s_nop", "s_waitcnt", "s_endpgm", "s_sleep", "s_setprio"):
                self.r = R(ops)
            else:
                self.w = R(ops[:1]); self.r = R(ops[1:])
                if "saveexec" in op: self.w.append(("exec", 0))
        else:
            raise ValueError("unknown instruction: " + text)
        self.dpp = self.cls == "valu" and ("dpp" in op or "quad_perm" in self.mods or "row_" in self.mods)
        self.trans = op.replace("_e32", "").replace("_e64", "") in TRANS
        self.wide_store = self.cls == "vmem" and "_store" in op and ("x3" in op or "x4" in op)
        self.states = 1
        if op == "s_nop": self.states = int(ops[0], 0) + 1

def need_states(p, c):
    n = 0
    pw = set(p.w)
    isv = lambda rs: set(r for r in rs if r[0] in "va" and len(r[0]) == 1)
    iss = lambda rs: set(r for r in rs if r[0] in ("s", "vcc"))
    if p.cls == "valu":
        v = isv(pw); s = iss(pw)
        if c.cls == "mfma" and v & set(c.r + c.srcc): n = max(n, 2)
        if c.cls == "valu":
            if c.op.startswith("v_permlane") and v & set(c.r): n = max(n, 2)
            if c.dpp and v & set(c.r): n = max(n, 2)
            if c.op.startswith("v_readlane") or c.op.startswith("v_readfirstlane"):
                if v & set(c.r): n = max(n, 1)
                if s & set(c.r): n = max(n, 4)
            if p.trans and not c.trans and v & set(c.r): n = max(n, 1)
            if s & set(c.r): n = max(n, 2)
            if p.op.startswith("v_dot") and v & set(c.r + c.w):
                if p.op != c.op or v & set(regs_of(c.ops[1]) + regs_of(c.ops[2])): n = max(n, 3)
        if c.cls == "vmem" and s & set(c.r): n = max(n, 5)
        if c.cls == "salu" and s & set(c.r): n = max(n, 4)
        if c.cls in ("vmem", "ds", "mfma") and p.op.startswith("v_dot") and v & set(c.r + c.srcc): n = max(n, 3)
    if p.cls == "salu":
        if ("m0", 0) in pw and ("m0", 0) in c.r and c.cls == "vmem": n = max(n, 1)
    if p.cls == "mfma":
        far = 8 if p.passes == 4 else 12
        if c.cls == "mfma":
            if pw & set(c.r): n = max(n, far)
            if pw & set(c.srcc):
                if not (c.passes == p.passes and c.srcc == p.w): n = max(n, far - 2)
            elif pw & set(c.w): n = max(n, far - 2)
        elif c.cls in ("valu", "vmem", "ds") and pw & set(c.r + c.w): n = max(n, far)
        if c.cls in ("valu", "vmem", "ds") and set(p.srcc) & set(c.w): n = max(n, p.passes - 1)
    if p.wide_store and set(p.data) & set(c.w): n = max(n, 2)
    return n

class Kern:
    def __init__(self, name, grid, block=256, lds=0, vgpr=256, agpr=0, sgpr=100):
        self.name, self.grid, self.block, self.lds = name, grid, block, lds
        self.vgpr, self.agpr, self.sgpr = vgpr, agpr, sgpr
        self.lines = []
        self.hist = []
        self.vmq, self.lgq = [], []
        self.nlab = 0
        self.nops = 0
        self.count = {}
    def raw(self, s):
        self.lines.append(s)
    def comment(self, s):
        self.lines.append("    ; " + s)
    def _put(self, ins):
        self.lines.append("    " + ins.text)
        self.hist.append(ins)
        if len(self.hist) > 24: self.hist.pop(0)
        self.count[ins.cls] = self.count.get(ins.cls, 0) + 1
    def _waitcnt(self, vm, lg):
        parts = []
        if vm is not None:
            vm = min(vm, 63); parts.append("vmcnt(%d)" % vm)
            self.vmq = self.vmq[len(self.vmq)-vm:] if vm else []
        if lg is not None:
            lg = min(lg, 15); parts.append("lgkmcnt(%d)" % lg)
            self.lgq = self.lgq[len(self.lgq)-lg:] if lg else []
        if parts:
            self._put(Ins("s_waitcnt " + " ".join(parts)))
    def _after(self, q, pred):
        for n in range(len(q)-1, -1, -1):
            if pred(q[n]): return len(q)-1-n
        return None
    def wait(self, vm=None, lg=None):
        a = b = None
        if vm == "all": a = 0 if self.vmq else None
        elif vm is not None: a = self._after(self.vmq, lambda e: e[0] == vm)
        if lg == "all": b = 0 if self.lgq else None
        elif lg is not None: b = self._after(self.lgq, lambda e: e[0] == lg)
        if b is not None and any(e[2] for e in self.lgq): b = 0
        self._waitcnt(a, b)
    def __call__(self, text, tag=None):
        for l in text.strip("\n").split("\n"):
            l = l.strip()
            if not l: continue
            if l.endswith(":"):
                self.lines.append(l); continue
            ins = Ins(l)
            touched = set(ins.r + ins.w + ins.srcc)
            a = self._after(self.vmq, lambda e: e[1] & touched)
            b = self._after(self.lgq, lambda e: e[1] & touched)
            if b is not None and any(e[2] for e in self.lgq): b = 0
            self._waitcnt(a, b)
            dist = 0; need = 0
            for p in reversed(self.hist):
                need = max(need, need_states(p, ins) - dist)
                dist += p.states
                if dist >= 20: break
            while need > 0:
                n = min(need, 16)
                self._put(Ins("s_nop %d" % (n-1))); self.nops += 1
                need -= n
            self._put(ins)
            if ins.cls == "vmem": self.vmq.append((tag, set(ins.w), False))
            elif ins.cls == "ds": self.lgq.append((tag, set(ins.w), False))
            elif ins.cls == "smem": self.lgq.append((tag, set(ins.w), True))
            if ins.op == "s_waitcnt":
                m = re.search(r"vmcnt\((\d+)\)", l)
                if m: n = int(m.group(1)); self.vmq = self.vmq[len(self.vmq)-n:] if n and n < len(self.vmq) else (self.vmq if n else [])
                m = re.search(r"lgkmcnt\((\d+)\)", l)
                if m: n = int(m.group(1)); self.lgq = self.lgq[len(self.lgq)-n:] if n and n < len(self.lgq) else (self.lgq if n else [])
    def label(self, base):
        self.nlab += 1
        return "L_%s_%s_%d" % (self.name, base, self.nlab)
    def settle(self):
        a = self._after(self.vmq, lambda e: e[1]); b = self._after(self.lgq, lambda e: e[1])
        if b is not None and any(e[2] for e in self.lgq): b = 0
        self._waitcnt(a, b)
        dist = 0; need = 0
        for p in reversed(self.hist):
            far = {"mfma": 12 if p.passes == 8 else 8, "valu": 5}.get(p.cls, 2 if p.wide_store else 0)
            need = max(need, far - dist); dist += p.states
        if need > 0: self._put(Ins("s_nop %d" % (need-1)))
    def fork(self):
        return (list(self.vmq), list(self.lgq), list(self.hist))
    def restore(self, st):
        self.vmq, self.lgq, self.hist = list(st[0]), list(st[1]), list(st[2])
    def srd(self, s, base, nbytes):
        self("s_mov_b32 s%d, s%d" % (s, base))
        self("s_mov_b32 s%d, s%d" % (s+1, base+1))
        self("s_mov_b32 s%d, 0x%x" % (s+2, nbytes))
        self("s_mov_b32 s%d, 0x00020000" % (s+3))
    def text(self):
        acc = (self.vgpr + 3)//4*4
        nfv = acc + self.agpr if self.agpr else self.vgpr
        code = ".text\n.globl %s\n.p2align 8\n.type %s,@function\n%s:\n%s\n" % (self.name, self.name, self.name, "\n".join(self.lines))
        desc = (".amdhsa_kernel %s\n  .amdhsa_next_free_vgpr %d\n  .amdhsa_next_free_sgpr %d\n  .amdhsa_accum_offset %d\n"
                "  .amdhsa_group_segment_fixed_size 0\n  .amdhsa_kernarg_size 104\n  .amdhsa_user_sgpr_count 2\n"
                "  .amdhsa_user_sgpr_kernarg_segment_ptr 1\n  .amdhsa_system_sgpr_workgroup_id_x 1\n"
                "  .amdhsa_float_denorm_mode_32 3\n.end_amdhsa_kernel\n") % (self.name, nfv, self.sgpr, acc)
        return code, desc

NAME = "interleave_layers__spectral_fnet__dense_activation_squared_relu__prompt"
KA = dict(x=0, seq_re=8, seq_im=16, hid_re=24, hid_im=32, bx=40, w1=48, b1=56, w2=64, b2=72, out=80, dbg=88, ws=96)

def assemble(header, kerns, order, tables=""):
    out = [header]
    if len(order) == 1 and order[0].name == NAME + "_kernel":
        k = order[0]
        out.append("; @launch grid=(%d,1,1) block=(%d,1,1) lds=%d\n" % (k.grid, k.block, k.lds))
    else:
        for k in order:
            out.append("; @launch kernel=%s grid=(%d,1,1) block=(%d,1,1) lds=%d\n" % (k.name, k.grid, k.block, k.lds))
    out.append('.amdgcn_target "amdgcn-amd-amdhsa--gfx950"\n')
    descs = []
    for k in kerns:
        c, d = k.text(); out.append(c); descs.append(d)
    out.append(tables)
    out.append('.section .rodata,"a"\n')
    for d in descs:
        out.append(".p2align 6\n" + d)
    return "".join(out)

def interleave(k, main, fill, per_gap, start=0):
    def put(x):
        if callable(x): x()
        elif isinstance(x, tuple): k(x[0], tag=x[1])
        else: k(x)
    fill = list(fill)
    for n, m in enumerate(main):
        put(m)
        if n >= start:
            for _ in range(per_gap):
                if fill: put(fill.pop(0))
    return fill
```

```python
from common import *

sKP, sC, sRH, sCB = 70, 71, 72, 73
sXO, sW1O, sHS, sHS3 = 74, 75, 76, 77
sCNT, sCNTP = 78, 79
sHB = [80, 81, 82, 83]
sWB = [84, 85, 86, 87]
sT0, sT1, sT2 = 88, 89, 90
sSPIN = 91
vL, vA0, vA1, vA2, vA3, vH, vH3, vSIG, vONE, vQ = 1, 2, 3, 4, 5, 6, 7, 8, 9, 10
vHL = 12
SB, TMP = 24, 28
ACC = {3: 32, 0: 48, 1: 64, 2: 80}
XBR = 96
RING = 232
G2ACC, HR, W2X, RB, RT = 16, 96, 176, 216, 236
SPIN_LIMIT = 100000

def roles(k):
    k("s_lshr_b32 s70, s5, 4")
    k("s_lshl_b32 s88, s4, 1")
    k("s_add_u32 s70, s70, s88")
    k("s_and_b32 s71, s5, 15")
    k("s_lshr_b32 s72, s71, 3")
    k("s_and_b32 s73, s71, 7")
    k("s_mul_i32 s75, s71, %d" % LW1)
    k("s_lshl_b32 s88, s3, 10")
    k("s_add_u32 s75, s75, s88")
    k("s_add_u32 s75, s75, 0x%x" % W1P)

def w1_dma(k, lo, hi, tag):
    out = []
    for j in range(lo, hi):
        def one(j=j):
            k("s_lshl_b32 s88, s3, 10")
            k("s_add_u32 m0, s88, %d" % (j*4096))
            k("s_add_u32 s88, s75, %d" % (j*4096))
            k("buffer_load_dwordx4 v%d, %s, s88 offen lds" % (vL, srd(WS)), tag=tag)
        out.append(one)
    return out

def pre(k, layer):
    k.comment("feed-forward: addresses")
    k("v_lshlrev_b32 v%d, 4, v0" % vL)
    k("v_add_u32 v%d, %d, v%d" % (vA0, T0_OFF, vL))
    k("v_add_u32 v%d, %d, v%d" % (vA1, T1_OFF, vL))
    k("v_add_u32 v%d, %d, v%d" % (vA2, T2_OFF, vL))
    k("v_and_b32 v16, 31, v0")
    k("v_min_u32 v16, 16, v16")
    k("v_lshrrev_b32 v17, 5, v0")
    k("v_mul_u32_u24 v18, 272, v17")
    k("v_lshl_add_u32 v16, v16, 4, v18")
    k("v_add_u32 v%d, %d, v16" % (vA3, T3_OFF))
    k("v_bfe_u32 v16, v0, 4, 1")
    k("v_and_b32 v18, 15, v0")
    k("v_lshlrev_b32 v18, 4, v18")
    k("v_lshl_add_u32 v18, v16, 10, v18")
    k("v_lshl_add_u32 v%d, v17, 8, v18" % vH)
    k("s_lshr_b32 s88, s71, 1")
    k("s_mul_i32 s88, s88, 3")
    k("s_add_u32 s88, s88, 192")
    k("s_and_b32 s89, s71, 1")
    k("s_lshl_b32 s90, s89, 1")
    k("s_add_u32 s88, s88, s90")
    k("v_add_u32 v19, s88, v17")
    k("v_lshrrev_b32 v20, 2, v19")
    k("v_and_b32 v19, 3, v19")
    k("v_lshl_add_u32 v18, v20, 12, v18")
    k("v_lshl_add_u32 v18, v19, 8, v18")
    k("v_and_b32 v19, s89, v17")
    k("v_lshlrev_b32 v19, 30, v19")
    k("v_add_u32 v%d, v18, v19" % vH3)
    k("v_min_u32 v16, 1, v0")
    k("v_lshlrev_b32 v%d, 30, v16" % vSIG)
    k("v_mov_b32 v%d, 1" % vONE)
    for lam in range(4):
        k("s_add_u32 s88, s3, %d" % (lam+1))
        k("s_and_b32 s88, s88, 3")
        k("s_lshl_b32 s88, s88, 10")
        k("v_add_u32 v%d, s88, v%d" % (vHL+lam, vL))
    k("s_lshl_b32 s88, s70, 2")
    k("s_add_u32 s88, s88, s3")
    k("s_mul_i32 s74, s88, 40960")
    k("s_add_u32 s74, s74, 0x%x" % XG[2*layer+1])
    k("s_lshr_b32 s89, s88, 1")
    k("s_mul_i32 s77, s89, %d" % HBLK)
    k("s_and_b32 s90, s3, 1")
    k("s_lshl_b32 s90, s90, 11")
    k("s_add_u32 s77, s77, s90")
    k("s_add_u32 s77, s77, 0x%x" % H[layer])
    k("s_lshl_b32 s90, s71, 13")
    k("s_add_u32 s76, s77, s90")
    k("s_mul_i32 s78, s89, 768")
    k("s_add_u32 s78, s78, 0x%x" % (CNT + layer*32*768))
    k("s_lshl_b32 s89, s70, 1")
    k("s_add_u32 s89, s89, s72")
    k("s_mul_i32 s79, s89, 768")
    k("s_add_u32 s79, s79, 0x%x" % (CNT + layer*32*768))
    k("s_mul_i32 s89, s89, %d" % HBLK)
    k("s_add_u32 s89, s89, 0x%x" % H[layer])
    k("s_mul_i32 s90, s73, %d" % LW2)
    k("s_add_u32 s90, s90, 0x%x" % W2P[layer])
    for base, unit, regs in ((89, 4096, sHB), (90, 5120, sWB)):
        k("s_mul_i32 s88, s3, %d" % (8*unit)); k("s_add_u32 s%d, s%d, s88" % (regs[0], base))
        k("s_mul_i32 s88, s3, %d" % unit); k("s_add_u32 s88, s88, %d" % (48*unit)); k("s_add_u32 s%d, s%d, s88" % (regs[1], base))
        k("s_add_u32 s%d, s%d, %d" % (regs[2], regs[1], 4*unit))
        k("s_cmp_lt_u32 s3, 2"); k("s_cselect_b32 s%d, s%d, 0x%x" % (regs[2], regs[2], OOB))
        k("s_mul_i32 s88, s3, %d" % (4*unit)); k("s_add_u32 s88, s88, %d" % (32*unit)); k("s_add_u32 s%d, s%d, s88" % (regs[3], base))

def step_base(idx):
    if idx < 4: return 0, 2*idx
    if idx == 4: return 1, 0
    if idx == 5: return 2, 0
    if idx < 10: return 0, 2*(idx-6) + 1
    return 3, idx-10

def w2_reg(idx, dt):
    return a(20*idx+4*dt, 4) if idx < 12 else v(W2X+20*(idx-12)+4*dt, 4)

def w2_loads(k, idx):
    b, n = step_base(idx)
    out = []
    for dt in range(5):
        def one(dt=dt):
            if dt == 0: k("s_add_u32 s89, s%d, %d" % (sWB[b], n*5120))
            if dt == 4: k("s_add_u32 s89, s%d, %d" % (sWB[b], n*5120 + 4096))
            k("buffer_load_dwordx4 %s, v%d, %s, s89 offen offset:%d" % (w2_reg(idx, dt), vL, srd(WS), (dt & 3)*1024))
        out.append(one)
    return out

def h_loads(k, idx):
    b, n = step_base(idx)
    out = []
    for lam in range(4):
        def one(lam=lam):
            if lam == 0: k("s_add_u32 s90, s%d, %d" % (sHB[b], n*4096))
            k("buffer_load_dwordx4 %s, v%d, %s, s90 offen sc1" % (v(HR+16*(idx % 5)+4*lam, 4), vHL+lam, srd(WS)))
        out.append(one)
    return out

def x_loads(k):
    for s in range(40):
        if s and s % 4 == 0: k("s_add_u32 s74, s74, 4096")
        k("buffer_load_dwordx4 %s, v%d, %s, s74 offen offset:%d sc1" % (v(XBR+4*s, 4), vL, srd(WS), (s & 3)*1024))

def signal(k, stage, tag):
    def f():
        k.wait(vm=tag)
        k("buffer_atomic_add v%d, v%d, %s, s%d offen offset:%d sc1" % (vONE, vSIG, srd(WS), sCNT, stage*256))
    return f

def poll_issue(k, stage, vp):
    return lambda: k("buffer_load_dword v%d, off, %s, s%d offset:%d sc1" % (vp, srd(WS), sCNTP, stage*256))

def poll_check(k, vp, soff, off, want):
    ok, again = k.label("ok"), k.label("again")
    k("v_readfirstlane_b32 s88, v%d" % vp)
    k("s_mov_b32 s%d, 0" % sSPIN)
    k("s_cmp_ge_u32 s88, %d" % want)
    k("s_cbranch_scc1 " + ok)
    st = k.fork()
    k(again + ":")
    k("buffer_load_dword v%d, off, %s, s%d offset:%d sc1" % (vp, srd(WS), soff, off))
    k("s_add_u32 s%d, s%d, 1" % (sSPIN, sSPIN))
    k("s_waitcnt vmcnt(0)")
    k("v_readfirstlane_b32 s88, v%d" % vp)
    k("s_cmp_ge_u32 s%d, %d" % (sSPIN, SPIN_LIMIT))
    k("s_cbranch_scc1 " + ok)
    k("s_cmp_ge_u32 s88, %d" % want)
    k("s_cbranch_scc0 " + again)
    k.restore(st)
    k(ok + ":")

def tile_epilogue(k, t, soff, imm, tag):
    b = ACC[t]; n = 8 if t == 3 else 16
    out = []
    for g in range(n // 8):
        for r in range(8): out.append("v_mul_f32 v%d, v%d, |v%d|" % (b+8*g+r, b+8*g+r, b+8*g+r))
        for r in range(4): out.append("v_cvt_pk_bf16_f32 v%d, v%d, v%d" % (b+8*g+r, b+8*g+2*r, b+8*g+2*r+1))
        for r in range(4): out.append("v_pk_max_i16 v%d, v%d, 0" % (b+8*g+r, b+8*g+r))
        out.append(("buffer_store_dwordx4 %s, v%d, %s, s%d offen offset:%d sc1" % (v(b+8*g, 4), vH3 if t == 3 else vH, srd(WS), soff, imm + g*512), tag))
    return out

def stats_ops(k):
    c = f2u(1.0/D); T = TMP
    return [
        "v_add_f32 v%d, v%d, v%d" % (vQ, vQ, vQ+1),
        "v_mul_f32 v%d, 0x%x, v%d" % (T, f2u(-1.0/D), ACC[3]+8),
        "v_mov_b32 v%d, v%d" % (vQ+1, vQ),
        "v_cvt_pk_bf16_f32 v%d, v%d, v%d" % (SB, T, T),
        "v_permlane32_swap_b32 v%d, v%d" % (vQ, vQ+1),
        "v_lshlrev_b32 v%d, 16, v%d" % (T+1, SB),
        "v_add_f32 v%d, v%d, v%d" % (vQ, vQ, vQ+1),
        "v_sub_f32 v%d, v%d, v%d" % (T+1, T, T+1),
        "v_mul_f32 v%d, 0x%x, v%d" % (vQ, c, vQ),
        "v_fma_f32 v%d, -v%d, v%d, v%d" % (vQ, T, T, vQ),
        "v_max_f32 v%d, 0, v%d" % (vQ, vQ),
        "v_add_f32 v%d, 0x%x, v%d" % (vQ, f2u(1e-5), vQ),
        "v_sqrt_f32 v%d, v%d" % (T+2, vQ),
        "v_rcp_f32 v%d, v%d" % (vQ+1, vQ),
        "v_cvt_pk_bf16_f32 v%d, v%d, v%d" % (SB+1, T+1, T+2),
        "v_and_b32 v%d, 0xffff0000, v%d" % (T+3, SB+1),
        "v_sub_f32 v%d, v%d, v%d" % (T+3, T+2, T+3),
        "v_cvt_pk_bf16_f32 v%d, v%d, 0" % (SB+2, T+3),
        "v_mov_b32 v%d, 0" % (SB+3),
        "v_and_b32 v%d, 31, v0" % T,
        "v_lshlrev_b32 v%d, 2, v%d" % (T, T),
        "s_lshl_b32 s88, s3, 7",
        "s_add_u32 s88, s88, %d" % L_RS2,
        "v_add_u32 v%d, s88, v%d" % (T, T),
        "ds_write_b32 v%d, v%d" % (T, vQ+1),
    ]

def extract_residual(k):
    done = k.label("exdone")
    k.settle()
    k("s_lshr_b32 s88, s3, 1")
    k("s_cmp_eq_u32 s88, s72")
    k("s_cbranch_scc0 " + done)
    st = k.fork()
    k("s_and_b32 s88, s73, 1")
    k("s_mov_b32 s89, 0x05040100")
    k("s_cmp_eq_u32 s88, 0")
    k("s_cselect_b32 s89, s89, 0x07060302")
    k("v_and_b32 v16, 31, v0")
    k("v_mul_u32_u24 v16, 160, v16")
    k("v_lshrrev_b32 v17, 5, v0")
    k("v_lshl_add_u32 v16, v17, 3, v16")
    k("s_and_b32 s88, s3, 1")
    k("s_mul_i32 s88, s88, 5120")
    k("s_add_u32 s88, s88, %d" % L_RES)
    k("v_add_u32 v16, s88, v16")
    k("s_lshr_b32 s88, s73, 1")
    labs = [k.label("ex") for _ in range(4)]
    for r in range(1, 4):
        k("s_cmp_eq_u32 s88, %d" % r); k("s_cbranch_scc1 " + labs[r])
    st2 = k.fork()
    for r in range(4):
        k.restore(st2)
        k(labs[r] + ":")
        for q in range(10):
            t = 18 + 2*(q % 3)
            k("v_perm_b32 v%d, v%d, v%d, s89" % (t, XBR+16*q+4+r, XBR+16*q+r))
            k("v_perm_b32 v%d, v%d, v%d, s89" % (t+1, XBR+16*q+12+r, XBR+16*q+8+r))
            k("ds_write_b64 v16, %s offset:%d" % (v(t, 2), q*16))
        k("s_waitcnt lgkmcnt(0)")
        if r < 3: k("s_branch " + done)
    k.restore(st)
    k(done + ":")

def g1(k, layer, w1_late_tag, w2_from=0):
    k.comment("first GEMM")
    items = []
    for s in range(40): items += [(3, s), (0, s)]
    P2 = len(items)
    items += [(1, s) for s in range(8)] + [("x", 3), ("x", 0)] + [(1, s) for s in range(8, 40)] + [("x", 1)]
    P3 = len(items)
    items += [(2, s) for s in range(40)] + [("x", 2)]
    def read(n):
        t, s = items[n]; d = a(RING+4*(n % 6), 4)
        if t == "x": return "ds_read_b128 %s, v%d offset:%d" % (d, vL, EX_OFF + ((s+1) & 3)*1024)
        if t == 3: return "ds_read_b128 %s, v%d offset:%d" % (d, vA3, s*T3_STEP)
        return "ds_read_b128 %s, v%d offset:%d" % (d, (vA0, vA1, vA2)[t], s*1024)
    def mfma(n):
        t, s = items[n]; A = a(RING+4*(n % 6), 4)
        if t == "x": return "v_mfma_f32_32x32x16_bf16 %s, %s, %s, %s" % (v(ACC[s], 16), A, v(SB, 4), v(ACC[s], 16))
        return "v_mfma_f32_32x32x16_bf16 %s, %s, %s, %s" % (v(ACC[t], 16), A, v(XBR+4*s, 4), v(ACC[t], 16) if s else "0")
    fill = {n: [] for n in range(len(items))}
    def spread(ops, n0, per):
        n = n0
        for j in range(0, len(ops), per):
            fill[n] += ops[j:j+per]; n += 1
        return n
    for s in range(40):
        for jj in range(4):
            fill[2*s + (jj >> 1)].append("v_dot2c_f32_bf16 v%d, v%d, v%d" % (vQ + (jj & 1), XBR+4*s+jj, XBR+4*s+jj))
    spread(stats_ops(k), P2+1, 4)
    n = spread(tile_epilogue(k, 3, sHS3, 0, "hA") + tile_epilogue(k, 0, sHS, 0, "hA"), P2+12, 4)
    w2l = [l for idx in range(w2_from, 11) for l in w2_loads(k, idx)]
    nA = P3 - 4
    fill[nA].append(signal(k, 0, "hA"))
    n = spread(["s_add_u32 s76, s76, 4096"] + tile_epilogue(k, 1, sHS, 0, "hB"), P3+3, 4)
    fill[P3+14].append(poll_issue(k, 0, TMP))
    fill[P3+20].append(lambda: poll_check(k, TMP, sCNTP, 0, 32))
    spread([l for idx in range(5) for l in h_loads(k, idx)], P3+21, 2)
    fill[P3+34].append(signal(k, 1, "hB"))
    if w2l:
        k_per = -(-len(w2l) // 28)
        pos = [P2 + 24 + j for j in range(14)] + [P3 + j for j in range(14)]
        for j, l in enumerate(w2l): fill[pos[min(j // k_per, len(pos)-1)]].append(l)
    k("v_mov_b32 v%d, 0" % vQ); k("v_mov_b32 v%d, 0" % (vQ+1))
    for n in range(5): k(read(n))
    for n in range(len(items)):
        if n == P2 - 5:
            k.wait(vm=w1_late_tag)
            k("s_barrier")
        if n == P2 and layer == 1: extract_residual(k)
        k(mfma(n))
        if n + 5 < len(items): k(read(n+5))
        for x in fill[n]:
            if callable(x): x()
            elif isinstance(x, tuple): k(x[0], tag=x[1])
            else: k(x)
    k("s_lshl_b32 s88, s71, 12")
    k("s_add_u32 s76, s77, s88")
    k("s_add_u32 s76, s76, %d" % (32*4096))
    for idx in (11, 12, 13):
        for l in w2_loads(k, idx): l()
    for x in tile_epilogue(k, 2, sHS, 0, "hC"):
        if isinstance(x, tuple): k(x[0], tag=x[1])
        else: k(x)

def g2(k, layer):
    k.comment("second GEMM")
    k("s_waitcnt lgkmcnt(0)")
    k("s_barrier")
    vE = 246
    k("v_lshrrev_b32 v%d, 4, v0" % vE)
    k("v_mul_u32_u24 v%d, 80, v%d" % (vE+1, vE))
    k("s_mul_i32 s88, s73, 320")
    k("s_add_u32 s88, s88, 0x%x" % (B2P + layer*2560))
    for dt in range(5):
        k("buffer_load_dwordx4 %s, v%d, %s, s88 offen offset:%d" % (v(RB+4*dt, 4), vE+1, srd(WS), dt*16))
    k("v_and_b32 v%d, 15, v0" % (vE+2))
    k("s_lshl_b32 s92, s70, 3")
    k("s_lshl_b32 s88, s72, 2")
    k("s_add_u32 s92, s92, s88")
    k("s_add_u32 s92, s92, s3")
    pre_ops = []
    if layer == 0:
        k("v_lshlrev_b32 v%d, 4, v%d" % (vE+3, vE+2))
        k("v_lshl_add_u32 v%d, v%d, 12, v%d" % (vE+4, vE, vE+3))
        k("v_lshrrev_b32 v%d, 5, v0" % (vE+5))
        k("v_lshl_add_u32 v%d, v%d, 12, v%d" % (vE+5, vE+5, vE+3))
        k("v_bfe_u32 v%d, v0, 4, 1" % (vE+3))
        k("v_lshl_add_u32 v%d, v%d, 3, v%d" % (vE+5, vE+3, vE+5))
        k("s_lshr_b32 s88, s92, 1")
        k("s_mul_i32 s93, s88, 40960")
        k("s_and_b32 s88, s92, 1")
        k("s_lshl_b32 s88, s88, 8")
        k("s_add_u32 s93, s93, s88")
        k("s_lshl_b32 s88, s73, 9")
        k("s_add_u32 s93, s93, s88")
        k("s_add_u32 s88, s93, 0x%x" % XG[1])
        k("buffer_load_dwordx4 %s, v%d, %s, s88 offen sc1" % (v(RT, 4), vE+4, srd(WS)))
        k("s_add_u32 s88, s93, 0x%x" % (XG[1] + 16384))
        k("buffer_load_dwordx4 %s, v%d, %s, s88 offen sc1" % (v(RT+4, 4), vE+4, srd(WS)))
        k("s_add_u32 s88, s93, 0x%x" % (XG[1] + 32768))
        k("buffer_load_dwordx2 %s, v%d, %s, s88 offen sc1" % (v(RT+8, 2), vE+5, srd(WS)))
        src = [(RT + (e >> 1), e & 1) for e in range(20)]
    else:
        k("v_mul_u32_u24 v%d, 160, v%d" % (vE+3, vE+2))
        k("s_mul_i32 s88, s3, 2560")
        k("s_add_u32 s88, s88, %d" % L_RES)
        k("v_add_u32 v%d, s88, v%d" % (vE+3, vE+3))
        k("v_lshl_add_u32 v%d, v%d, 4, v%d" % (vE+4, vE, vE+3))
        k("v_lshrrev_b32 v%d, 5, v0" % (vE+5))
        k("v_lshl_add_u32 v%d, v%d, 4, v%d" % (vE+5, vE+5, vE+3))
        k("v_bfe_u32 v%d, v0, 4, 1" % (vE+3))
        k("v_lshl_add_u32 v%d, v%d, 2, v%d" % (vE+5, vE+3, vE+5))
        k("ds_read_b128 %s, v%d" % (v(RT, 4), vE+4))
        k("ds_read_b128 %s, v%d offset:64" % (v(RT+4, 4), vE+4))
        k("ds_read2_b32 %s, v%d offset0:32 offset1:34" % (v(RT+8, 2), vE+5))
        src = []
        for e in range(16):
            j = e & 7
            src.append((RT + 4*(e >> 3) + 2*(j & 1) + (j >> 2), (j >> 1) & 1))
        for r in range(4): src.append((RT + 8 + (r & 1), r >> 1))
    k("s_lshl_b32 s88, s72, 2")
    k("s_add_u32 s88, s88, s3")
    k("s_lshl_b32 s88, s88, 6")
    k("s_add_u32 s88, s88, %d" % L_RS2)
    k("v_lshl_add_u32 v%d, v%d, 2, s88" % (vE+3, vE+2))
    k("ds_read_b32 v%d, v%d" % (vE+6, vE+3))
    for e, (r, hi) in enumerate(src):
        pre_ops.append("v_and_b32 v%d, 0xffff0000, v%d" % (vE+7, r) if hi else "v_lshlrev_b32 v%d, 16, v%d" % (vE+7, r))
        pre_ops.append("v_add_f32 v%d, v%d, v%d" % (RB+e, RB+e, vE+7))
    red = []
    for lam in range(3):
        red.append(2+lam)
        k("s_add_u32 s88, s3, %d" % (lam+1))
        k("s_and_b32 s88, s88, 3")
        k("s_mul_i32 s88, s88, 15360")
        k("s_add_u32 s88, s88, %d" % (L_RED + lam*5120))
        k("v_add_u32 v%d, s88, v%d" % (2+lam, vL))
    k("s_mul_i32 s88, s3, 15360")
    k("s_add_u32 s88, s88, %d" % L_RED)
    k("v_add_u32 v5, s88, v%d" % vL)
    def mf(idx, lam, dt):
        d = v(G2ACC+20*lam+4*dt, 4)
        return "v_mfma_f32_16x16x32_bf16 %s, %s, %s, %s" % (d, w2_reg(idx, dt), v(HR+16*(idx % 5)+4*lam, 4), d if idx else "0")
    for idx in range(10):
        m = [mf(idx, lam, dt) for lam in range(4) for dt in range(5)]
        f = []
        if idx == 0: f = [poll_issue(k, 1, 10)]
        if idx == 1: f = [signal(k, 2, "hC")] + pre_ops[:18]
        if idx == 2: f = pre_ops[18:]
        if idx == 3:
            f = [poll_issue(k, 2, 10)]
            if layer == 0: f += [lambda: [k(l) for l in m80_loads(k, 0, 6, vL, "a")]]
        rest = interleave(k, m, f, 1)
        assert len(rest) <= 4
        for x in rest:
            x() if callable(x) else k(x)
        if idx + 5 < 14:
            if idx + 5 == 6: poll_check(k, 10, sCNTP, 256, 32)
            if idx + 5 == 10: poll_check(k, 10, sCNTP, 512, 32)
            for l in h_loads(k, idx+5): l()
    f = []
    for lam in range(4):
        m = [mf(idx, lam, dt) for idx in range(10, 14) for dt in range(5)]
        interleave(k, m, f, 1, start=5)
        f = [("ds_write_b128 v%d, %s offset:%d" % (red[lam], v(G2ACC+20*lam+4*dt, 4), dt*1024), "red") for dt in range(5)] if lam < 3 else []
    k.wait(lg="red")
    k("s_barrier")
    for sl in range(3):
        for dt in range(5):
            k("ds_read_b128 %s, v5 offset:%d" % (v(HR+20*sl+4*dt, 4), sl*5120 + dt*1024))
    O = G2ACC + 60
    for sl in range(3):
        for e in range(20):
            k("v_add_f32 v%d, v%d, v%d" % (O+e, O+e, HR+20*sl+e))
    for e in range(20):
        k("v_fma_f32 v%d, v%d, v%d, v%d" % (O+e, O+e, vE+6, RB+e))
    XP = 36
    for e in range(10):
        k("v_cvt_pk_bf16_f32 v%d, v%d, v%d" % (XP+e, O+2*e, O+2*e+1))
    if layer == 0:
        m = dft80_mfmas(XP, XP+4, XP+8, 0, 16, "a")
        st = ["s_add_u32 s88, s93, 0x%x" % XG[2],
              ("buffer_store_dwordx4 %s, v%d, %s, s88 offen sc1" % (v(XP, 4), vE+4, srd(WS)), "fin"),
              "s_add_u32 s88, s93, 0x%x" % (XG[2] + 16384),
              ("buffer_store_dwordx4 %s, v%d, %s, s88 offen sc1" % (v(XP+4, 4), vE+4, srd(WS)), "fin"),
              "s_add_u32 s88, s93, 0x%x" % (XG[2] + 32768),
              ("buffer_store_dwordx2 %s, v%d, %s, s88 offen sc1" % (v(XP+8, 2), vE+5, srd(WS)), "fin"),
              "v_add_f32 v46, v%d, v%d" % (O, O+1), "v_mul_f32 v47, v%d, v%d" % (O, O),
              "v_fmac_f32 v47, v%d, v%d" % (O+1, O+1)]
        for e in range(2, 20):
            st += ["v_add_f32 v46, v46, v%d" % (O+e), "v_fmac_f32 v47, v%d, v%d" % (O+e, O+e)]
        rest = interleave(k, m, st, 2)
        for x in rest: k(x)
        u_addr(k, 50, 51)
        k("s_lshl_b32 s88, s73, 7")
        k("s_add_u32 s88, s88, s92")
        k("s_lshl_b32 s88, s88, 6")
        k("s_add_u32 s94, s88, 0x%x" % U[1])
        u_stores(k, 16, 50, 94, 88, tag="fin")
        xsum(k, [46, 47], 48, [4, 5])
        k("v_cmp_gt_u32 vcc, 16, v0")
        k("v_lshlrev_b32 v48, 3, v%d" % (vE+2))
        k("v_lshl_add_u32 v48, v%d, 2, v48" % vE)
        k("v_cndmask_b32 v46, v47, v46, vcc")
        k("s_lshl_b32 s88, s92, 7")
        k("s_add_u32 s88, s88, 0x%x" % ST[1])
        k("s_mov_b32 exec_hi, 0")
        k("buffer_atomic_add_f32 v46, v48, %s, s88 offen" % srd(WS), tag="fin")
        k("s_mov_b64 exec, -1")
    else:
        k.srd(AUX, pOUT, XB)
        k("v_and_b32 v46, 7, v0")
        k("v_bfe_u32 v47, v0, 3, 1")
        k("v_lshl_add_u32 v46, v46, 1, v47")
        k("v_mul_u32_u24 v46, 40960, v46")
        k("v_lshl_add_u32 v47, v%d, 4, v46" % vE)
        k("v_lshl_add_u32 v46, v%d, 3, v46" % vE)
        k("s_lshr_b32 s88, s92, 5")
        k("s_lshl_b32 s88, s88, 9")
        k("s_and_b32 s89, s92, 31")
        k("s_add_u32 s88, s88, s89")
        k("s_mul_i32 s88, s88, 1280")
        k("s_mul_i32 s89, s73, 160")
        k("s_add_u32 s88, s88, s89")
        k("buffer_store_dwordx4 %s, v47, %s, s88 offen" % (v(XP, 4), srd(AUX)))
        k("buffer_store_dwordx4 %s, v47, %s, s88 offen offset:64" % (v(XP+4, 4), srd(AUX)))
        k("buffer_store_dwordx2 %s, v46, %s, s88 offen offset:128" % (v(XP+8, 2), srd(AUX)))
```

```python
S, D, F = 2048, 640, 1728
XB = S*D*2
XG = [0, 0x280000, 0x500000, 0x780000]
U = [0xA00000, 0xC80000]
H = [0xF00000, 0x15C0000]
HBLK = 54*4096
W1P = 0x1C80000
LW1 = 148*1024
W2P = [0x1F00000, 0x2120000]
LW2 = 54*5120
ST = [0x2340000, 0x2344000]
B2P = 0x2348000
CNT = 0x2350000
CNT_BYTES = 0x14000
GBAR = CNT + 0xC000
WS_USED = 0x2364000
OOB = 0x7F000000
EX_OFF, T3_OFF, T0_OFF, T1_OFF, T2_OFF, W1_END = 0, 4096, 25856, 66816, 107776, 148736
T3_STEP = 544
L_RS2 = LW1
L_RES = LW1 + 512
L_RED = 0
L_CU = T1_OFF
L_CRS = T1_OFF + 4*18432
LDS_BYTES = 163840
```

```python
from common import *

def px(k, sT):
    k.comment("input row tile: granule copy, row sums, 80-point partial transform")
    k.srd(AUX, pX, XB)
    k("s_lshr_b32 s40, s%d, 5" % sT)
    k("s_lshl_b32 s40, s40, 9")
    k("s_and_b32 s41, s%d, 31" % sT)
    k("s_add_u32 s40, s40, s41")
    k("s_lshl_b32 s41, s3, 2")
    k("s_mul_i32 s42, s3, 5120")
    k("s_mov_b32 s43, 1280")
    for n in range(5):
        k("v_add_u32 v1, %d, v0" % (64*n))
        k("v_mul_u32_u24 v2, 205, v1")
        k("v_lshrrev_b32 v2, 14, v2")
        k("v_mul_u32_u24 v3, 80, v2")
        k("v_sub_u32 v1, v1, v3")
        k("v_add_u32 v2, s41, v2")
        k("v_and_b32 v3, 7, v2")
        k("v_lshrrev_b32 v2, 3, v2")
        k("v_lshl_add_u32 v2, v3, 1, v2")
        k("v_lshl_add_u32 v2, v2, 5, s40")
        k("v_lshlrev_b32 v1, 4, v1")
        k("v_mad_u32_u24 v1, v2, s43, v1")
        k("s_add_u32 m0, s42, %d" % (n*1024))
        k("buffer_load_dwordx4 v1, %s, 0 offen lds" % srd(AUX), tag="raw")
    M = 80
    k("v_lshlrev_b32 v4, 4, v0")
    for l in m80_loads(k, M, 6, 4): k(l)
    k("v_and_b32 v1, 3, v0")
    k("v_mul_u32_u24 v10, 1280, v1")
    k("v_add_u32 v10, s42, v10")
    k("v_lshrrev_b32 v2, 4, v0")
    k("v_lshl_add_u32 v10, v2, 3, v10")
    k("v_bfe_u32 v3, v0, 2, 2")
    k("v_mul_u32_u24 v11, 160, v3")
    k("v_add_u32 v10, v10, v11")
    k("v_lshl_add_u32 v12, v2, 2, v1")
    k("v_add_u32 v13, s41, v3")
    k("v_mul_u32_u24 v14, 288, v12")
    k("v_lshl_add_u32 v14, v13, 4, v14")
    k("v_add_u32 v14, 20480, v14")
    k("v_lshlrev_b32 v15, 9, v12")
    k("v_lshl_add_u32 v15, v13, 4, v15")
    k("s_lshr_b32 s44, s%d, 1" % sT)
    k("s_mul_i32 s44, s44, 40960")
    k("s_and_b32 s45, s%d, 1" % sT)
    k("s_lshl_b32 s45, s45, 8")
    k("s_add_u32 s44, s44, s45")
    k("s_add_u32 s44, s44, 0x%x" % XG[0])
    G = 20
    k.wait(vm="raw")
    for n in range(5):
        for h in range(2):
            k("ds_read_b64_tr_b16 %s, v10 offset:%d" % (v(G+4*n+2*h, 2), n*32 + h*640))
    k("v_mov_b32 v16, 0"); k("v_mov_b32 v17, 0")
    k("s_mov_b32 s46, 0x%x" % ONES)
    for n in range(5):
        k("ds_write_b128 v14, %s offset:%d" % (v(G+4*n, 4), n*16*288), tag="g")
        if n: k("s_add_u32 s44, s44, 8192")
        k("buffer_store_dwordx4 %s, v15, %s, s44 offen sc1" % (v(G+4*n, 4), srd(WS)))
    for n in range(20):
        k("v_dot2c_f32_bf16 v16, s46, v%d" % (G+n))
        k("v_dot2c_f32_bf16 v17, v%d, v%d" % (G+n, G+n))
    k("v_and_b32 v1, 15, v0")
    k("v_lshlrev_b32 v1, 4, v1")
    k("s_mul_i32 s47, s3, 576")
    k("s_add_u32 s47, s47, 20480")
    k("v_mul_u32_u24 v5, 2304, v2")
    k("v_add3_u32 v5, v5, v1, s47")
    k("v_lshrrev_b32 v3, 5, v0")
    k("v_mul_u32_u24 v6, 2304, v3")
    k("v_bfe_u32 v3, v0, 4, 1")
    k("v_lshl_add_u32 v6, v3, 3, v6")
    k("v_add3_u32 v6, v6, v1, s47")
    k.wait(lg="g")
    k("s_barrier")
    A = 40
    for dd in range(2):
        k("ds_read_b128 %s, v5 offset:%d" % (v(A+10*dd, 4), dd*288))
        k("ds_read_b128 %s, v5 offset:%d" % (v(A+10*dd+4, 4), dd*288 + 9216))
        k("ds_read_b64 %s, v6 offset:%d" % (v(A+10*dd+8, 2), dd*288 + 18432))
    xsum(k, [16, 17], 18, [0, 1, 4, 5])
    k("v_lshlrev_b32 v13, 3, v13")
    k("s_lshl_b32 s45, s%d, 7" % sT)
    k("s_add_u32 s45, s45, 0x%x" % ST[0])
    k("s_mov_b64 exec, 0x1111")
    k("buffer_store_dwordx2 v[16:17], v13, %s, s45 offen sc1" % srd(WS))
    k("s_mov_b64 exec, -1")
    u_addr(k, 7, 8)
    k("s_lshl_b32 s48, s3, 8")
    k("s_add_u32 s48, s48, s%d" % sT)
    k("s_lshl_b32 s48, s48, 6")
    k("s_add_u32 s48, s48, 0x%x" % U[0])
    for dd in range(2):
        for m in dft80_mfmas(A+10*dd, A+10*dd+4, A+10*dd+8, M, 140+20*dd): k(m)
    for dd in range(2):
        if dd: k("s_add_u32 s48, s48, 8192")
        u_stores(k, 140+20*dd, 7, 48, 49)

def pw1(k, sT):
    k.comment("w1 column tile -> fragment image")
    k.srd(AUX, pW1, D*F*2)
    k.srd(AUX2, pB1, F*2)
    k("v_bfe_u32 v1, v0, 2, 3")
    k("v_mul_u32_u24 v1, 80, v1")
    k("v_lshrrev_b32 v2, 5, v0")
    k("v_add_u32 v1, v1, v2")
    k("v_mul_u32_u24 v1, 3456, v1")
    k("v_and_b32 v3, 3, v0")
    k("v_lshl_add_u32 v1, v3, 4, v1")
    k("s_mul_i32 s40, s3, 69120")
    k("s_lshl_b32 s41, s%d, 6" % sT)
    k("s_add_u32 s40, s40, s41")
    k("s_mul_i32 s42, s3, 10240")
    for n in range(10):
        k("s_add_u32 m0, s42, %d" % (n*1024))
        if n: k("s_add_u32 s40, s40, 6912")
        else: k("s_nop 0")
        k("buffer_load_dwordx4 v1, %s, s40 offen lds" % srd(AUX), tag="raw%d" % n)
    k("v_bfe_u32 v4, v0, 4, 1")
    k("v_bfe_u32 v5, v0, 2, 1")
    k("v_bfe_u32 v6, v0, 3, 1")
    k("v_lshlrev_b32 v7, 4, v4")
    k("v_lshl_add_u32 v7, v5, 3, v7")
    k("v_lshl_add_u32 v7, v6, 2, v7")
    k("v_add_u32 v7, v7, v3")
    k("v_lshlrev_b32 v7, 1, v7")
    k("buffer_load_ushort v19, v7, %s, s41 offen" % srd(AUX2))
    k("v_lshlrev_b32 v10, 9, v2")
    k("v_bfe_u32 v8, v0, 2, 2")
    k("v_lshl_add_u32 v10, v8, 6, v10")
    k("v_lshl_add_u32 v10, v4, 5, v10")
    k("v_and_b32 v8, 1, v0")
    k("v_lshl_add_u32 v10, v8, 4, v10")
    k("v_bfe_u32 v8, v0, 1, 1")
    k("v_lshl_add_u32 v10, v8, 3, v10")
    k("v_add_u32 v10, s42, v10")
    k("v_lshlrev_b32 v11, 4, v0")
    k("v_mov_b32 v12, v11")
    k("s_lshr_b32 s43, s%d, 1" % sT)
    k("s_and_b32 s44, s%d, 1" % sT)
    k("s_sub_u32 s45, s%d, 32" % sT)
    k("s_cmp_lt_u32 s%d, 32" % sT)
    k("s_cselect_b32 s43, s43, s45")
    k("s_cselect_b32 s44, s44, 2")
    k("s_mul_i32 s43, s43, %d" % LW1)
    k("s_add_u32 s43, s43, 0x%x" % W1P)
    k("s_mul_i32 s46, s44, 40960")
    k("s_add_u32 s46, s46, s43")
    k("s_add_u32 s46, s46, %d" % T0_OFF)
    k("s_lshl_b32 s47, s44, 10")
    k("s_add_u32 s47, s47, s43")
    k("s_add_u32 s47, s47, %d" % (EX_OFF + 1024))
    k("s_mov_b32 s48, 1024")
    full = k.label("full")
    k("s_cmp_lt_u32 s%d, 48" % sT)
    k.settle()
    k("s_cbranch_scc1 " + full)
    k("s_sub_u32 s45, s%d, 48" % sT)
    k("s_lshl_b32 s45, s45, 2")
    k("v_lshl_add_u32 v13, v4, 1, v5")
    k("v_add_u32 v13, s45, v13")
    k("v_mul_u32_u24 v14, 43, v13")
    k("v_lshrrev_b32 v14, 7, v14")
    k("v_mul_u32_u24 v15, 3, v14")
    k("v_sub_u32 v13, v13, v15")
    k("v_lshrrev_b32 v15, 1, v13")
    k("v_lshl_add_u32 v14, v14, 1, v15")
    k("v_and_b32 v13, 1, v13")
    k("s_mov_b32 s45, %d" % LW1)
    k("v_mul_lo_u32 v14, v14, s45")
    k("v_lshlrev_b32 v15, 3, v6")
    k("v_lshl_add_u32 v15, v13, 2, v15")
    k("v_add_u32 v15, v15, v3")
    k("v_lshl_add_u32 v14, v15, 4, v14")
    k("v_mul_u32_u24 v15, 272, v2")
    k("v_add_u32 v11, v14, v15")
    k("v_lshl_add_u32 v12, v2, 9, v14")
    k("s_mov_b32 s46, 0x%x" % (W1P + T3_OFF))
    k("s_mov_b32 s47, 0x%x" % (W1P + EX_OFF))
    k("s_mov_b32 s48, %d" % T3_STEP)
    k.settle()
    k(full + ":")
    k("s_mul_i32 s45, s48, s3")
    k("s_mul_i32 s45, s45, 10")
    k("s_add_u32 s46, s46, s45")
    k("v_mov_b32 v16, 0")
    k("s_mov_b32 s49, 0x%x" % ONES)
    G = 20
    for n in range(10):
        k.wait(vm="raw%d" % n)
        for h in range(2):
            k("ds_read_b64_tr_b16 %s, v10 offset:%d" % (v(G+4*n+2*h, 2), n*1024 + h*256))
    for n in range(10):
        if n: k("s_add_u32 s46, s46, s48")
        k("buffer_store_dwordx4 %s, v11, %s, s46 offen sc1" % (v(G+4*n, 4), srd(WS)))
        for jj in range(4):
            k("v_dot2c_f32_bf16 v16, s49, v%d" % (G+4*n+jj))
    xsum(k, [16], 18, [5])
    k("v_and_b32 v8, 31, v0")
    k("v_lshlrev_b32 v8, 2, v8")
    k("s_lshl_b32 s45, s3, 7")
    k("v_add_u32 v9, s45, v8")
    k("ds_write_b32 v9, v16 offset:40960", tag="cs")
    noones = k.label("noones")
    k("s_sub_u32 s45, s%d, 32" % sT)
    k("s_cmp_lt_u32 s45, 16")
    k.settle()
    k("s_cbranch_scc0 " + noones)
    k("v_lshrrev_b32 v13, 1, v0")
    k("v_mul_u32_u24 v13, %d, v13" % T3_STEP)
    k("v_and_b32 v14, 1, v0")
    k("v_mul_u32_u24 v14, 272, v14")
    k("v_add_u32 v13, v13, v14")
    k("s_mul_i32 s45, s3, %d" % (10*T3_STEP))
    k("s_add_u32 s45, s45, s43")
    k("s_add_u32 s45, s45, %d" % (T3_OFF + 256))
    for r in range(4): k("v_mov_b32 v%d, s49" % (64+r))
    k("s_mov_b64 exec, 0xfffff")
    k("buffer_store_dwordx4 v[64:67], v13, %s, s45 offen sc1" % srd(WS))
    k("s_mov_b64 exec, -1")
    k.settle()
    k(noones + ":")
    k("s_waitcnt lgkmcnt(0)")
    k("s_barrier")
    done = k.label("done")
    k("s_cmp_eq_u32 s3, 0")
    k("s_cbranch_scc0 " + done)
    for r in range(4):
        k("ds_read_b32 v%d, v8 offset:%d" % (60+r, 40960 + r*128))
    k("v_add_f32 v60, v60, v61"); k("v_add_f32 v62, v62, v63"); k("v_add_f32 v60, v60, v62")
    k("v_cvt_pk_bf16_f32 v61, v60, v60")
    k("v_lshlrev_b32 v62, 16, v61")
    k("v_sub_f32 v62, v60, v62")
    k("v_lshlrev_b32 v63, 16, v19")
    k("v_cvt_pk_bf16_f32 v68, v60, v62")
    k("v_cvt_pk_bf16_f32 v69, v60, v63")
    k("v_mov_b32 v70, v19")
    k("v_mov_b32 v71, 0")
    k("v_cmp_gt_u32 vcc, 32, v0")
    for r in range(3):
        k("v_cndmask_b32 v%d, 0, v%d, vcc" % (68+r, 68+r))
    k("buffer_store_dwordx4 v[68:71], v12, %s, s47 offen sc1" % srd(WS))
    k.settle()
    k(done + ":")

def pw2(k, sT):
    k.comment("w2 row block -> fragment images for both layers")
    k.srd(AUX, pW2, D*F*2)
    k("v_lshlrev_b32 v1, 4, v0")
    k("s_mul_i32 s40, s%d, 40960" % sT)
    k("s_mul_i32 s42, s3, 10240")
    k("s_add_u32 s40, s40, s42")
    for n in range(10):
        k("s_add_u32 m0, s42, %d" % (n*1024))
        if n: k("s_add_u32 s40, s40, 1024")
        else: k("s_nop 0")
        k("buffer_load_dwordx4 v1, %s, s40 offen lds" % srd(AUX), tag="raw")
    k("v_lshrrev_b32 v2, 4, v0")
    k("v_and_b32 v3, 3, v0")
    k("v_bfe_u32 v4, v0, 2, 2")
    k("v_mul_u32_u24 v10, 1280, v4")
    k("v_mul_u32_u24 v5, 160, v2")
    k("v_add3_u32 v10, v10, v5, s42")
    k("v_lshl_add_u32 v10, v3, 3, v10")
    k("s_mov_b32 s43, %d" % LW2)
    k("s_lshl_b32 s44, s3, 8")
    k("v_bfe_u32 v6, v0, 3, 1")
    k("v_and_b32 v7, 7, v0")
    k("v_mul_lo_u32 v7, v7, s43")
    k("v_add_u32 v7, s44, v7")
    k("v_lshl_add_u32 v7, v2, 4, v7")
    k("v_lshl_add_u32 v11, v6, 6, v7")
    k("v_lshl_add_u32 v12, v6, 7, v7")
    k("v_add_u32 v12, 4096, v12")
    k("v_mul_lo_u32 v8, v2, s43")
    k("v_add_u32 v8, s44, v8")
    k("v_bfe_u32 v5, v0, 2, 1")
    k("v_lshl_add_u32 v13, v5, 10, v8")
    k("v_lshl_add_u32 v13, v6, 6, v13")
    k("v_lshl_add_u32 v13, v3, 4, v13")
    k("v_and_b32 v5, 15, v0")
    k("v_lshl_add_u32 v14, v5, 4, v8")
    k("v_add_u32 v14, 4096, v14")
    k("s_mul_i32 s45, s%d, 5120" % sT)
    k("s_add_u32 s46, s45, 0x%x" % W2P[0])
    k("s_add_u32 s47, s45, 0x%x" % W2P[1])
    k("s_add_u32 s48, s45, 0x%x" % (W2P[1] + 4*LW2))
    G = 20
    k.wait(vm="raw")
    for jh in range(2):
        for n in range(5):
            for h in range(2):
                k("ds_read_b64_tr_b16 %s, v10 offset:%d" % (v(G+20*jh+4*n+2*h, 2), h*5120 + jh*640 + n*32))
    for jh in range(2):
        for n in range(5):
            r = v(G+20*jh+4*n, 4)
            if n < 4: k("buffer_store_dwordx4 %s, v11, %s, s46 offen offset:%d sc1" % (r, srd(WS), (2*(n >> 1) + jh)*1024 + (n & 1)*128))
            else: k("buffer_store_dwordx4 %s, v12, %s, s46 offen offset:%d sc1" % (r, srd(WS), jh*64))
    for jh in range(2):
        for n in range(5):
            r = v(G+20*jh+4*n, 4)
            if n < 4: k("buffer_store_dwordx4 %s, v13, %s, s%d offen offset:%d sc1" % (r, srd(WS), 47+jh, (n >> 1)*2048 + (n & 1)*128))
            else: k("buffer_store_dwordx4 %s, v14, %s, s%d offen sc1" % (r, srd(WS), 47+jh))

def pmisc(k, sT):
    k.comment("clear counters and accumulators, lay out b2")
    k("s_lshl_b32 s40, s3, 6")
    k("v_add_u32 v1, s40, v0")
    k("v_lshlrev_b32 v2, 4, v1")
    for r in range(4): k("v_mov_b32 v%d, 0" % (4+r))
    k("s_lshl_b32 s41, s%d, 12" % sT)
    k("s_add_u32 s42, s41, 0x%x" % CNT)
    k("buffer_store_dwordx4 v[4:7], v2, %s, s42 offen sc1" % srd(WS))
    k("s_add_u32 s42, s41, 0x%x" % ST[1])
    k("s_cmp_lt_u32 s%d, 4" % sT)
    k("s_cselect_b32 s42, s42, 0x%x" % OOB)
    k("buffer_store_dwordx4 v[4:7], v2, %s, s42 offen sc1" % srd(WS))
    done = k.label("done")
    k("s_cmp_eq_u32 s%d, 4" % sT)
    k.settle()
    k("s_cbranch_scc0 " + done)
    k.srd(AUX, pB2, D*2)
    k("s_mov_b32 s43, 0x%x" % B2P)
    for n in range(5):
        k("v_add_u32 v8, %d, v1" % (256*n))
        k("v_mul_u32_u24 v9, 3277, v8")
        k("v_lshrrev_b32 v9, 16, v9")
        k("v_mul_u32_u24 v10, 20, v9")
        k("v_sub_u32 v10, v8, v10")
        k("v_and_b32 v11, 3, v9")
        k("v_bfe_u32 v12, v9, 2, 3")
        k("v_lshrrev_b32 v13, 3, v10")
        k("v_lshl_add_u32 v13, v13, 2, v11")
        k("v_and_b32 v14, 7, v10")
        k("v_lshrrev_b32 v15, 1, v11")
        k("v_add_u32 v15, 8, v15")
        k("v_and_b32 v16, 1, v11")
        k("v_and_b32 v17, 3, v10")
        k("v_lshl_add_u32 v16, v16, 2, v17")
        k("v_cmp_gt_u32 vcc, 16, v10")
        k("v_cndmask_b32 v13, v15, v13, vcc")
        k("v_cndmask_b32 v14, v16, v14, vcc")
        k("v_cmp_gt_u32 vcc, 32, v9")
        k("v_cndmask_b32 v15, v14, v12, vcc")
        k("v_cndmask_b32 v16, v12, v14, vcc")
        k("v_mul_u32_u24 v16, 80, v16")
        k("v_lshl_add_u32 v16, v13, 3, v16")
        k("v_add_lshl_u32 v16, v16, v15, 1")
        k("buffer_load_ushort v18, v16, %s, 0 offen" % srd(AUX))
        k("v_lshlrev_b32 v8, 2, v8")
        k("v_lshlrev_b32 v18, 16, v18")
        k("buffer_store_dword v18, v8, %s, s43 offen sc1" % srd(WS))
    k.settle()
    k(done + ":")

def p0_dispatch(k, lend):
    l1, l2, l3 = k.label("w1"), k.label("w2"), k.label("misc")
    k.settle()
    st = k.fork()
    k("s_cmp_lt_u32 s2, 128"); k("s_cbranch_scc0 " + l1)
    px(k, 2); k.settle(); k("s_branch " + lend)
    k.restore(st); k(l1 + ":")
    k("s_sub_u32 s38, s2, 128"); k("s_cmp_lt_u32 s38, 54"); k("s_cbranch_scc0 " + l2)
    pw1(k, 38); k.settle(); k("s_branch " + lend)
    k.restore(st); k(l2 + ":")
    k("s_sub_u32 s38, s2, 182"); k("s_cmp_lt_u32 s38, 54"); k("s_cbranch_scc0 " + l3)
    pw2(k, 38); k.settle(); k("s_branch " + lend)
    k.restore(st); k(l3 + ":")
    k("s_sub_u32 s38, s2, 236")
    pmisc(k, 38); k.settle()
```

```python
import numpy as np

def bf16_bits(x):
    x = np.ascontiguousarray(x, dtype=np.float32)
    u = x.view(np.uint32).astype(np.uint64)
    return ((u + 0x7FFF + ((u >> 16) & 1)) >> 16).astype(np.uint16)

def cs(num, den):
    ang = 2*np.pi*(num % den)/den
    c, s = np.cos(ang), np.sin(ang)
    return (0.0 if abs(c) < 1e-12 else c), (0.0 if abs(s) < 1e-12 else s)

def n1_of_pos(pos):
    return ((pos & 7) << 1) | (pos >> 3)

def m80():
    def frag(ot, part):
        ns = 8 if part < 2 else 4
        t = np.zeros((64, ns))
        for lane in range(64):
            n, q = lane & 15, lane >> 4
            k1, ri = 8*ot + (n >> 1), n & 1
            for jj in range(ns):
                if part < 2: i, j = 4*part + q, jj
                else: i, j = 8 + (q >> 1), 4*(q & 1) + jj
                d1 = i + 10*j
                if k1 == 0: val = 1.0 if ri == 0 else (-1.0)**d1
                else:
                    c, s = cs(d1*k1, 80); val = c if ri == 0 else -s
                t[lane, jj] = val
        return t
    out = [frag(ot, part) for ot in range(5) for part in range(2)]
    out.append(np.concatenate([frag(0, 2), frag(1, 2)], 1))
    out.append(np.concatenate([frag(2, 2), frag(3, 2)], 1))
    out.append(np.concatenate([frag(4, 2), np.zeros((64, 4))], 1))
    return b"".join(bf16_bits(t).tobytes() for t in out)

def f0():
    t = np.zeros((41, 4, 2, 8, 8))
    for g in range(41):
        for v in range(4):
            for dh in range(2):
                for c in range(8):
                    for j in range(8):
                        h, rho = j >> 2, j & 3
                        d2, ri = 4*dh + 2*(rho >> 1) + h, rho & 1
                        co, si = cs(d2*(g + 80*c) + 160*v, 640)
                        al, be = co, -si
                        if g == 0: val = al if (ri == 0 and c != 0) else 0.0
                        elif g == 40: val = al if ri == 1 else 0.0
                        else: val = al if ri == 0 else -be
                        t[g, v, dh, c, j] = val
    return bf16_bits(t).tobytes()

def fa():
    t = np.zeros((4, 2, 64, 8))
    for r in range(4):
        for lane in range(64):
            p, q = lane & 15, lane >> 4
            for j in range(8):
                n1, ri = n1_of_pos(4*q + (j >> 1)), j & 1
                co, si = cs(n1*(4*p + r), 64)
                al, be = co, -si
                t[r, 0, lane, j] = al if ri == 0 else -be
                t[r, 1, lane, j] = be if ri == 0 else al
    return bf16_bits(t).tobytes()

def tw():
    t = np.zeros((4, 32, 16, 2), np.float32)
    for r in range(4):
        for n2 in range(32):
            for p in range(16):
                co, si = cs(n2*(4*p + r), 2048)
                t[r, n2, p] = (co, -si)
    return t.tobytes()

def fb():
    t = np.zeros((2, 2, 64, 8))
    for ks in range(2):
        for sh in range(2):
            for lane in range(64):
                n, q = lane & 15, lane >> 4
                kg = 4*ks + q
                for j in range(8):
                    n2 = 8*(kg >> 1) + 2*(j >> 1) + (kg & 1)
                    co, si = cs(n2*(16*sh + n), 32)
                    t[ks, sh, lane, j] = co if (j & 1) == 0 else si
    return bf16_bits(t).tobytes()

def build():
    parts = [("M80", m80()), ("FA", fa()), ("FB", fb()), ("TW", tw()), ("F0", f0())]
    off, blob = {}, b""
    for n, b in parts:
        off[n] = len(blob); blob += b
    off["END"] = len(blob)
    q = np.frombuffer(blob, dtype="<u8")
    lines = [".p2align 8", ".type dft_tables,@object", "dft_tables:"]
    for i in range(0, len(q), 8):
        lines.append(".quad " + ",".join("0x%x" % v for v in q[i:i+8]))
    lines.append(".size dft_tables, %d" % len(blob))
    return off, "\n".join(lines) + "\n"

if __name__ == "__main__":
    off, txt = build(); print(off, len(txt))
```

```python
import sys
from common import *
import p0, cph, ff
HEADER = "; work in progress\n"
def k_p0():
    k = Kern("p0_kernel", 256, 256, lds=49152, vgpr=256)
    prologue(k)
    p0.p0_dispatch(k, "L_p0_kernel_end")
    finish(k)
    return k
def k_c(layer):
    k = Kern("c%d_kernel" % layer, 256, 256, lds=LDS_BYTES, vgpr=256)
    prologue(k)
    cph.role(k, "L_%s_end" % k.name)
    cph.offsets(k, layer)
    cph.pre(k)
    cph.main(k)
    finish(k)
    return k
def k_ff(layer):
    k = Kern("ff%d_kernel" % layer, 256, 256, lds=LDS_BYTES, vgpr=256, agpr=256)
    prologue(k)
    ff.roles(k)
    ff.pre(k, layer)
    for l in ff.w1_dma(k, 0, 17, "w1a"): l()
    ff.x_loads(k)
    k.wait(vm="w1a")
    k("s_barrier")
    for l in ff.w1_dma(k, 17, 37, "w1b"): l()
    ff.g1(k, layer, "w1b")
    ff.g2(k, layer)
    finish(k)
    return k
if __name__ == "__main__":
    ks = [k_p0(), k_c(0), k_ff(0), k_c(1), k_ff(1)]
    open(sys.argv[1], "w").write(assemble(HEADER, ks, ks, TABTXT))
    for k in ks: print(k.name, k.count, "nops", k.nops)
```

```python
from common import *

sG, sR = 50, 51
vO = [2, 3, 8, 9]
vXW = 4
vTR, vRSR, vRSW, vXR, vDMA, vST = 10, 11, 12, 13, 14, 15
VA, RES, F0R, FAR, TWR, FBR, RSB, AFB, DB = 16, 48, 64, 96, 104, 112, 128, 160, 192

def role(k, lskip):
    k("s_lshr_b32 s50, s5, 2")
    k("s_lshl_b32 s50, s50, 3")
    k("s_add_u32 s50, s50, s4")
    k("s_and_b32 s51, s5, 3")
    k("s_cmp_gt_u32 s50, 40")
    k("s_cbranch_scc1 " + lskip)

def role_flag(k):
    k("s_lshr_b32 s50, s5, 2")
    k("s_lshl_b32 s50, s50, 3")
    k("s_add_u32 s50, s50, s4")
    k("s_and_b32 s51, s5, 3")
    k("s_cmp_le_u32 s50, 40")
    k("s_cselect_b32 s68, 1, 0")

def row_off(k, vd, vk, t):
    k("v_lshrrev_b32 v%d, 9, v%d" % (t, vk))
    k("v_bfe_u32 v%d, v%d, 1, 4" % (vd, vk))
    k("v_lshl_add_u32 v%d, v%d, 4, v%d" % (vd, t, vd))
    k("v_mul_u32_u24 v%d, 40960, v%d" % (vd, vd))
    k("v_and_b32 v%d, 1, v%d" % (t, vk))
    k("v_lshl_add_u32 v%d, v%d, 8, v%d" % (vd, t, vd))
    k("v_bfe_u32 v%d, v%d, 5, 1" % (t, vk))
    k("v_lshl_add_u32 v%d, v%d, 7, v%d" % (vd, t, vd))
    k("v_bfe_u32 v%d, v%d, 6, 3" % (t, vk))
    k("v_lshl_add_u32 v%d, v%d, 4, v%d" % (vd, t, vd))

def pre(k):
    k.comment("column phase: constants and addresses")
    for r in range(32): k("v_mov_b32 v%d, 0" % (F0R+r))
    k("v_lshrrev_b32 v16, 5, v0")
    k("v_and_b32 v17, 7, v0")
    k("v_lshlrev_b32 v16, 7, v16")
    k("v_lshl_add_u32 v16, v17, 4, v16")
    k("v_mov_b32 v17, 0")
    k("s_lshl_b32 s52, s50, 10")
    k("s_add_u32 s52, s52, %d" % TAB["F0"])
    k("s_add_u32 s56, s6, s52")
    k("s_addc_u32 s57, s7, 0")
    for aa in range(4):
        for ri in range(2):
            k("s_mul_i32 s53, s51, %d" % aa)
            k("s_add_u32 s53, s53, %d" % ri)
            k("s_and_b32 s53, s53, 3")
            k("s_lshl_b32 s53, s53, 8")
            k("s_add_u32 s54, s56, s53")
            k("s_addc_u32 s55, s57, 0")
            k("v_lshl_add_u64 %s, v[16:17], 0, s[54:55]" % v(18+4*aa+2*ri, 2))
    k("s_mov_b32 exec_lo, 0xff0000ff")
    k("s_mov_b32 exec_hi, 0xff0000ff")
    for n in range(8):
        k("global_load_dwordx4 %s, %s, off" % (v(F0R+4*n, 4), v(18+2*n, 2)))
    k("s_mov_b64 exec, -1")
    k("v_lshlrev_b32 v%d, 4, v0" % vST)
    k("s_lshl_b32 s52, s51, 11")
    k("v_add_u32 v34, s52, v%d" % vST)
    tab_addr(k, 36, 34, TAB["FA"])
    for ri in range(2):
        k("global_load_dwordx4 %s, v[36:37], off offset:%d" % (v(FAR+4*ri, 4), ri*1024))
    k("s_lshl_b32 s52, s51, 2")
    k("s_add_u32 s52, s52, s3")
    k("s_lshl_b32 s52, s52, 10")
    k("v_lshrrev_b32 v34, 5, v0")
    k("v_and_b32 v35, 15, v0")
    k("v_lshl_add_u32 v34, v34, 4, v35")
    k("v_lshl_add_u32 v34, v34, 3, s52")
    tab_addr(k, 38, 34, TAB["TW"])
    for p in range(4):
        k("global_load_dwordx2 %s, v[38:39], off offset:%d" % (v(TWR+2*p, 2), p*256))
    tab_addr(k, 40, vST, TAB["FB"])
    for n in range(4):
        k("global_load_dwordx4 %s, v[40:41], off offset:%d" % (v(FBR+4*n, 4), n*1024))
    k("s_mul_i32 s58, s3, 18432")
    k("s_add_u32 s58, s58, %d" % L_CU)
    k("s_lshl_b32 s59, s3, 11")
    k("s_add_u32 s59, s59, %d" % L_CRS)
    k("v_lshrrev_b32 v42, 4, v0")
    k("v_lshrrev_b32 v43, 5, v0")
    k("v_bfe_u32 v44, v0, 4, 1")
    k("v_bfe_u32 v45, v0, 3, 1")
    k("v_bfe_u32 v46, v0, 2, 1")
    k("v_and_b32 v47, 3, v0")
    k("v_lshl_add_u32 v1, v43, 1, v45")
    k("v_mul_u32_u24 v1, 1152, v1")
    k("v_lshl_add_u32 v1, v44, 6, v1")
    k("v_lshl_add_u32 v1, v46, 5, v1")
    k("v_lshl_add_u32 v1, v47, 3, v1")
    k("v_add_u32 v%d, s58, v1" % vTR)
    k("v_lshlrev_b32 v1, 6, v45")
    k("v_lshl_add_u32 v1, v42, 4, v1")
    k("v_add_u32 v%d, s59, v1" % vRSR)
    k("v_lshl_add_u32 v%d, v0, 3, s59" % vRSW)
    k("v_and_b32 v1, 31, v0")
    k("v_lshlrev_b32 v1, 4, v1")
    k("v_lshl_add_u32 v%d, v43, 13, v1" % vDMA)
    k("v_lshlrev_b32 v1, 11, v44")
    k("v_bfe_u32 v34, v0, 2, 2")
    k("v_lshl_add_u32 v1, v34, 9, v1")
    k("v_lshl_add_u32 v1, v43, 8, v1")
    k("v_lshl_add_u32 v1, v47, 6, v1")
    k("v_add_u32 v1, s58, v1")
    k("v_bfe_u32 v35, v0, 1, 2")
    for r in range(4):
        k("v_xor_b32 v36, %d, v35" % r)
        k("v_lshl_add_u32 v%d, v36, 4, v1" % (vXW+r))
    k("v_mul_u32_u24 v1, 18432, v43")
    k("v_lshl_add_u32 v1, v44, 8, v1")
    k("v_lshl_add_u32 v1, v34, 6, v1")
    k("s_lshl_b32 s52, s3, 1")
    k("v_add_u32 v36, s52, v45")
    k("v_and_b32 v36, 3, v36")
    k("v_xor_b32 v36, v36, v47")
    k("v_lshl_add_u32 v1, v36, 4, v1")
    k("s_lshl_b32 s52, s3, 9")
    k("s_add_u32 s52, s52, %d" % L_CU)
    k("v_add_u32 v%d, s52, v1" % vXR)
    k("s_lshl_b32 s52, s3, 4")
    k("s_add_u32 s52, s52, s51")
    k("v_and_b32 v34, 15, v0")
    k("v_lshlrev_b32 v34, 6, v34")
    k("v_lshl_add_u32 v34, v42, 2, v34")
    k("v_add_u32 v34, s52, v34")
    row_off(k, vO[0], 34, 1)
    k("v_add_u32 v%d, %d, v%d" % (vO[1], 32*40960, vO[0]))
    k("v_sub_u32 v35, 2048, v34")
    k("v_and_b32 v35, 2047, v35")
    row_off(k, vO[2], 35, 1)
    k("v_sub_u32 v35, 1024, v34")
    k("v_and_b32 v35, 2047, v35")
    row_off(k, vO[3], 35, 1)

def offsets(k, layer):
    k("s_lshl_b32 s60, s3, 10")
    k("s_add_u32 s60, s60, 0x%x" % ST[layer])
    k("s_cmp_eq_u32 s50, 40")
    k("s_cselect_b32 s61, 0, s50")
    k("s_lshl_b32 s62, s61, 16")
    k("s_lshl_b32 s63, s3, 9")
    k("s_add_u32 s62, s62, s63")
    k("s_add_u32 s62, s62, 0x%x" % U[layer])
    k("s_lshl_b32 s63, s50, 9")
    k("s_add_u32 s64, s63, 0x%x" % XG[2*layer])
    k("s_add_u32 s66, s63, 0x%x" % XG[2*layer+1])
    k("s_sub_u32 s65, 0x%x, s63" % (XG[2*layer] + 80*512))
    k("s_sub_u32 s67, 0x%x, s63" % (XG[2*layer+1] + 80*512))
    k("s_cmp_eq_u32 s61, 0")
    k("s_cselect_b32 s65, 0x%x, s65" % OOB)
    k("s_cselect_b32 s67, 0x%x, s67" % OOB)

def main(k, late=()):
    late = list(late)
    def drip(n=1):
        for _ in range(n):
            if late: late.pop(0)()
    for aa in range(4):
        if aa: k("s_add_u32 s60, s60, 4096")
        k("buffer_load_dwordx4 %s, v%d, %s, s60 offen sc1" % (v(RSB+4*aa, 4), vST, srd(WS)))
    for aa in range(4):
        for dp in range(4):
            k("s_add_u32 m0, s58, %d" % ((4*aa + dp)*1152))
            k("s_add_u32 s63, s62, %d" % (dp*16384 + aa*2048))
            k("buffer_load_dwordx4 v%d, %s, s63 offen sc1 lds" % (vDMA, srd(WS)), tag="u%d" % aa)
    for n in range(4):
        k("buffer_load_dwordx4 %s, v%d, %s, s%d offen sc1" % (v(RES+4*n, 4), vO[n], srd(WS), 64 + (n >> 1)))
    c = f2u(1.0/D)
    for aa in range(4):
        b = RSB + 4*aa
        for e in range(2):
            k("v_mul_f32 v%d, 0x%x, v%d" % (b+2*e, c, b+2*e))
            k("v_mul_f32 v%d, 0x%x, v%d" % (b+2*e+1, c, b+2*e+1))
        for e in range(2):
            k("v_fma_f32 v%d, -v%d, v%d, v%d" % (b+2*e+1, b+2*e, b+2*e, b+2*e+1))
        for e in range(2):
            k("v_max_f32 v%d, 0, v%d" % (b+2*e+1, b+2*e+1))
        for e in range(2):
            k("v_add_f32 v%d, 0x%x, v%d" % (b+2*e+1, f2u(1e-5), b+2*e+1))
        for e in range(2):
            k("v_rsq_f32 v%d, v%d" % (b+e, b+2*e+1))
        k("ds_write_b64 v%d, %s offset:%d" % (vRSW, v(b, 2), aa*512))
    def reads(aa):
        out = []
        for p in range(4):
            for h in range(2):
                out.append("ds_read_b64_tr_b16 %s, v%d offset:%d" % (v(AFB+16*(aa & 1)+4*p+2*h, 2), vTR, aa*4608 + h*512 + p*128))
        for p in range(4):
            out.append("ds_read_b128 %s, v%d offset:%d" % (v(RSB+16*(aa & 1)+4*p, 4), vRSR, aa*512 + p*128))
        return out
    def mfmas(aa):
        return ["v_mfma_f32_16x16x32_bf16 %s, %s, %s, 0" % (v(DB+32*(aa & 1)+8*p+4*ri, 4), v(AFB+16*(aa & 1)+4*p, 4), v(F0R+8*aa+4*ri, 4))
                for p in range(4) for ri in range(2)]
    def fmas(aa):
        op = "v_mul_f32" if aa == 0 else "v_fmac_f32"
        return ["%s v%d, v%d, v%d" % (op, VA+8*p+e, DB+32*(aa & 1)+8*p+e, RSB+16*(aa & 1)+4*p+(e & 3))
                for p in range(4) for e in range(8)]
    k.wait(vm="u0")
    k.stamp("c_u0")
    for l in reads(0): k(l)
    for aa in range(4):
        fill = fmas(aa-1) if aa else []
        m = mfmas(aa)
        if aa == 0:
            for l in m: k(l)
        else:
            rest = interleave(k, m, fill, 4)
            for l in rest: k(l)
        if aa < 3:
            k.wait(vm="u%d" % (aa+1))
            for l in reads(aa+1): k(l)
    fm = fmas(3)
    for p in range(4):
        for l in fm[8*p:8*p+8]: k(l)
        for r in range(4):
            k("v_cvt_pk_bf16_f32 v%d, v%d, v%d" % (AFB+4*p+r, VA+8*p+r, VA+8*p+4+r))
        drip(2)
        for ri in range(2):
            k("v_mfma_f32_16x16x32_bf16 %s, %s, %s, 0" % (v(DB+8*p+4*ri, 4), v(AFB+4*p, 4), v(FAR+4*ri, 4)))
    for p in range(4):
        c_, s_ = TWR+2*p, TWR+2*p+1
        for r in range(4):
            k("v_mul_f32 v%d, v%d, v%d" % (RSB+8*p+2*r, DB+8*p+r, c_))
            k("v_mul_f32 v%d, v%d, v%d" % (RSB+8*p+2*r+1, DB+8*p+r, s_))
            if r & 1: drip()
        for r in range(4):
            k("v_fma_f32 v%d, -v%d, v%d, v%d" % (RSB+8*p+2*r, DB+8*p+4+r, s_, RSB+8*p+2*r))
            k("v_fmac_f32 v%d, v%d, v%d" % (RSB+8*p+2*r+1, DB+8*p+4+r, c_))
            if r & 1: drip()
        for r in range(4):
            k("v_cvt_pk_bf16_f32 v%d, v%d, v%d" % (VA+4*r+p, RSB+8*p+2*r, RSB+8*p+2*r+1))
    for r in range(4):
        k("ds_write_b128 v%d, %s" % (vXW+r, v(VA+4*r, 4)), tag="xw")
    for n in range(4):
        for jj in range(4):
            lo, hi = (2*jj, 2*jj+1) if n < 2 else (7-2*jj, 6-2*jj)
            k("v_lshlrev_b32 v%d, 16, v%d" % (F0R+8*n+lo, RES+4*n+jj))
            k("v_and_b32 v%d, 0xffff0000, v%d" % (F0R+8*n+hi, RES+4*n+jj))
    drip(len(late))
    k.wait(lg="xw")
    k("s_barrier")
    for ch in range(2):
        for ks in range(2):
            k("ds_read_b128 %s, v%d offset:%d" % (v(AFB+8*ch+4*ks, 4), vXR, ks*36864 + ch*2048), tag="xr")
    for ks in range(2):
        for n in range(4):
            for ch in range(2):
                d = v(DB+8*n+4*ch, 4)
                k("v_mfma_f32_16x16x32_bf16 %s, %s, %s, %s" % (d, v(AFB+8*ch+4*ks, 4), v(FBR+8*ks+4*(n & 1), 4), v(F0R+8*n+4*ch, 4) if ks == 0 else d))
    for n in range(4):
        for jj in range(4):
            lo, hi = (2*jj, 2*jj+1) if n < 2 else (7-2*jj, 6-2*jj)
            k("v_cvt_pk_bf16_f32 v%d, v%d, v%d" % (DB+32+4*n+jj, DB+8*n+lo, DB+8*n+hi))
        k("buffer_store_dwordx4 %s, v%d, %s, s%d offen sc1" % (v(DB+32+4*n, 4), vO[n], srd(WS), 66 + (n >> 1)), tag="cst")
```

```python
import re, struct

def f2u(x):
    return struct.unpack("<I", struct.pack("<f", x))[0]

_REG = re.compile(r"^(-?)\|?(v|a|s)(?:(\d+)|\[(\d+):(\d+)\])\|?$")

def regs_of(op):
    op = op.strip()
    if op.startswith("abs(") or op.startswith("-abs("):
        op = op[op.index("(")+1:-1]
    if op in ("vcc", "exec", "m0", "scc"):
        return [(op, 0)]
    if op in ("vcc_lo", "vcc_hi"):
        return [("vcc", 0)]
    if op in ("exec_lo", "exec_hi"):
        return [("exec", 0)]
    m = _REG.match(op)
    if not m:
        return []
    kind = m.group(2)
    if m.group(3) is not None:
        return [(kind, int(m.group(3)))]
    return [(kind, i) for i in range(int(m.group(4)), int(m.group(5))+1)]

TRANS = ("v_exp_f32", "v_log_f32", "v_rcp_f32", "v_rsq_f32", "v_sqrt_f32", "v_sin_f32", "v_cos_f32")
RMW = ("v_fmac_f32", "v_dot2c_f32_bf16", "v_writelane_b32", "v_pk_fmac_f16")

class Ins:
    def __init__(self, text):
        self.text = text
        parts = text.split(None, 1)
        self.op = parts[0]
        rest = parts[1] if len(parts) > 1 else ""
        head = re.split(r"\s(?=(?:quad_perm|op_sel|op_sel_hi|neg_lo|neg_hi):)", rest, 1)
        toks = [t.strip() for t in head[0].split(",")]
        ops = []
        self.mods = ""
        for n, t in enumerate(toks):
            if n == len(toks)-1 and " " in t:
                a, b = t.split(None, 1); ops.append(a); self.mods = b
            elif t:
                ops.append(t)
        if len(head) > 1: self.mods += " " + head[1]
        self.ops = ops
        op = self.op
        R = lambda xs: [r for o in xs for r in regs_of(o)]
        self.w, self.r, self.srcc, self.data = [], [], [], []
        self.passes = 0
        if op.startswith("v_mfma"):
            self.cls = "mfma"
            self.w = R(ops[:1]); self.r = R(ops[1:3]); self.srcc = R(ops[3:4])
            self.passes = 8 if "32x32" in op else (2 if "4x4x4" in op else 4)
        elif op.startswith("buffer_") or op.startswith("global_"):
            self.cls = "vmem"
            lds = "lds" in self.mods.split() or "_lds_" in op
            isbuf = op.startswith("buffer_")
            if "_load" in op:
                if lds: self.r = R(ops)
                else: self.w = R(ops[:1]); self.r = R(ops[1:])
            elif "_store" in op or "_atomic" in op:
                self.data = R(ops[:1]) if isbuf else R(ops[1:2])
                self.r = R(ops)
                if "_atomic" in op and "sc0" in self.mods.split():
                    self.w = R(ops[:1])
            if lds: self.r.append(("m0", 0))
        elif op.startswith("ds_"):
            self.cls = "ds"
            if "read" in op or "permute" in op or "swizzle" in op:
                self.w = R(ops[:1]); self.r = R(ops[1:])
            else:
                self.r = R(ops)
        elif op.startswith("s_load") or op in ("s_memtime", "s_memrealtime"):
            self.cls = "smem"; self.w = R(ops[:1]); self.r = R(ops[1:])
        elif op.startswith("v_"):
            self.cls = "valu"
            if op.startswith("v_permlane") and "swap" in op:
                self.w = R(ops[:2]); self.r = R(ops[:2])
            elif op.startswith("v_cmp"):
                self.w = R(ops[:1]); self.r = R(ops[1:])
            elif "_co_" in op:
                self.w = R(ops[:2]); self.r = R(ops[2:])
            else:
                self.w = R(ops[:1]); self.r = R(ops[1:])
                base = op.replace("_e32", "").replace("_e64", "")
                if base in RMW or "dpp" in op or "quad_perm" in self.mods or "row_" in self.mods:
                    self.r += self.w
        elif op.startswith("s_"):
            self.cls = "salu"
            if op.startswith("s_cmp") or op.startswith("s_cbranch") or op in ("s_branch", "s_barrier", "s_nop", "s_waitcnt", "s_endpgm", "s_sleep", "s_setprio"):
                self.r = R(ops)
            else:
                self.w = R(ops[:1]); self.r = R(ops[1:])
                if "saveexec" in op: self.w.append(("exec", 0))
        else:
            raise ValueError("unknown instruction: " + text)
        self.dpp = self.cls == "valu" and ("dpp" in op or "quad_perm" in self.mods or "row_" in self.mods)
        self.trans = op.replace("_e32", "").replace("_e64", "") in TRANS
        self.wide_store = self.cls == "vmem" and "_store" in op and ("x3" in op or "x4" in op)
        self.states = 1
        if op == "s_nop": self.states = int(ops[0], 0) + 1

def need_states(p, c):
    n = 0
    pw = set(p.w)
    isv = lambda rs: set(r for r in rs if r[0] in "va" and len(r[0]) == 1)
    iss = lambda rs: set(r for r in rs if r[0] in ("s", "vcc"))
    if p.cls == "valu":
        v = isv(pw); s = iss(pw)
        if c.cls == "mfma" and v & set(c.r + c.srcc): n = max(n, 2)
        if c.cls == "valu":
            if c.op.startswith("v_permlane") and v & set(c.r): n = max(n, 2)
            if c.dpp and v & set(c.r): n = max(n, 2)
            if c.op.startswith("v_readlane") or c.op.startswith("v_readfirstlane"):
                if v & set(c.r): n = max(n, 1)
                if s & set(c.r): n = max(n, 4)
            if p.trans and not c.trans and v & set(c.r): n = max(n, 1)
            if s & set(c.r): n = max(n, 2)
            if p.op.startswith("v_dot") and v & set(c.r + c.w):
                if p.op != c.op or v & set(regs_of(c.ops[1]) + regs_of(c.ops[2])): n = max(n, 3)
        if c.cls == "vmem" and s & set(c.r): n = max(n, 5)
        if c.cls == "salu" and s & set(c.r): n = max(n, 4)
        if c.cls in ("vmem", "ds", "mfma") and p.op.startswith("v_dot") and v & set(c.r + c.srcc): n = max(n, 3)
    if p.cls == "salu":
        if ("m0", 0) in pw and ("m0", 0) in c.r and c.cls == "vmem": n = max(n, 1)
    if p.cls == "mfma":
        far = {2: 5, 4: 8, 8: 12}[p.passes]
        if c.cls == "mfma":
            if pw & set(c.r): n = max(n, far)
            if pw & set(c.srcc):
                if not (c.passes == p.passes and c.srcc == p.w): n = max(n, max(far - 2, 4))
                elif p.passes == 2: n = max(n, 2)
            elif pw & set(c.w): n = max(n, far - 2)
        elif c.cls in ("valu", "vmem", "ds") and pw & set(c.r + c.w): n = max(n, far)
        if c.cls in ("valu", "vmem", "ds") and set(p.srcc) & set(c.w): n = max(n, p.passes - 1)
    if p.wide_store and set(p.data) & set(c.w): n = max(n, 2)
    return n

class Kern:
    def __init__(self, name, grid, block=256, lds=0, vgpr=256, agpr=0, sgpr=100):
        self.name, self.grid, self.block, self.lds = name, grid, block, lds
        self.vgpr, self.agpr, self.sgpr = vgpr, agpr, sgpr
        self.lines = []
        self.hist = []
        self.vmq, self.lgq = [], []
        self.nlab = 0
        self.nops = 0
        self.count = {}
    def raw(self, s):
        self.lines.append(s)
    def comment(self, s):
        self.lines.append("    ; " + s)
    def _put(self, ins):
        self.lines.append("    " + ins.text)
        self.hist.append(ins)
        if len(self.hist) > 24: self.hist.pop(0)
        self.count[ins.cls] = self.count.get(ins.cls, 0) + 1
    def _waitcnt(self, vm, lg):
        parts = []
        if vm is not None:
            vm = min(vm, 63); parts.append("vmcnt(%d)" % vm)
            self.vmq = self.vmq[len(self.vmq)-vm:] if vm else []
        if lg is not None:
            lg = min(lg, 15); parts.append("lgkmcnt(%d)" % lg)
            self.lgq = self.lgq[len(self.lgq)-lg:] if lg else []
        if parts:
            self._put(Ins("s_waitcnt " + " ".join(parts)))
    def _after(self, q, pred):
        for n in range(len(q)-1, -1, -1):
            if pred(q[n]): return len(q)-1-n
        return None
    def wait(self, vm=None, lg=None):
        a = b = None
        if vm == "all": a = 0 if self.vmq else None
        elif vm is not None: a = self._after(self.vmq, lambda e: e[0] == vm)
        if lg == "all": b = 0 if self.lgq else None
        elif lg is not None: b = self._after(self.lgq, lambda e: e[0] == lg)
        if b is not None and any(e[2] for e in self.lgq): b = 0
        self._waitcnt(a, b)
    def __call__(self, text, tag=None):
        for l in text.strip("\n").split("\n"):
            l = l.strip()
            if not l: continue
            if l.endswith(":"):
                self.lines.append(l); continue
            ins = Ins(l)
            touched = set(ins.r + ins.w + ins.srcc)
            a = self._after(self.vmq, lambda e: e[1] & touched)
            b = self._after(self.lgq, lambda e: e[1] & touched)
            if b is not None and any(e[2] for e in self.lgq): b = 0
            self._waitcnt(a, b)
            dist = 0; need = 0
            for p in reversed(self.hist):
                need = max(need, need_states(p, ins) - dist)
                dist += p.states
                if dist >= 20: break
            while need > 0:
                n = min(need, 16)
                self._put(Ins("s_nop %d" % (n-1))); self.nops += 1
                need -= n
            self._put(ins)
            if ins.cls == "vmem": self.vmq.append((tag, set(ins.w), False))
            elif ins.cls == "ds": self.lgq.append((tag, set(ins.w), False))
            elif ins.cls == "smem": self.lgq.append((tag, set(ins.w), True))
            if ins.op == "s_waitcnt":
                m = re.search(r"vmcnt\((\d+)\)", l)
                if m: n = int(m.group(1)); self.vmq = self.vmq[len(self.vmq)-n:] if n and n < len(self.vmq) else (self.vmq if n else [])
                m = re.search(r"lgkmcnt\((\d+)\)", l)
                if m: n = int(m.group(1)); self.lgq = self.lgq[len(self.lgq)-n:] if n and n < len(self.lgq) else (self.lgq if n else [])
    stamps_on = False
    def stamp(self, name):
        if not self.stamps_on: return
        if not hasattr(self, "stamp_names"): self.stamp_names = []
        n = len(self.stamp_names) if name not in self.stamp_names else self.stamp_names.index(name)
        if name not in self.stamp_names: self.stamp_names.append(name)
        self("s_memrealtime s[98:99]")
        self("s_waitcnt lgkmcnt(0)")
        self("s_mov_b32 s%d, s98" % self.stamp_regs[n])
    def stamp_val(self, name, sreg):
        if not self.stamps_on: return
        if name not in self.stamp_names: self.stamp_names.append(name)
        self("s_mov_b32 s%d, s%d" % (self.stamp_regs[self.stamp_names.index(name)], sreg))
    def flush_stamps(self, base, slot):
        if not self.stamps_on: return
        self("s_lshl_b32 s98, s2, 2")
        self("s_add_u32 s98, s98, s3")
        self("s_lshl_b32 s98, s98, 7")
        self("s_add_u32 s98, s98, 0x%x" % (base + slot*131072))
        for n in range(len(self.stamp_names)):
            self("v_mov_b32 v1, s%d" % self.stamp_regs[n])
            self("buffer_store_dword v1, off, s[8:11], s98 offset:%d" % (4*n))
            self("s_nop 1")
        self.stamp_log = getattr(self, "stamp_log", []) + [(slot, list(self.stamp_names))]
        self.stamp_names = []
    def label(self, base):
        self.nlab += 1
        return "L_%s_%s_%d" % (self.name[:4], base, self.nlab)
    def settle(self, vm=True):
        a = self._after(self.vmq, lambda e: e[1]) if vm else None
        b = self._after(self.lgq, lambda e: e[1])
        if b is not None and any(e[2] for e in self.lgq): b = 0
        self._waitcnt(a, b)
        dist = 0; need = 0
        for p in reversed(self.hist):
            far = {"mfma": 12 if p.passes == 8 else 8, "valu": 5}.get(p.cls, 2 if p.wide_store else 0)
            need = max(need, far - dist); dist += p.states
        if need > 0: self._put(Ins("s_nop %d" % (need-1)))
    def fork(self):
        return (list(self.vmq), list(self.lgq), list(self.hist))
    def restore(self, st):
        self.vmq, self.lgq, self.hist = list(st[0]), list(st[1]), list(st[2])
    def srd(self, s, base, nbytes):
        self("s_mov_b32 s%d, s%d" % (s, base))
        self("s_mov_b32 s%d, s%d" % (s+1, base+1))
        self("s_mov_b32 s%d, 0x%x" % (s+2, nbytes))
        self("s_mov_b32 s%d, 0x00020000" % (s+3))
    def text(self):
        acc = (self.vgpr + 3)//4*4
        nfv = acc + self.agpr if self.agpr else self.vgpr
        code = ".text\n.globl %s\n.p2align 8\n.type %s,@function\n%s:\n%s\n" % (self.name, self.name, self.name, "\n".join(self.lines))
        desc = (".amdhsa_kernel %s\n  .amdhsa_next_free_vgpr %d\n  .amdhsa_next_free_sgpr %d\n  .amdhsa_accum_offset %d\n"
                "  .amdhsa_group_segment_fixed_size 0\n  .amdhsa_kernarg_size 104\n  .amdhsa_user_sgpr_count 2\n"
                "  .amdhsa_user_sgpr_kernarg_segment_ptr 1\n  .amdhsa_system_sgpr_workgroup_id_x 1\n"
                "  .amdhsa_float_denorm_mode_32 3\n.end_amdhsa_kernel\n") % (self.name, nfv, self.sgpr, acc)
        return code, desc

NAME = "interleave_layers__spectral_fnet__dense_activation_squared_relu__prompt"
KA = dict(x=0, seq_re=8, seq_im=16, hid_re=24, hid_im=32, bx=40, w1=48, b1=56, w2=64, b2=72, out=80, dbg=88, ws=96)

def assemble(header, kerns, order, tables=""):
    out = [header]
    if len(order) == 1 and order[0].name == NAME + "_kernel":
        k = order[0]
        out.append("; @launch grid=(%d,1,1) block=(%d,1,1) lds=%d\n" % (k.grid, k.block, k.lds))
    else:
        for k in order:
            out.append("; @launch kernel=%s grid=(%d,1,1) block=(%d,1,1) lds=%d\n" % (k.name, k.grid, k.block, k.lds))
    out.append('.amdgcn_target "amdgcn-amd-amdhsa--gfx950"\n')
    descs = []
    for k in kerns:
        c, d = k.text(); out.append(c); descs.append(d)
    out.append(tables)
    out.append('.section .rodata,"a"\n')
    for d in descs:
        out.append(".p2align 6\n" + d)
    return "".join(out)

def interleave(k, main, fill, per_gap, start=0):
    def put(x):
        if callable(x): x()
        elif isinstance(x, tuple): k(x[0], tag=x[1])
        else: k(x)
    fill = list(fill)
    for n, m in enumerate(main):
        put(m)
        if n >= start:
            for _ in range(per_gap):
                if fill: put(fill.pop(0))
    return fill
```

```python
from common import *

sKP, sC, sRH, sCB = 70, 71, 72, 73
sXO, sW1O, sHS, sHS3 = 74, 75, 76, 77
sCNT, sCNTP = 78, 79
sHB = [80, 81, 82, 83]
sWB = [84, 85, 86, 87]
sT0, sT1, sT2 = 88, 89, 90
sSPIN = 91
vL, vA0, vA1, vA2, vX, vH3, vBQ, vSIG, vONE, vBS, vRW = 1, 2, 3, 4, 5, 6, 7, 8, 9, 10, 11
vHL = 12
SB, TMP = 16, 24
ACCP, ACCS, GR = 32, 80, 88
XBR = 96
RING, NRING = 208, 12
G2ACC, HR, RB, RT = 16, 96, 216, 236
SPIN_LIMIT = 100000
NS = 7
M80R = 40

P = dict(slp=0, map42=1, la=24, nx=3, epi=3, sigA=120, pollA=999, w2end=120, pollB=0, sigC=1, pollC=4, thr=8)

def roles(k):
    if P["map42"]:
        k("s_lshr_b32 s70, s4, 1")
        k("s_lshl_b32 s70, s70, 2")
        k("s_lshr_b32 s88, s5, 3")
        k("s_add_u32 s70, s70, s88")
        k("s_and_b32 s88, s4, 1")
        k("s_and_b32 s89, s5, 7")
        k("s_lshl_b32 s71, s88, 3")
        k("s_add_u32 s71, s71, s89")
        k("s_lshr_b32 s72, s89, 2")
        k("s_and_b32 s73, s89, 3")
        k("s_lshl_b32 s88, s88, 2")
        k("s_add_u32 s73, s73, s88")
    else:
        k("s_lshr_b32 s70, s5, 4")
        k("s_lshl_b32 s88, s4, 1")
        k("s_add_u32 s70, s70, s88")
        k("s_and_b32 s71, s5, 15")
        k("s_lshr_b32 s72, s71, 3")
        k("s_and_b32 s73, s71, 7")
    k("s_mul_i32 s75, s71, %d" % LW1)
    k("s_lshl_b32 s69, s3, 10")
    k("s_add_u32 s75, s75, s69")
    k("s_add_u32 s75, s75, 0x%x" % W1P)

def w1_dma3(k, lo, hi, tag):
    k("s_lshl_b32 s88, s3, 10")
    k("s_add_u32 s89, s75, %d" % ((lo-1)*1024))
    k("s_add_u32 s88, s88, %d" % ((lo-1)*1024))
    for j in range((hi - lo)//3):
        k("s_add_u32 m0, s88, %d" % (j*3072))
        if j: k("s_add_u32 s89, s89, 3072")
        else: k("s_nop 0")
        k("buffer_load_dwordx4 v%d, %s, s89 offen lds" % (vL, srd(WS)), tag=tag)
        if j >= P["thr"]: k("s_waitcnt vmcnt(%d)" % P["thr"])

def w1_dma(k, lo, hi, tag):
    out = []
    for j in range(lo, hi):
        def one(j=j):
            k("s_add_u32 m0, s69, %d" % (j*4096))
            k("s_add_u32 s88, s75, %d" % (j*4096))
            k("buffer_load_dwordx4 v%d, %s, s88 offen lds" % (vL, srd(WS)), tag=tag)
        out.append(one)
    return out

def pre_v(k):
    k.comment("feed-forward: addresses")
    k("v_lshlrev_b32 v%d, 4, v0" % vL)
    k("v_add_u32 v%d, %d, v%d" % (vA0, PT_OFF[0], vL))
    k("v_add_u32 v%d, %d, v%d" % (vA1, PT_OFF[2], vL))
    k("v_add_u32 v%d, %d, v%d" % (vA2, PT_OFF[4], vL))
    k("v_and_b32 v16, 15, v0")
    k("v_lshrrev_b32 v17, 4, v0")
    k("v_lshlrev_b32 v18, 4, v16")
    k("v_lshl_add_u32 v%d, v17, 9, v18" % vX)
    k("s_mul_i32 s88, s71, 3")
    k("v_add_u32 v19, s88, v17")
    k("v_and_b32 v20, 1, v19")
    k("v_lshl_add_u32 v18, v20, 3, v18")
    k("v_bfe_u32 v20, v19, 1, 2")
    k("v_lshl_add_u32 v18, v20, 8, v18")
    k("v_lshrrev_b32 v20, 3, v19")
    k("v_add_u32 v20, 48, v20")
    k("v_lshl_add_u32 v18, v20, 12, v18")
    k("v_add_u32 v19, 1, v17")
    k("v_lshrrev_b32 v19, 2, v19")
    k("v_lshl_add_u32 v%d, v19, 30, v18" % vH3)
    k("v_lshrrev_b32 v19, 2, v16")
    k("v_lshl_add_u32 v19, v19, 4, v16")
    k("v_lshlrev_b32 v%d, 2, v19" % vBQ)
    k("v_add_lshl_u32 v%d, v16, 48, 2" % vBS)
    k("s_lshl_b32 s88, s3, 7")
    k("s_add_u32 s88, s88, %d" % L_RS2)
    k("v_lshl_add_u32 v%d, v16, 2, s88" % vRW)
    k("v_min_u32 v16, 1, v0")
    k("v_lshlrev_b32 v%d, 30, v16" % vSIG)
    k("v_mov_b32 v%d, 1" % vONE)
    for r, m in ((1, 0x22222222), (2, 0x44444444), (3, 0x88888888)):
        k("s_mov_b32 s%d, 0x%x" % (90+2*r, m)); k("s_mov_b32 s%d, 0x%x" % (91+2*r, m))
    for lam in range(4):
        k("s_add_u32 s88, s3, %d" % (lam+1))
        k("s_and_b32 s88, s88, 3")
        k("s_lshl_b32 s88, s88, 10")
        k("v_add_u32 v%d, s88, v%d" % (vHL+lam, vL))

def pre_s(k, layer):
    k("s_lshl_b32 s88, s70, 2")
    k("s_add_u32 s88, s88, s3")
    k("s_mul_i32 s74, s88, 40960")
    k("s_add_u32 s74, s74, 0x%x" % XG[2*layer+1])
    k("s_lshr_b32 s89, s88, 1")
    k("s_mul_i32 s77, s89, %d" % HBLK)
    k("s_and_b32 s90, s3, 1")
    k("s_lshl_b32 s90, s90, 11")
    k("s_add_u32 s77, s77, s90")
    k("s_add_u32 s77, s77, 0x%x" % H[layer])
    k("s_lshl_b32 s90, s71, 13")
    k("s_add_u32 s76, s77, s90")
    k("s_mul_i32 s78, s89, 768")
    k("s_add_u32 s78, s78, 0x%x" % (CNT + layer*32*768))
    k("s_lshl_b32 s89, s70, 1")
    k("s_add_u32 s89, s89, s72")
    k("s_mul_i32 s79, s89, 768")
    k("s_add_u32 s79, s79, 0x%x" % (CNT + layer*32*768))
    k("s_mul_i32 s89, s89, %d" % HBLK)
    k("s_add_u32 s89, s89, 0x%x" % H[layer])
    k("s_mul_i32 s90, s73, %d" % LW2)
    k("s_add_u32 s90, s90, 0x%x" % W2P[layer])
    for base, unit, regs in ((89, 4096, sHB), (90, 5120, sWB)):
        k("s_mul_i32 s88, s3, %d" % (8*unit)); k("s_add_u32 s%d, s%d, s88" % (regs[0], base))
        k("s_mul_i32 s88, s3, %d" % unit); k("s_add_u32 s88, s88, %d" % (48*unit)); k("s_add_u32 s%d, s%d, s88" % (regs[1], base))
        k("s_add_u32 s%d, s%d, %d" % (regs[2], regs[1], 4*unit))
        k("s_cmp_lt_u32 s3, 2"); k("s_cselect_b32 s%d, s%d, 0x%x" % (regs[2], regs[2], OOB))
        k("s_mul_i32 s88, s3, %d" % (4*unit)); k("s_add_u32 s88, s88, %d" % (32*unit)); k("s_add_u32 s%d, s%d, s88" % (regs[3], base))

def pre(k, layer):
    pre_s(k, layer); pre_v(k)

def step_base(idx):
    if idx < 4: return 0, 2*idx
    if idx == 4: return 1, 0
    if idx == 5: return 2, 0
    if idx < 10: return 0, 2*(idx-6) + 1
    return 3, idx-10

def w2_reg(idx, dt):
    return a(20*(idx % 12)+4*dt, 4)

def w2_loads(k, idx):
    b, n = step_base(idx)
    out = []
    for dt in range(5):
        def one(dt=dt):
            if dt == 0: k("s_add_u32 s89, s%d, %d" % (sWB[b], n*5120))
            if dt == 4: k("s_add_u32 s89, s%d, %d" % (sWB[b], n*5120 + 4096))
            k("buffer_load_dwordx4 %s, v%d, %s, s89 offen offset:%d" % (w2_reg(idx, dt), vL, srd(WS), (dt & 3)*1024))
        out.append(one)
    return out

def w2_touch(k):
    k("v_lshlrev_b32 v16, 6, v0")
    for b, n in ((0, 10), (1, 2), (2, 2), (3, 5)):
        for j in range(n):
            k("s_add_u32 s89, s%d, %d" % (sWB[b], j*4096))
            k("buffer_load_dword v17, v16, %s, s89 offen" % srd(WS))
            k.vmq[-1] = (None, set(), False)

def h_loads(k, idx):
    b, n = step_base(idx)
    out = []
    for lam in range(4):
        def one(lam=lam):
            if lam == 0: k("s_add_u32 s90, s%d, %d" % (sHB[b], n*4096))
            k("buffer_load_dwordx4 %s, v%d, %s, s90 offen sc1" % (v(HR+16*(idx % NS)+4*lam, 4), vHL+lam, srd(WS)))
        out.append(one)
    return out

def x_load(k, n):
    s, tt = n >> 1, n & 1
    if n and n % 4 == 0: k("s_add_u32 s74, s74, 4096")
    k("buffer_load_dwordx4 %s, v%d, %s, s74 offen offset:%d sc1" % (v(XBR+4*n, 4), vX, srd(WS), (s & 1)*2048 + tt*256), tag="x%d" % n)

def signal(k, stage, tag):
    def f():
        if stage == 0: k.stamp("sigA_pre")
        k.wait(vm=tag)
        k("buffer_atomic_add v%d, v%d, %s, s%d offen offset:%d sc1" % (vONE, vSIG, srd(WS), sCNT, stage*256))
        k.stamp("sig%d" % stage)
    return f

def poll_issue(k, stage, vp):
    return lambda: k("buffer_load_dword v%d, off, %s, s%d offset:%d sc1" % (vp, srd(WS), sCNTP, stage*256))

def poll_check(k, vp, soff, off, want):
    ok, again = k.label("ok"), k.label("again")
    k("v_readfirstlane_b32 s88, v%d" % vp)
    k("s_mov_b32 s%d, 0" % sSPIN)
    k("s_cmp_ge_u32 s88, %d" % want)
    k("s_cbranch_scc1 " + ok)
    st = k.fork()
    k(again + ":")
    k("buffer_load_dword v%d, off, %s, s%d offset:%d sc1" % (vp, srd(WS), soff, off))
    k("s_add_u32 s%d, s%d, 1" % (sSPIN, sSPIN))
    k("s_waitcnt vmcnt(0)")
    if P["slp"]: k("s_sleep %d" % P["slp"])
    k("v_readfirstlane_b32 s88, v%d" % vp)
    k("s_cmp_ge_u32 s%d, %d" % (sSPIN, SPIN_LIMIT))
    k("s_cbranch_scc1 " + ok)
    k("s_cmp_ge_u32 s88, %d" % want)
    k("s_cbranch_scc0 " + again)
    k.restore(st)
    k(ok + ":")
    k.stamp_val("#spin%d" % (off // 256), sSPIN)

def pair_epilogue(p, tag):
    out = []
    for tt in range(2):
        b = ACCP + 16*p + 8*tt
        for r in range(8): out.append("v_mul_f32 v%d, v%d, |v%d|" % (b+r, b+r, b+r))
        for r in range(4): out.append("v_cvt_pk_bf16_f32 v%d, v%d, v%d" % (b+r, b+2*r, b+2*r+1))
        for r in range(4): out.append("v_pk_max_i16 v%d, v%d, 0" % (b+r, b+r))
        out.append(("buffer_store_dwordx4 %s, v%d, %s, s%d offen offset:%d sc1" % (v(b, 4), vL, srd(WS), sHS, tt*1024), tag))
    return out

def short_epilogue(tag):
    out = []
    for tt in range(2):
        b = ACCS + 4*tt
        for r in range(4): out.append("v_mul_f32 v%d, v%d, |v%d|" % (b+r, b+r, b+r))
        for r in range(2): out.append("v_cvt_pk_bf16_f32 v%d, v%d, v%d" % (b+r, b+2*r, b+2*r+1))
        for r in range(2): out.append("v_pk_max_i16 v%d, v%d, 0" % (b+r, b+r))
        out.append(("buffer_store_dwordx2 %s, v%d, %s, s%d offen offset:%d sc1" % (v(b, 2), vH3, srd(WS), sHS3, tt*1024), tag))
    return out

def stats_ops():
    c = f2u(1.0/D)
    out = []
    both = lambda f: [f(GR+4*tt, SB+4*tt, TMP+4*tt, tt) for tt in range(2)]
    out += both(lambda G, S_, T, tt: "ds_bpermute_b32 v%d, v%d, v%d" % (T, vBS, ACCS+4*tt))
    for r in range(1, 4):
        out += both(lambda G, S_, T, tt: "v_cndmask_b32 v%d, v%d, v%d, s[%d:%d]" % (G, G, G+r, 90+2*r, 91+2*r))
    out += both(lambda G, S_, T, tt: "ds_bpermute_b32 v%d, v%d, v%d" % (G+1, vBQ, G))
    for f in (
        lambda G, S_, T, tt: "v_mov_b32 v%d, 0" % (S_+3),
        lambda G, S_, T, tt: "v_mul_f32 v%d, 0x%x, v%d" % (T, f2u(-1.0/D), T),
        lambda G, S_, T, tt: "v_cvt_pk_bf16_f32 v%d, v%d, v%d" % (S_, T, T),
        lambda G, S_, T, tt: "v_lshlrev_b32 v%d, 16, v%d" % (T+1, S_),
        lambda G, S_, T, tt: "v_sub_f32 v%d, v%d, v%d" % (T+1, T, T+1),
        lambda G, S_, T, tt: "v_mul_f32 v%d, 0x%x, v%d" % (G, c, G+1),
        lambda G, S_, T, tt: "v_fma_f32 v%d, -v%d, v%d, v%d" % (G, T, T, G),
        lambda G, S_, T, tt: "v_max_f32 v%d, 0, v%d" % (G, G),
        lambda G, S_, T, tt: "v_add_f32 v%d, 0x%x, v%d" % (G, f2u(1e-5), G),
        lambda G, S_, T, tt: "v_sqrt_f32 v%d, v%d" % (T+2, G),
        lambda G, S_, T, tt: "v_rcp_f32 v%d, v%d" % (G, G),
        lambda G, S_, T, tt: "v_cvt_pk_bf16_f32 v%d, v%d, v%d" % (S_+1, T+1, T+2),
        lambda G, S_, T, tt: "v_and_b32 v%d, 0xffff0000, v%d" % (T+3, S_+1),
        lambda G, S_, T, tt: "v_sub_f32 v%d, v%d, v%d" % (T+3, T+2, T+3),
        lambda G, S_, T, tt: "v_cvt_pk_bf16_f32 v%d, v%d, 0" % (S_+2, T+3),
        lambda G, S_, T, tt: "ds_write_b32 v%d, v%d offset:%d" % (vRW, G, tt*64)):
        out += both(f)
    return out

def extract_residual(k):
    done = k.label("exdone")
    k.settle(vm=False)
    k("s_lshr_b32 s88, s3, 1")
    k("s_cmp_eq_u32 s88, s72")
    k("s_cbranch_scc0 " + done)
    st = k.fork()
    k("s_and_b32 s88, s73, 1")
    k("s_mov_b32 s95, 0x05040100")
    k("s_cmp_eq_u32 s88, 0")
    k("s_cselect_b32 s95, s95, 0x07060302")
    k("v_and_b32 v24, 15, v0")
    k("v_mul_u32_u24 v24, 160, v24")
    k("v_lshrrev_b32 v25, 4, v0")
    k("v_lshl_add_u32 v24, v25, 2, v24")
    k("s_and_b32 s88, s3, 1")
    k("s_mul_i32 s88, s88, 5120")
    k("s_add_u32 s88, s88, %d" % L_RES)
    k("v_add_u32 v24, s88, v24")
    k("v_add_u32 v25, 2560, v24")
    k("s_lshr_b32 s88, s73, 1")
    labs = [k.label("ex") for _ in range(4)]
    for r in range(1, 4):
        k("s_cmp_eq_u32 s88, %d" % r); k("s_cbranch_scc1 " + labs[r])
    st2 = k.fork()
    for r in range(4):
        k.restore(st2)
        k(labs[r] + ":")
        for tt in range(2):
            for u in range(0, 10, 2):
                t = 26 + 2*((u >> 1) % 3)
                for e in range(2):
                    x = XBR + 16*(u+e) + 4*tt + r
                    k("v_perm_b32 v%d, v%d, v%d, s95" % (t+e, x+8, x))
                k("ds_write2_b32 v%d, v%d, v%d offset0:%d offset1:%d" % (24+tt, t, t+1, 4*u, 4*u+4))
        k("s_waitcnt lgkmcnt(0)")
        if r < 3: k("s_branch " + done)
    k.restore(st)
    k(done + ":")

def put(k, x):
    if callable(x): x()
    elif isinstance(x, tuple): k(x[0], tag=x[1])
    else: k(x)

def g1(k, layer, w2_from):
    k.comment("first GEMM")
    LA = P["la"]
    groups = [[(6, s), (0, s), (1, s)] for s in range(20)]
    G2_ = len(groups)
    nx = P["nx"]
    half = lambda p, a_, b_: [[(t, s) for s in (2*u, 2*u+1) for t in (2*p, 2*p+1)] for u in range(a_, b_)]
    groups += half(1, 0, nx) + [[("x", 0), ("x", 1), ("x", 6)]] + half(1, nx, 10)
    G3_ = len(groups)
    groups += [[("x", 2), ("x", 3)]] + half(2, 0, 10) + [[("x", 4), ("x", 5)]]
    frags = [(g, f) for g, fs in enumerate(groups) for f in fs]
    slot = lambda n: a(RING + 4*(n % NRING), 4)
    def read(n):
        g, (t, s) = frags[n]
        if t == "x": txt = "v%d offset:%d" % (vL, EX_OFF + ((s+1) % 7)*1024)
        elif t == 6: txt = "v%d offset:%d" % (vL, S_OFF + s*1024)
        else: txt = "v%d offset:%d" % ((vA0, vA1, vA2)[t >> 1], (t & 1)*20480 + s*1024)
        return ("ds_read_b128 %s, %s" % (slot(n), txt), "g%d" % g)
    def acc(t, tt): return v(ACCS+4*tt, 4) if t == 6 else v(ACCP+16*(t >> 1)+8*tt+4*(t & 1), 4)
    mm = []
    for n, (g, (t, s)) in enumerate(frags):
        for tt in range(2):
            if t == "x": mm.append((g, n, "v_mfma_f32_16x16x32_bf16 %s, %s, %s, %s" % (acc(s, tt), slot(n), v(SB+4*tt, 4), acc(s, tt))))
            else: mm.append((g, n, "v_mfma_f32_16x16x32_bf16 %s, %s, %s, %s" % (acc(t, tt), slot(n), v(XBR+8*s+4*tt, 4), acc(t, tt) if s else "0")))
        if g < G2_ and t == 1:
            for tt in range(2):
                x = v(XBR+8*s+4*tt, 4)
                mm.append((g, None, "v_mfma_f32_16x16x32_bf16 %s, %s, %s, %s" % (v(GR+4*tt, 4), x, x, v(GR+4*tt, 4) if s else "0")))
    first = {}
    for i, (g, n, _) in enumerate(mm): first.setdefault(g, i)
    M2, M3, END = first[G2_], first[G3_], len(mm)
    MX = first[G2_ + nx]
    fill = {i: [] for i in range(END)}
    def spread(ops, i0, num, den=1):
        for j, op in enumerate(ops): fill[min(i0 + j*den//num, END-1)].append(op)
        return i0 + len(ops)*den//num + 1
    for n in range(LA, 40):
        fill[8*((n-LA) >> 1) + 1 + 4*(n & 1)].append(lambda n=n: x_load(k, n))
    st = stats_ops()
    spread(st, M2 + 3, len(st), MX - M2 - 5)
    nex = spread(pair_epilogue(0, "hA") + short_epilogue("hA"), MX + 8, P["epi"], 2)
    fill[min(M2 + P["sigA"], END-1)].append(signal(k, 0, "hA"))
    spread(["s_add_u32 s76, s76, 4096"] + pair_epilogue(1, "hB"), M3 + 9, P["epi"], 2)
    w2l = [l for idx in range(w2_from, 10) for l in w2_loads(k, idx)]
    lo = 8*((40-LA) >> 1) + 2
    if w2l: spread(w2l, lo, len(w2l), P["w2end"] + M2 - lo)
    hl = [l for idx in range(6) for l in h_loads(k, idx)]
    inside = M2 + P["pollA"] < END - 1
    nin = 0
    if inside:
        fill[M2+P["pollA"]-8].append(poll_issue(k, 0, TMP))
        fill[M2+P["pollA"]].append(lambda: poll_check(k, TMP, sCNTP, 0, 32))
        for j, l in enumerate(hl):
            i = max(M2 + P["pollA"] + 1 + 2*j, M3 + 4 + 8*((j >> 2) + 1))
            if i >= END: break
            fill[i].append(l); nin += 1
    else:
        fill[END-1].append(poll_issue(k, 0, TMP))
    for n in range(LA): x_load(k, n)
    nread = 0
    while nread < NRING - 3: put(k, read(nread)); nread += 1
    last_use = {n: i for i, (g, n, _) in enumerate(mm) if n is not None}
    for i, (g, n, txt) in enumerate(mm):
        if i == 0: k.stamp("g1_start")
        if i == 8: k.stamp("g1_x0")
        if i == M2: k.stamp("g1_p1")
        if i == M3: k.stamp("g1_p2")
        if inside and i == M2+P["pollA"]+1: k.stamp("g1_pollA")
        if i == nex and layer == 1: extract_residual(k)
        if i == first[g]:
            k.wait(vm="x%d" % (2*g+1) if g < G2_ else None, lg="g%d" % g)
        k(txt)
        if (i & 1) == 0 and nread < len(frags) and (nread < NRING or last_use[nread - NRING] <= i):
            put(k, read(nread)); nread += 1
        for x in fill[i]: put(k, x)
    assert nread == len(frags)
    k("s_lshl_b32 s88, s71, 12")
    k("s_add_u32 s76, s77, s88")
    k("s_add_u32 s76, s76, %d" % (32*4096))
    for x in pair_epilogue(2, "hC"): put(k, x)
    if not inside:
        poll_check(k, TMP, sCNTP, 0, 32)
        k.stamp("g1_pollA")
    for x in hl[nin:]: put(k, x)
    signal(k, 1, "hB")()

def m80_dma(k):
    k("v_add_u32 v6, s69, v%d" % vL)
    tab_addr(k, 6, 6, TAB["M80"])
    for j in range(4):
        k("s_add_u32 m0, s69, %d" % (L_M80 + j*4096))
        if j: k("v_lshl_add_u64 v[6:7], v[6:7], 0, s[96:97]")
        else: (k("s_mov_b32 s96, 4096"), k("s_mov_b32 s97, 0"))
        k("global_load_lds_dwordx4 v[6:7], off", tag="m80")

def g2(k, layer):
    k.comment("second GEMM")
    k("s_waitcnt lgkmcnt(0)")
    k.stamp("g1_end")
    k("s_barrier")
    vE = 248
    k("v_lshrrev_b32 v%d, 4, v0" % vE)
    k("v_mul_u32_u24 v%d, 80, v%d" % (vE+1, vE))
    k("s_mul_i32 s88, s73, 320")
    k("s_add_u32 s88, s88, 0x%x" % (B2P + layer*2560))
    for dt in range(5):
        k("buffer_load_dwordx4 %s, v%d, %s, s88 offen offset:%d" % (v(RB+4*dt, 4), vE+1, srd(WS), dt*16))
    k("v_and_b32 v%d, 15, v0" % (vE+2))
    k("s_lshl_b32 s92, s70, 3")
    k("s_lshl_b32 s88, s72, 2")
    k("s_add_u32 s92, s92, s88")
    k("s_add_u32 s92, s92, s3")
    pre_ops = []
    if layer == 0:
        k("v_lshlrev_b32 v%d, 4, v%d" % (vE+3, vE+2))
        k("v_lshl_add_u32 v%d, v%d, 12, v%d" % (vE+4, vE, vE+3))
        k("v_lshrrev_b32 v%d, 5, v0" % (vE+5))
        k("v_lshl_add_u32 v%d, v%d, 12, v%d" % (vE+5, vE+5, vE+3))
        k("v_bfe_u32 v%d, v0, 4, 1" % (vE+3))
        k("v_lshl_add_u32 v%d, v%d, 3, v%d" % (vE+5, vE+3, vE+5))
        k("s_lshr_b32 s88, s92, 1")
        k("s_mul_i32 s93, s88, 40960")
        k("s_and_b32 s88, s92, 1")
        k("s_lshl_b32 s88, s88, 8")
        k("s_add_u32 s93, s93, s88")
        k("s_lshl_b32 s88, s73, 9")
        k("s_add_u32 s93, s93, s88")
        k("s_add_u32 s88, s93, 0x%x" % XG[1])
        k("buffer_load_dwordx4 %s, v%d, %s, s88 offen sc1" % (v(RT, 4), vE+4, srd(WS)))
        k("s_add_u32 s88, s93, 0x%x" % (XG[1] + 16384))
        k("buffer_load_dwordx4 %s, v%d, %s, s88 offen sc1" % (v(RT+4, 4), vE+4, srd(WS)))
        k("s_add_u32 s88, s93, 0x%x" % (XG[1] + 32768))
        k("buffer_load_dwordx2 %s, v%d, %s, s88 offen sc1" % (v(RT+8, 2), vE+5, srd(WS)))
        src = [(RT + (e >> 1), e & 1) for e in range(20)]
    else:
        k("v_mul_u32_u24 v%d, 160, v%d" % (vE+3, vE+2))
        k("s_mul_i32 s88, s3, 2560")
        k("s_add_u32 s88, s88, %d" % L_RES)
        k("v_add_u32 v%d, s88, v%d" % (vE+3, vE+3))
        k("v_lshl_add_u32 v%d, v%d, 4, v%d" % (vE+4, vE, vE+3))
        k("v_lshrrev_b32 v%d, 5, v0" % (vE+5))
        k("v_lshl_add_u32 v%d, v%d, 4, v%d" % (vE+5, vE+5, vE+3))
        k("ds_read_b128 %s, v%d" % (v(RT, 4), vE+4))
        k("ds_read_b128 %s, v%d offset:64" % (v(RT+4, 4), vE+4))
        k("ds_read_b128 %s, v%d offset:128" % (v(RT+8, 4), vE+5))
        k("v_and_b32 v%d, 16, v0" % (vE+4))
        k("v_xor_b32 v%d, 16, v%d" % (vE+4, vE+4))
        src = [(RT + 4*(e >> 3) + (e & 3), (e >> 2) & 1) for e in range(16)]
        for r in range(4):
            pre_ops.append("v_lshlrev_b32 v%d, v%d, v%d" % (RT+8+r, vE+4, RT+8+r))
            src.append((RT + 8 + r, 1))
    k("s_lshl_b32 s88, s72, 2")
    k("s_add_u32 s88, s88, s3")
    k("s_lshl_b32 s88, s88, 6")
    k("s_add_u32 s88, s88, %d" % L_RS2)
    k("v_lshl_add_u32 v%d, v%d, 2, s88" % (vE+3, vE+2))
    k("ds_read_b32 v%d, v%d" % (vE+6, vE+3))
    for e, (r, hi) in enumerate(src):
        pre_ops.append("v_and_b32 v%d, 0xffff0000, v%d" % (vE+7, r) if hi else "v_lshlrev_b32 v%d, 16, v%d" % (vE+7, r))
        pre_ops.append("v_add_f32 v%d, v%d, v%d" % (RB+e, RB+e, vE+7))
    red = []
    for lam in range(3):
        red.append(2+lam)
        k("s_add_u32 s88, s3, %d" % (lam+1))
        k("s_and_b32 s88, s88, 3")
        k("s_mul_i32 s88, s88, 15360")
        k("s_add_u32 s88, s88, %d" % (L_RED + lam*5120))
        k("v_add_u32 v%d, s88, v%d" % (2+lam, vL))
    k("s_mul_i32 s88, s3, 15360")
    k("s_add_u32 s88, s88, %d" % L_RED)
    k("v_add_u32 v5, s88, v%d" % vL)
    def mf(idx, lam, dt):
        d = v(G2ACC+20*lam+4*dt, 4)
        return "v_mfma_f32_16x16x32_bf16 %s, %s, %s, %s" % (d, w2_reg(idx, dt), v(HR+16*(idx % NS)+4*lam, 4), d if idx else "0")
    F_ = {(idx, n): [] for idx in range(10) for n in range(20)}
    pb, pc = P["pollB"], P["pollC"]
    F_[pb, 2].append(poll_issue(k, 1, 10)); F_[pb, 19].append(lambda: poll_check(k, 10, sCNTP, 256, 32))
    F_[pc, 2].append(poll_issue(k, 2, 10)); F_[pc, 19].append(lambda: poll_check(k, 10, sCNTP, 512, 32))
    F_[P["sigC"], 10].append(signal(k, 2, "hC"))
    slots = [(idx, n) for idx in range(10) for n in (1, 4, 7, 10, 13, 16)]
    used = set()
    def place(ops, after):
        for op in ops:
            sl = next(x for x in slots if x[0] > after and x not in used)
            used.add(sl); F_[sl].append(op)
    for idx in range(6, 10): place(h_loads(k, idx), max(pb, idx - NS))
    place(w2_loads(k, 10), -1); place(w2_loads(k, 11), -1); place(w2_loads(k, 12), 0); place(w2_loads(k, 13), 1)
    for idx in range(10, 14): place(h_loads(k, idx), max(pc, idx - NS))
    for j, l in enumerate(pre_ops): F_[7 + j // 20, j % 20].append(l)
    if layer == 0:
        F_[5, 0].append(lambda: m80_dma(k))
        F_[9, 0].append(lambda: (k.wait(vm="m80"), k("s_barrier"), k("v_add_u32 v6, %d, v%d" % (L_M80, vL))))
        for j in range(13): F_[9, j+3].append("ds_read_b128 %s, v6 offset:%d" % (a(M80R+4*j, 4), j*1024))
    for idx in range(10):
        for n, m in enumerate([mf(idx, lam, dt) for lam in range(4) for dt in range(5)]):
            k(m)
            for x in F_[idx, n]: put(k, x)
        if idx in (pb, pc): k.stamp("g2_poll%d" % (idx == pc))
    f = []
    for lam in range(4):
        m = [mf(idx, lam, dt) for idx in range(10, 14) for dt in range(5)]
        interleave(k, m, f, 1, start=5)
        f = [("ds_write_b128 v%d, %s offset:%d" % (red[lam], v(G2ACC+20*lam+4*dt, 4), dt*1024), "red") for dt in range(5)] if lam < 3 else []
    k.wait(lg="red")
    k.stamp("g2_mfma")
    k("s_barrier")
    for sl in range(3):
        for dt in range(5):
            k("ds_read_b128 %s, v5 offset:%d" % (v(HR+20*sl+4*dt, 4), sl*5120 + dt*1024))
    O = G2ACC + 60
    for sl in range(3):
        for e in range(20):
            k("v_add_f32 v%d, v%d, v%d" % (O+e, O+e, HR+20*sl+e))
    for e in range(20):
        k("v_fma_f32 v%d, v%d, v%d, v%d" % (O+e, O+e, vE+6, RB+e))
    XP = 36
    for e in range(10):
        k("v_cvt_pk_bf16_f32 v%d, v%d, v%d" % (XP+e, O+2*e, O+2*e+1))
    if layer == 0:
        m = dft80_mfmas(XP, XP+4, XP+8, M80R, 16, "a")
        st = ["s_add_u32 s88, s93, 0x%x" % XG[2],
              ("buffer_store_dwordx4 %s, v%d, %s, s88 offen sc1" % (v(XP, 4), vE+4, srd(WS)), "fin"),
              "s_add_u32 s88, s93, 0x%x" % (XG[2] + 16384),
              ("buffer_store_dwordx4 %s, v%d, %s, s88 offen sc1" % (v(XP+4, 4), vE+4, srd(WS)), "fin"),
              "s_add_u32 s88, s93, 0x%x" % (XG[2] + 32768),
              ("buffer_store_dwordx2 %s, v%d, %s, s88 offen sc1" % (v(XP+8, 2), vE+5, srd(WS)), "fin"),
              "v_add_f32 v46, v%d, v%d" % (O, O+1), "v_mul_f32 v47, v%d, v%d" % (O, O),
              "v_fmac_f32 v47, v%d, v%d" % (O+1, O+1)]
        for e in range(2, 20):
            st += ["v_add_f32 v46, v46, v%d" % (O+e), "v_fmac_f32 v47, v%d, v%d" % (O+e, O+e)]
        rest = interleave(k, m, st, 2)
        for x in rest: k(x)
        u_addr(k, 50, 51)
        k("s_lshl_b32 s88, s73, 7")
        k("s_add_u32 s88, s88, s92")
        k("s_lshl_b32 s88, s88, 6")
        k("s_add_u32 s94, s88, 0x%x" % U[1])
        u_stores(k, 16, 50, 94, 88, tag="fin")
        xsum(k, [46, 47], 48, [4, 5])
        k("v_cmp_gt_u32 vcc, 16, v0")
        k("v_lshlrev_b32 v48, 3, v%d" % (vE+2))
        k("v_lshl_add_u32 v48, v%d, 2, v48" % vE)
        k("v_cndmask_b32 v46, v47, v46, vcc")
        k("s_lshl_b32 s88, s92, 7")
        k("s_add_u32 s88, s88, 0x%x" % ST[1])
        k("s_mov_b32 exec_hi, 0")
        k("buffer_atomic_add_f32 v46, v48, %s, s88 offen" % srd(WS), tag="fin")
        k("s_mov_b64 exec, -1")
    else:
        k.srd(AUX, pOUT, XB)
        k("v_and_b32 v46, 7, v0")
        k("v_bfe_u32 v47, v0, 3, 1")
        k("v_lshl_add_u32 v46, v46, 1, v47")
        k("v_mul_u32_u24 v46, 40960, v46")
        k("v_lshl_add_u32 v47, v%d, 4, v46" % vE)
        k("v_lshl_add_u32 v46, v%d, 3, v46" % vE)
        k("s_lshr_b32 s88, s92, 5")
        k("s_lshl_b32 s88, s88, 9")
        k("s_and_b32 s89, s92, 31")
        k("s_add_u32 s88, s88, s89")
        k("s_mul_i32 s88, s88, 1280")
        k("s_mul_i32 s89, s73, 160")
        k("s_add_u32 s88, s88, s89")
        k("buffer_store_dwordx4 %s, v47, %s, s88 offen" % (v(XP, 4), srd(AUX)))
        k("buffer_store_dwordx4 %s, v47, %s, s88 offen offset:64" % (v(XP+4, 4), srd(AUX)))
        k("buffer_store_dwordx2 %s, v46, %s, s88 offen offset:128" % (v(XP+8, 2), srd(AUX)))
```

```python
S, D, F = 2048, 640, 1728
XB = S*D*2
XG = [0, 0x280000, 0x500000, 0x780000]
U = [0xA00000, 0xC80000]
H = [0xF00000, 0x15C0000]
HBLK = 54*4096
W1P = 0x1C80000
LW1 = 148*1024
W2P = [0x1F00000, 0x2120000]
LW2 = 54*5120
ST = [0x2340000, 0x2344000]
B2P = 0x2348000
CNT = 0x2350000
CNT_BYTES = 0x14000
GBAR = CNT
STAMP = 0x2370000
WS_USED = 0x2470000
OOB = 0x7F000000
EX_OFF, S_OFF = 0, 7168
PT_OFF = [27648 + 20480*n for n in range(6)]
W1_END = 150528
L_RS2 = LW1
L_RES = LW1 + 512
L_RED = 0
L_CU = PT_OFF[2]
L_CRS = PT_OFF[2] + 4*18432
LDS_BYTES = 163840
L_M80 = 69632
L_TAB = L_RES
L_B2 = 86016
```

```python
from common import *

def px(k, sT):
    k.comment("input row tile: granule copy, row sums, 80-point partial transform")
    k.srd(AUX, pX, XB)
    k("s_lshr_b32 s40, s%d, 5" % sT)
    k("s_lshl_b32 s40, s40, 9")
    k("s_and_b32 s41, s%d, 31" % sT)
    k("s_add_u32 s40, s40, s41")
    k("s_lshl_b32 s41, s3, 2")
    k("s_mul_i32 s42, s3, 5120")
    k("s_mov_b32 s43, 1280")
    for n in range(5):
        k("v_add_u32 v1, %d, v0" % (64*n))
        k("v_mul_u32_u24 v2, 205, v1")
        k("v_lshrrev_b32 v2, 14, v2")
        k("v_mul_u32_u24 v3, 80, v2")
        k("v_sub_u32 v1, v1, v3")
        k("v_add_u32 v2, s41, v2")
        k("v_and_b32 v3, 7, v2")
        k("v_lshrrev_b32 v2, 3, v2")
        k("v_lshl_add_u32 v2, v3, 1, v2")
        k("v_lshl_add_u32 v2, v2, 5, s40")
        k("v_lshlrev_b32 v1, 4, v1")
        k("v_mad_u32_u24 v1, v2, s43, v1")
        k("s_add_u32 m0, s42, %d" % (n*1024))
        k("buffer_load_dwordx4 v1, %s, 0 offen lds" % srd(AUX), tag="raw")
    M = 80
    k("v_lshlrev_b32 v4, 4, v0")
    for l in m80_loads(k, M, 6, 4): k(l)
    k("v_and_b32 v1, 3, v0")
    k("v_mul_u32_u24 v10, 1280, v1")
    k("v_add_u32 v10, s42, v10")
    k("v_lshrrev_b32 v2, 4, v0")
    k("v_lshl_add_u32 v10, v2, 3, v10")
    k("v_bfe_u32 v3, v0, 2, 2")
    k("v_mul_u32_u24 v11, 160, v3")
    k("v_add_u32 v10, v10, v11")
    k("v_lshl_add_u32 v12, v2, 2, v1")
    k("v_add_u32 v13, s41, v3")
    k("v_mul_u32_u24 v14, 288, v12")
    k("v_lshl_add_u32 v14, v13, 4, v14")
    k("v_add_u32 v14, 20480, v14")
    k("v_lshlrev_b32 v15, 9, v12")
    k("v_lshl_add_u32 v15, v13, 4, v15")
    k("s_lshr_b32 s44, s%d, 1" % sT)
    k("s_mul_i32 s44, s44, 40960")
    k("s_and_b32 s45, s%d, 1" % sT)
    k("s_lshl_b32 s45, s45, 8")
    k("s_add_u32 s44, s44, s45")
    k("s_add_u32 s44, s44, 0x%x" % XG[0])
    G = 20
    k.stamp("p_issued")
    k.wait(vm="raw")
    k.stamp("p_raw")
    for n in range(5):
        for h in range(2):
            k("ds_read_b64_tr_b16 %s, v10 offset:%d" % (v(G+4*n+2*h, 2), n*32 + h*640))
    k("v_mov_b32 v16, 0"); k("v_mov_b32 v17, 0")
    k("s_mov_b32 s46, 0x%x" % ONES)
    for n in range(5):
        k("ds_write_b128 v14, %s offset:%d" % (v(G+4*n, 4), n*16*288), tag="g")
        if n: k("s_add_u32 s44, s44, 8192")
        k("buffer_store_dwordx4 %s, v15, %s, s44 offen sc1" % (v(G+4*n, 4), srd(WS)))
    for n in range(20):
        k("v_dot2c_f32_bf16 v16, s46, v%d" % (G+n))
        k("v_dot2c_f32_bf16 v17, v%d, v%d" % (G+n, G+n))
    k("v_and_b32 v1, 15, v0")
    k("v_lshlrev_b32 v1, 4, v1")
    k("s_mul_i32 s47, s3, 576")
    k("s_add_u32 s47, s47, 20480")
    k("v_mul_u32_u24 v5, 2304, v2")
    k("v_add3_u32 v5, v5, v1, s47")
    k("v_lshrrev_b32 v3, 5, v0")
    k("v_mul_u32_u24 v6, 2304, v3")
    k("v_bfe_u32 v3, v0, 4, 1")
    k("v_lshl_add_u32 v6, v3, 3, v6")
    k("v_add3_u32 v6, v6, v1, s47")
    k.wait(lg="g")
    k("s_barrier")
    A = 40
    for dd in range(2):
        k("ds_read_b128 %s, v5 offset:%d" % (v(A+10*dd, 4), dd*288))
        k("ds_read_b128 %s, v5 offset:%d" % (v(A+10*dd+4, 4), dd*288 + 9216))
        k("ds_read_b64 %s, v6 offset:%d" % (v(A+10*dd+8, 2), dd*288 + 18432))
    xsum(k, [16, 17], 18, [0, 1, 4, 5])
    k("v_lshlrev_b32 v13, 3, v13")
    k("s_lshl_b32 s45, s%d, 7" % sT)
    k("s_add_u32 s45, s45, 0x%x" % ST[0])
    k("s_mov_b64 exec, 0x1111")
    k("buffer_store_dwordx2 v[16:17], v13, %s, s45 offen sc1" % srd(WS))
    k("s_mov_b64 exec, -1")
    u_addr(k, 7, 8)
    k("s_lshl_b32 s48, s3, 8")
    k("s_add_u32 s48, s48, s%d" % sT)
    k("s_lshl_b32 s48, s48, 6")
    k("s_add_u32 s48, s48, 0x%x" % U[0])
    for dd in range(2):
        for m in dft80_mfmas(A+10*dd, A+10*dd+4, A+10*dd+8, M, 140+20*dd): k(m)
    for dd in range(2):
        if dd: k("s_add_u32 s48, s48, 8192")
        u_stores(k, 140+20*dd, 7, 48, 49)

def pw1(k, sT):
    k.comment("w1 block -> fragment image")
    k.srd(AUX, pW1, D*F*2)
    k.srd(AUX2, pB1, F*2)
    k("s_lshr_b32 s39, s%d, 1" % sT)
    k("s_and_b32 s47, s%d, 1" % sT)
    k("v_lshrrev_b32 v1, 3, v0")
    k("s_mov_b32 s40, %d" % (80*3456))
    k("v_mul_lo_u32 v1, v1, s40")
    k("v_and_b32 v3, 7, v0")
    k("v_lshl_add_u32 v1, v3, 4, v1")
    k("s_lshl_b32 s40, s47, 2")
    k("s_add_u32 s48, s40, s3")
    k("s_mul_i32 s40, s48, 34560")
    k("s_lshl_b32 s41, s39, 7")
    k("s_add_u32 s40, s40, s41")
    k("s_mul_i32 s42, s3, 10240")
    for n in range(10):
        k("s_add_u32 m0, s42, %d" % (n*1024))
        if n: k("s_add_u32 s40, s40, 3456")
        else: k("s_nop 0")
        k("buffer_load_dwordx4 v1, %s, s40 offen lds" % srd(AUX), tag="raw")
    k("v_lshrrev_b32 v2, 4, v0")
    k("v_and_b32 v3, 3, v0")
    k("v_bfe_u32 v4, v0, 2, 2")
    k("s_lshr_b32 s43, s3, 1")
    k("s_and_b32 s44, s3, 1")
    k("s_lshl_b32 s45, s43, 5")
    k("s_lshl_b32 s46, s44, 2")
    k("s_add_u32 s45, s45, s46")
    k("s_mov_b32 s46, 8")
    k("v_lshlrev_b32 v11, 4, v0")
    k("s_sub_u32 s52, s39, 16")
    k("s_lshl_b32 s52, s52, 1")
    k("s_add_u32 s52, s52, s43")
    k("s_lshl_b32 s53, s43, 1")
    k("s_cmp_lt_u32 s39, 16")
    k("s_cselect_b32 s52, s39, s52")
    k("s_cselect_b32 s53, s53, 4")
    k("s_add_u32 s53, s53, s44")
    k("s_mul_i32 s52, s52, %d" % LW1)
    k("s_add_u32 s52, s52, 0x%x" % W1P)
    k("s_mul_i32 s54, s53, 20480")
    k("s_add_u32 s54, s54, s52")
    k("s_add_u32 s54, s54, %d" % PT_OFF[0])
    k("s_lshl_b32 s55, s53, 10")
    k("s_add_u32 s55, s55, s52")
    k("s_add_u32 s55, s55, %d" % (EX_OFF + 1024))
    ready = k.label("ready")
    k.settle()
    k("s_cmp_lt_u32 s39, 24")
    k("s_cbranch_scc1 " + ready)
    k("s_lshl_b32 s45, s3, 4")
    k("s_mov_b32 s46, 4")
    k("s_sub_u32 s53, s39, 24")
    k("s_lshl_b32 s53, s53, 2")
    k("s_add_u32 s53, s53, s3")
    k("s_lshl_b32 s53, s53, 2")
    k("v_add_u32 v5, s53, v4")
    k("v_mul_u32_u24 v6, 43, v5")
    k("v_lshrrev_b32 v6, 7, v6")
    k("v_mul_u32_u24 v7, 3, v6")
    k("v_sub_u32 v5, v5, v7")
    k("s_mov_b32 s53, %d" % LW1)
    k("v_mul_lo_u32 v6, v6, s53")
    k("v_lshl_add_u32 v5, v5, 2, v3")
    k("v_lshl_add_u32 v5, v2, 4, v5")
    k("v_lshl_add_u32 v11, v5, 4, v6")
    k("s_mov_b32 s54, 0x%x" % (W1P + S_OFF))
    k("s_mov_b32 s55, 0x%x" % (W1P + EX_OFF))
    k.settle()
    k(ready + ":")
    k("s_mul_i32 s53, s47, 10240")
    k("s_add_u32 s54, s54, s53")
    k("v_mul_lo_u32 v5, v3, s46")
    k("v_add_lshl_u32 v5, v5, s45, 1")
    k("v_lshl_add_u32 v10, v2, 10, v5")
    k("v_lshl_add_u32 v10, v4, 7, v10")
    k("v_mul_lo_u32 v5, v4, s46")
    k("v_add_u32 v5, s45, v5")
    k("v_add_lshl_u32 v5, v5, v3, 1")
    k("buffer_load_ushort v18, v5, %s, s41 offen" % srd(AUX2))
    k("s_lshl_b32 s53, s3, 2")
    k("v_add_u32 v5, s53, v2")
    k("v_lshlrev_b32 v6, 10, v5")
    k("v_lshl_add_u32 v6, v4, 8, v6")
    k("v_lshl_add_u32 v6, v3, 4, v6")
    k("v_cmp_gt_u32 vcc, 10, v5")
    k("v_mov_b32 v7, 0x%x" % OOB)
    k("v_cndmask_b32 v6, v7, v6, vcc")
    k("s_mul_i32 s53, s47, 10240")
    k("s_add_u32 s53, s53, s52")
    k("s_add_u32 s53, s53, %d" % (S_OFF + 192))
    k("s_cmp_lt_u32 s39, 16")
    k("s_cselect_b32 s53, s53, 0x%x" % OOB)
    for r in range(4): k("v_mov_b32 v%d, 0x%x" % (64+r, ONES))
    k("buffer_store_dwordx4 v[64:67], v6, %s, s53 offen sc1" % srd(WS))
    k("v_mov_b32 v16, 0"); k("v_mov_b32 v17, 0")
    k("s_mov_b32 s53, 0x%x" % ONES)
    G = 20
    k.stamp("p_issued")
    k.wait(vm="raw")
    k("s_barrier")
    k.stamp("p_raw")
    for n in range(10):
        for h in range(2):
            k("ds_read_b64_tr_b16 %s, v10 offset:%d" % (v(G+4*n+2*h, 2), n*4096 + h*512))
    for n in range(10):
        if n and n % 4 == 0: k("s_add_u32 s54, s54, 4096")
        k("buffer_store_dwordx4 %s, v11, %s, s54 offen offset:%d sc1" % (v(G+4*n, 4), srd(WS), (n & 3)*1024))
        for jj in range(4):
            k("v_dot2c_f32_bf16 v%d, s53, v%d" % (16 + (jj & 1), G+4*n+jj))
    k("v_add_f32 v60, v16, v17")
    xsum(k, [60], 62, [4, 5])
    k("s_cmp_eq_u32 s47, 0")
    k("s_cselect_b32 s52, -1, 0")
    k("v_cvt_pk_bf16_f32 v61, v60, v60")
    k("v_lshlrev_b32 v62, 16, v61")
    k("v_sub_f32 v62, v60, v62")
    k("v_and_b32 v70, s52, v18")
    k("v_lshlrev_b32 v63, 16, v70")
    k("v_cvt_pk_bf16_f32 v68, v60, v62")
    k("v_cvt_pk_bf16_f32 v69, v60, v63")
    k("v_mov_b32 v71, 0")
    k("v_cmp_gt_u32 vcc, 32, v0")
    for r in range(3):
        k("v_cndmask_b32 v%d, 0, v%d, vcc" % (68+r, 68+r))
    k("s_xor_b32 s52, s52, 0xffff0000")
    k("s_mov_b32 exec_lo, s52")
    k("s_mov_b32 exec_hi, s52")
    k("buffer_store_dwordx4 v[68:71], v11, %s, s55 offen sc1" % srd(WS))
    k("s_mov_b64 exec, -1")

def pw2(k, sT):
    k.comment("w2 row block -> fragment images for both layers")
    k.srd(AUX, pW2, D*F*2)
    k("v_lshlrev_b32 v1, 4, v0")
    k("s_mul_i32 s40, s%d, 40960" % sT)
    k("s_mul_i32 s42, s3, 10240")
    k("s_add_u32 s40, s40, s42")
    for n in range(10):
        k("s_add_u32 m0, s42, %d" % (n*1024))
        if n: k("s_add_u32 s40, s40, 1024")
        else: k("s_nop 0")
        k("buffer_load_dwordx4 v1, %s, s40 offen lds" % srd(AUX), tag="raw")
    k("v_lshrrev_b32 v2, 4, v0")
    k("v_and_b32 v3, 3, v0")
    k("v_bfe_u32 v4, v0, 2, 2")
    k("v_mul_u32_u24 v10, 1280, v4")
    k("v_mul_u32_u24 v5, 160, v2")
    k("v_add3_u32 v10, v10, v5, s42")
    k("v_lshl_add_u32 v10, v3, 3, v10")
    k("s_mov_b32 s43, %d" % LW2)
    k("s_lshl_b32 s44, s3, 8")
    k("v_bfe_u32 v6, v0, 3, 1")
    k("v_and_b32 v7, 7, v0")
    k("v_mul_lo_u32 v7, v7, s43")
    k("v_add_u32 v7, s44, v7")
    k("v_lshl_add_u32 v7, v2, 4, v7")
    k("v_lshl_add_u32 v11, v6, 6, v7")
    k("v_lshl_add_u32 v12, v6, 7, v7")
    k("v_add_u32 v12, 4096, v12")
    k("v_mul_lo_u32 v8, v2, s43")
    k("v_add_u32 v8, s44, v8")
    k("v_bfe_u32 v5, v0, 2, 1")
    k("v_lshl_add_u32 v13, v5, 10, v8")
    k("v_lshl_add_u32 v13, v6, 6, v13")
    k("v_lshl_add_u32 v13, v3, 4, v13")
    k("v_and_b32 v5, 15, v0")
    k("v_lshl_add_u32 v14, v5, 4, v8")
    k("v_add_u32 v14, 4096, v14")
    k("s_mul_i32 s45, s%d, 5120" % sT)
    k("s_add_u32 s46, s45, 0x%x" % W2P[0])
    k("s_add_u32 s47, s45, 0x%x" % W2P[1])
    k("s_add_u32 s48, s45, 0x%x" % (W2P[1] + 4*LW2))
    G = 20
    k.stamp("p_issued")
    k.wait(vm="raw")
    k.stamp("p_raw")
    for jh in range(2):
        for n in range(5):
            for h in range(2):
                k("ds_read_b64_tr_b16 %s, v10 offset:%d" % (v(G+20*jh+4*n+2*h, 2), h*5120 + jh*640 + n*32))
    for jh in range(2):
        for n in range(5):
            r = v(G+20*jh+4*n, 4)
            if n < 4: k("buffer_store_dwordx4 %s, v11, %s, s46 offen offset:%d sc1" % (r, srd(WS), (2*(n >> 1) + jh)*1024 + (n & 1)*128))
            else: k("buffer_store_dwordx4 %s, v12, %s, s46 offen offset:%d sc1" % (r, srd(WS), jh*64))
    for jh in range(2):
        for n in range(5):
            r = v(G+20*jh+4*n, 4)
            if n < 4: k("buffer_store_dwordx4 %s, v13, %s, s%d offen offset:%d sc1" % (r, srd(WS), 47+jh, (n >> 1)*2048 + (n & 1)*128))
            else: k("buffer_store_dwordx4 %s, v14, %s, s%d offen sc1" % (r, srd(WS), 47+jh))

def pmisc(k, sT):
    k.comment("clear counters and accumulators, lay out b2")
    k("s_lshl_b32 s40, s3, 6")
    k("v_add_u32 v1, s40, v0")
    k("v_lshlrev_b32 v2, 4, v1")
    for r in range(4): k("v_mov_b32 v%d, 0" % (4+r))
    k("s_lshl_b32 s41, s%d, 12" % sT)
    k("s_add_u32 s42, s41, 0x%x" % CNT)
    k("buffer_store_dwordx4 v[4:7], v2, %s, s42 offen sc1" % srd(WS))
    k("s_add_u32 s42, s41, 0x%x" % ST[1])
    k("s_cmp_lt_u32 s%d, 4" % sT)
    k("s_cselect_b32 s42, s42, 0x%x" % OOB)
    k("buffer_store_dwordx4 v[4:7], v2, %s, s42 offen sc1" % srd(WS))
    done = k.label("done")
    k("s_cmp_eq_u32 s%d, 4" % sT)
    k.settle()
    k("s_cbranch_scc0 " + done)
    k.srd(AUX, pB2, D*2)
    k("s_mov_b32 s43, 0x%x" % B2P)
    for n in range(5):
        k("v_add_u32 v8, %d, v1" % (256*n))
        k("v_mul_u32_u24 v9, 3277, v8")
        k("v_lshrrev_b32 v9, 16, v9")
        k("v_mul_u32_u24 v10, 20, v9")
        k("v_sub_u32 v10, v8, v10")
        k("v_and_b32 v11, 3, v9")
        k("v_bfe_u32 v12, v9, 2, 3")
        k("v_lshrrev_b32 v13, 3, v10")
        k("v_lshl_add_u32 v13, v13, 2, v11")
        k("v_and_b32 v14, 7, v10")
        k("v_lshrrev_b32 v15, 1, v11")
        k("v_add_u32 v15, 8, v15")
        k("v_and_b32 v16, 1, v11")
        k("v_and_b32 v17, 3, v10")
        k("v_lshl_add_u32 v16, v16, 2, v17")
        k("v_cmp_gt_u32 vcc, 16, v10")
        k("v_cndmask_b32 v13, v15, v13, vcc")
        k("v_cndmask_b32 v14, v16, v14, vcc")
        k("v_cmp_gt_u32 vcc, 32, v9")
        k("v_cndmask_b32 v15, v14, v12, vcc")
        k("v_cndmask_b32 v16, v12, v14, vcc")
        k("v_mul_u32_u24 v16, 80, v16")
        k("v_lshl_add_u32 v16, v13, 3, v16")
        k("v_add_lshl_u32 v16, v16, v15, 1")
        k("buffer_load_ushort v18, v16, %s, 0 offen" % srd(AUX))
        k("v_lshlrev_b32 v8, 2, v8")
        k("v_lshlrev_b32 v18, 16, v18")
        k("buffer_store_dword v18, v8, %s, s43 offen sc1" % srd(WS))
    k.settle()
    k(done + ":")

def p0_dispatch(k, lend):
    l1, l2, l3 = k.label("w1"), k.label("w2"), k.label("misc")
    k.settle()
    st = k.fork()
    k("s_cmp_lt_u32 s2, 128"); k("s_cbranch_scc0 " + l1)
    px(k, 2); k.settle(); k("s_branch " + lend)
    k.restore(st); k(l1 + ":")
    k("s_sub_u32 s38, s2, 128"); k("s_cmp_lt_u32 s38, 54"); k("s_cbranch_scc0 " + l2)
    pw1(k, 38); k.settle(); k("s_branch " + lend)
    k.restore(st); k(l2 + ":")
    k("s_sub_u32 s38, s2, 182"); k("s_cmp_lt_u32 s38, 54"); k("s_cbranch_scc0 " + l3)
    pw2(k, 38); k.settle(); k("s_branch " + lend)
    k.restore(st); k(l3 + ":")
    k("s_sub_u32 s38, s2, 236")
    pmisc(k, 38); k.settle()

def pmisc2(k, sT):
    k.comment("clear counters and accumulators, lay out b2")
    done, j1 = k.label("done"), k.label("j1")
    k("s_lshl_b32 s40, s3, 6")
    k("v_add_u32 v1, s40, v0")
    k.settle()
    st = k.fork()
    k("s_cmp_eq_u32 s%d, 0" % sT)
    k("s_cbranch_scc0 " + j1)
    for r in range(4): k("v_mov_b32 v%d, 0" % (4+r))
    k("v_lshlrev_b32 v2, 8, v1")
    k("s_mov_b32 s42, 0x%x" % CNT)
    k("buffer_store_dword v4, v2, %s, s42 offen sc1" % srd(WS))
    k("v_lshlrev_b32 v2, 4, v1")
    for n in range(4):
        k("s_mov_b32 s42, 0x%x" % (ST[1] + n*4096))
        k("buffer_store_dwordx4 v[4:7], v2, %s, s42 offen sc1" % srd(WS))
    k.srd(AUX2, pDBG, 256)
    k("v_mov_b32 v8, 1")
    k("s_waitcnt vmcnt(0)")
    k("s_barrier")
    k("s_mov_b64 exec, 1")
    k("buffer_store_dword v8, off, %s, 0 sc1" % srd(AUX2))
    k("s_mov_b64 exec, -1")
    k.settle()
    k("s_branch " + done)
    k.restore(st)
    k(j1 + ":")
    k("s_cmp_eq_u32 s%d, 1" % sT)
    k("s_cbranch_scc0 " + done)
    k.srd(AUX, pB2, D*2)
    k("s_mov_b32 s43, 0x%x" % B2P)
    for n in range(5):
        k("v_add_u32 v8, %d, v1" % (256*n))
        k("v_mul_u32_u24 v9, 3277, v8")
        k("v_lshrrev_b32 v9, 16, v9")
        k("v_mul_u32_u24 v10, 20, v9")
        k("v_sub_u32 v10, v8, v10")
        k("v_and_b32 v11, 3, v9")
        k("v_bfe_u32 v12, v9, 2, 3")
        k("v_lshrrev_b32 v13, 3, v10")
        k("v_lshl_add_u32 v13, v13, 2, v11")
        k("v_and_b32 v14, 7, v10")
        k("v_lshrrev_b32 v15, 1, v11")
        k("v_add_u32 v15, 8, v15")
        k("v_and_b32 v16, 1, v11")
        k("v_and_b32 v17, 3, v10")
        k("v_lshl_add_u32 v16, v16, 2, v17")
        k("v_cmp_gt_u32 vcc, 16, v10")
        k("v_cndmask_b32 v13, v15, v13, vcc")
        k("v_cndmask_b32 v14, v16, v14, vcc")
        k("v_cmp_gt_u32 vcc, 32, v9")
        k("v_cndmask_b32 v15, v14, v12, vcc")
        k("v_cndmask_b32 v16, v12, v14, vcc")
        k("v_mul_u32_u24 v16, 80, v16")
        k("v_lshl_add_u32 v16, v13, 3, v16")
        k("v_add_lshl_u32 v16, v16, v15, 1")
        k("buffer_load_ushort v18, v16, %s, 0 offen" % srd(AUX))
        k("v_lshlrev_b32 v8, 2, v8")
        k("v_lshlrev_b32 v18, 16, v18")
        k("buffer_store_dword v18, v8, %s, s43 offen sc1" % srd(WS))
    k.settle()
    k(done + ":")
```

```python
import sys, json
from common import *
import p0, cph, ff

HEADER = open(__file__.replace("fused.py", "header.txt")).read()
SPIN = 100000
P = ff.P
P.update(n1=2, n2=2, touch=1, ithr=8)

def shard_poll(k, bar, vexp, vt):
    again, ok = k.label("again"), k.label("ok")
    k("v_and_b32 v%d, 15, v0" % vt)
    k("v_lshlrev_b32 v%d, 8, v%d" % (vt, vt))
    k("s_mov_b32 s88, 0x%x" % (GBAR + bar*4096))
    k("s_mov_b32 s91, 0")
    k(again + ":")
    k("buffer_load_dword v%d, v%d, %s, s88 offen sc1" % (vt+1, vt, srd(WS)))
    k("s_add_u32 s91, s91, 1")
    k("s_waitcnt vmcnt(0)")
    k("v_cmp_lt_u32 vcc, v%d, v%d" % (vt+1, vexp))
    k("s_cmp_ge_u32 s91, %d" % SPIN)
    k("s_cbranch_scc1 " + ok)
    k("s_cmp_eq_u64 vcc, 0")
    k("s_cbranch_scc0 " + again)
    k(ok + ":")

def shard_add(k, bar, sshard, vt):
    k("s_lshl_b32 s88, s%d, 8" % sshard)
    k("s_add_u32 s88, s88, 0x%x" % (GBAR + bar*4096))
    k("v_mov_b32 v%d, 1" % vt)
    k("s_mov_b64 exec, 1")
    k("buffer_atomic_add v%d, off, %s, s88 sc1" % (vt, srd(WS)))
    k("s_mov_b64 exec, -1")

def split_waves(k, wave0, others):
    lo, join = k.label("others"), k.label("join")
    k.settle(vm=False)
    st = k.fork()
    k("s_cmp_eq_u32 s3, 0")
    k("s_cbranch_scc0 " + lo)
    wave0(); k.settle()
    k("s_branch " + join)
    k.restore(st)
    k(lo + ":")
    others(); k.settle(vm=False)
    k(join + ":")
    k("s_barrier")
    k.vmq = []; k.lgq = []

def touch_code(k):
    skip, here = k.label("notouch"), k.label("here")
    k("s_sub_u32 s40, s5, 16")
    k("s_lshl_b32 s40, s40, 2")
    k("s_add_u32 s40, s40, s3")
    k("s_lshl_b32 s40, s40, 12")
    k("s_cmp_lt_u32 s40, dft_end-%s-4096" % k.name)
    k("s_cbranch_scc0 " + skip)
    k("s_sub_u32 s42, s6, dft_tables-%s" % k.name)
    k("s_subb_u32 s43, s7, 0")
    k("v_lshl_add_u32 v2, v0, 6, s40")
    k("v_mov_b32 v3, 0")
    k("v_lshl_add_u64 v[2:3], v[2:3], 0, s[42:43]")
    k("global_load_dword v255, v[2:3], off")
    k.vmq.pop()
    k(skip + ":")

def setup(k):
    l1, l2, l3, join = k.label("w1"), k.label("w2"), k.label("misc"), k.label("p0join")
    k.settle()
    st = k.fork()
    k("s_cmp_lt_u32 s2, 128"); k("s_cbranch_scc0 " + l1)
    p0.px(k, 2); k.settle(); k("s_branch " + join)
    k.restore(st); k(l1 + ":")
    if P["touch"]: touch_code(k)
    k("s_sub_u32 s38, s2, 202"); k("s_cmp_lt_u32 s38, 54"); k("s_cbranch_scc0 " + l2)
    p0.pw1(k, 38); k.settle(); k("s_branch " + join)
    k.restore(st); k(l2 + ":")
    k("s_sub_u32 s38, s2, 148"); k("s_cmp_lt_u32 s38, 54"); k("s_cbranch_scc0 " + l3)
    p0.pw2(k, 38); k.settle(); k("s_branch " + join)
    k.restore(st); k(l3 + ":")
    k("s_sub_u32 s38, s2, 128")
    p0.pmisc2(k, 38); k.settle()
    k(join + ":")
    k.vmq = [("st", set(), False)]; k.lgq = []

def build():
    k = Kern(NAME + "_kernel", 256, 256, lds=LDS_BYTES, vgpr=256, agpr=256, sgpr=102)
    prologue(k)
    k.stamp_regs = list(range(70, 90))
    k.stamp("start")
    setup(k)
    k.stamp("p_end")
    k.flush_stamps(STAMP, 0)
    k.stamp_regs = list(range(38, 50)) + list(range(20, 32)) + [100, 101]
    ff.roles(k)
    cph.role_flag(k)
    for layer in range(2):
        bin_, bout = 2*layer, 2*layer + 1
        idle, go = k.label("idle"), k.label("go")
        ff.pre_s(k, layer)
        k.settle()
        entry = k.fork()
        k("s_cmp_eq_u32 s68, 0")
        k("s_cbranch_scc1 " + idle)
        cph.offsets(k, layer)
        cph.pre(k)
        k("v_lshlrev_b32 v1, 4, v0")
        k.wait(vm="st" if layer == 0 else "fin")
        k.stamp("drained")
        k("s_barrier")
        def w0(layer=layer, bin_=bin_):
            if layer == 0: init_check(k)
            k("s_and_b32 s89, s2, 15")
            shard_add(k, bin_, 89, 16)
            k("v_mov_b32 v17, 16")
            shard_poll(k, bin_, 17, 18)
        split_waves(k, w0, lambda: None)
        k.stamp("c_go")
        cph.main(k, ff.w1_dma(k, 0, 16, "w1") + [l for idx in range(P["n1"]) for l in ff.w2_loads(k, idx)])
        k.stamp("c_stored")
        ff.pre_v(k)
        k.wait(vm="cst")
        k.stamp("c_drained")
        k("s_barrier")
        def window3():
            for idx in range(P["n1"], P["n2"]):
                for l in ff.w2_loads(k, idx):
                    l(); k("s_waitcnt vmcnt(%d)" % P["thr"])
        def w0b(bout=bout):
            k("s_lshl_b32 s89, s50, 2"); k("s_add_u32 s89, s89, s51"); k("s_and_b32 s89, s89, 15")
            shard_add(k, bout, 89, 16)
            window3()
            expect164(k, 17)
            shard_poll(k, bout, 17, 18)
        split_waves(k, w0b, lambda: (ff.w1_dma3(k, 64, 148, "w1"), window3(), k("s_waitcnt vmcnt(%d)" % min(5*(P["n2"]-P["n1"]), P["thr"]))))
        k("s_branch " + go)
        k.restore(entry)
        k(idle + ":")
        ff.pre_v(k)
        k.wait(vm="st" if layer == 0 else "fin")
        k("s_barrier")
        def w0i(layer=layer, bin_=bin_):
            if layer == 0: init_check(k)
            k("s_and_b32 s89, s2, 15")
            shard_add(k, bin_, 89, 16)
            if layer == 0:
                k("v_mov_b32 v17, 16")
                shard_poll(k, bin_, 17, 18)
        split_waves(k, w0i, lambda: None)
        ff.w2_touch(k)
        for j, l in enumerate(ff.w1_dma(k, 0, 37, "w1") + [l for idx in range(P["n2"]) for l in ff.w2_loads(k, idx)]):
            l()
            if j >= P["ithr"]: k("s_waitcnt vmcnt(%d)" % P["ithr"])
        k("s_waitcnt vmcnt(0)")
        def w0j(bout=bout):
            expect164(k, 17)
            shard_poll(k, bout, 17, 18)
        split_waves(k, w0j, lambda: None)
        k(go + ":")
        k.stamp("g_go")
        ff.g1(k, layer, P["n2"])
        ff.g2(k, layer)
        k.stamp("issued_end")
        if layer == 1 and k.stamps_on: k("s_waitcnt vmcnt(0)")
        k.stamp("end")
        k.flush_stamps(STAMP, 1 + layer)
        if k.stamps_on and layer == 0: k.vmq.append(("fin", set(), False)); k("s_nop 0")
    finish(k)
    return k

def expect164(k, vd):
    k("v_and_b32 v%d, 15, v0" % vd)
    k("v_cmp_gt_u32 vcc, 4, v%d" % vd)
    k("v_cndmask_b32 v%d, 10, 11, vcc" % vd)

def init_check(k):
    again, ok = k.label("again"), k.label("ok")
    k.srd(AUX2, pDBG, 256)
    k("s_mov_b32 s91, 0")
    k(again + ":")
    k("buffer_load_dword v16, off, %s, 0 sc1" % srd(AUX2))
    k("s_add_u32 s91, s91, 1")
    k("s_waitcnt vmcnt(0)")
    k("v_readfirstlane_b32 s88, v16")
    k("s_cmp_ge_u32 s91, %d" % SPIN)
    k("s_cbranch_scc1 " + ok)
    k("s_cmp_eq_u32 s88, 1")
    k("s_cbranch_scc0 " + again)
    k(ok + ":")

if __name__ == "__main__":
    out = sys.argv[1]
    for a_ in sys.argv[2:]:
        if a_ == "stamps": Kern.stamps_on = True
        else:
            n, val = a_.split("="); P[n] = int(val)
    k = build()
    open(out, "w").write(assemble(HEADER, [k], [k], TABTXT + "dft_end:\n"))
    print(k.count, "nops", k.nops)
    if Kern.stamps_on: json.dump(k.stamp_log, open(out + ".stamps.json", "w"))
```

```python
import re, struct

def f2u(x):
    return struct.unpack("<I", struct.pack("<f", x))[0]

_REG = re.compile(r"^(-?)\|?(v|a|s)(?:(\d+)|\[(\d+):(\d+)\])\|?$")

def regs_of(op):
    op = op.strip()
    if op.startswith("abs(") or op.startswith("-abs("):
        op = op[op.index("(")+1:-1]
    if op in ("vcc", "exec", "m0", "scc"):
        return [(op, 0)]
    if op in ("vcc_lo", "vcc_hi"):
        return [("vcc", 0)]
    if op in ("exec_lo", "exec_hi"):
        return [("exec", 0)]
    m = _REG.match(op)
    if not m:
        return []
    kind = m.group(2)
    if m.group(3) is not None:
        return [(kind, int(m.group(3)))]
    return [(kind, i) for i in range(int(m.group(4)), int(m.group(5))+1)]

TRANS = ("v_exp_f32", "v_log_f32", "v_rcp_f32", "v_rsq_f32", "v_sqrt_f32", "v_sin_f32", "v_cos_f32")
RMW = ("v_fmac_f32", "v_dot2c_f32_bf16", "v_writelane_b32", "v_pk_fmac_f16")

class Ins:
    def __init__(self, text):
        self.text = text
        parts = text.split(None, 1)
        self.op = parts[0]
        rest = parts[1] if len(parts) > 1 else ""
        head = re.split(r"\s(?=(?:quad_perm|op_sel|op_sel_hi|neg_lo|neg_hi):)", rest, 1)
        toks = [t.strip() for t in head[0].split(",")]
        ops = []
        self.mods = ""
        for n, t in enumerate(toks):
            if n == len(toks)-1 and " " in t:
                a, b = t.split(None, 1); ops.append(a); self.mods = b
            elif t:
                ops.append(t)
        if len(head) > 1: self.mods += " " + head[1]
        self.ops = ops
        op = self.op
        R = lambda xs: [r for o in xs for r in regs_of(o)]
        self.w, self.r, self.srcc, self.data = [], [], [], []
        self.passes = 0
        if op.startswith("v_mfma"):
            self.cls = "mfma"
            self.w = R(ops[:1]); self.r = R(ops[1:3]); self.srcc = R(ops[3:4])
            self.passes = 8 if "32x32" in op else (2 if "4x4x4" in op else 4)
        elif op.startswith("buffer_") or op.startswith("global_"):
            self.cls = "vmem"
            lds = "lds" in self.mods.split() or "_lds_" in op
            isbuf = op.startswith("buffer_")
            if "_load" in op:
                if lds: self.r = R(ops)
                else: self.w = R(ops[:1]); self.r = R(ops[1:])
            elif "_store" in op or "_atomic" in op:
                self.data = R(ops[:1]) if isbuf else R(ops[1:2])
                self.r = R(ops)
                if "_atomic" in op and "sc0" in self.mods.split():
                    self.w = R(ops[:1])
            if lds: self.r.append(("m0", 0))
        elif op.startswith("ds_"):
            self.cls = "ds"
            if "read" in op or "permute" in op or "swizzle" in op:
                self.w = R(ops[:1]); self.r = R(ops[1:])
            else:
                self.r = R(ops)
        elif op.startswith("s_load") or op in ("s_memtime", "s_memrealtime"):
            self.cls = "smem"; self.w = R(ops[:1]); self.r = R(ops[1:])
        elif op.startswith("v_"):
            self.cls = "valu"
            if op.startswith("v_permlane") and "swap" in op:
                self.w = R(ops[:2]); self.r = R(ops[:2])
            elif op.startswith("v_cmp"):
                self.w = R(ops[:1]); self.r = R(ops[1:])
            elif "_co_" in op:
                self.w = R(ops[:2]); self.r = R(ops[2:])
            else:
                self.w = R(ops[:1]); self.r = R(ops[1:])
                base = op.replace("_e32", "").replace("_e64", "")
                if base in RMW or "dpp" in op or "quad_perm" in self.mods or "row_" in self.mods:
                    self.r += self.w
        elif op.startswith("s_"):
            self.cls = "salu"
            if op.startswith("s_cmp") or op.startswith("s_cbranch") or op in ("s_branch", "s_barrier", "s_nop", "s_waitcnt", "s_endpgm", "s_sleep", "s_setprio"):
                self.r = R(ops)
            else:
                self.w = R(ops[:1]); self.r = R(ops[1:])
                if "saveexec" in op: self.w.append(("exec", 0))
        else:
            raise ValueError("unknown instruction: " + text)
        self.dpp = self.cls == "valu" and ("dpp" in op or "quad_perm" in self.mods or "row_" in self.mods)
        self.trans = op.replace("_e32", "").replace("_e64", "") in TRANS
        self.wide_store = self.cls == "vmem" and "_store" in op and ("x3" in op or "x4" in op)
        self.states = 1
        if op == "s_nop": self.states = int(ops[0], 0) + 1

def need_states(p, c):
    n = 0
    pw = set(p.w)
    isv = lambda rs: set(r for r in rs if r[0] in "va" and len(r[0]) == 1)
    iss = lambda rs: set(r for r in rs if r[0] in ("s", "vcc"))
    if p.cls == "valu":
        v = isv(pw); s = iss(pw)
        if c.cls == "mfma" and v & set(c.r + c.srcc): n = max(n, 2)
        if c.cls == "valu":
            if c.op.startswith("v_permlane") and v & set(c.r): n = max(n, 2)
            if c.dpp and v & set(c.r): n = max(n, 2)
            if c.op.startswith("v_readlane") or c.op.startswith("v_readfirstlane"):
                if v & set(c.r): n = max(n, 1)
                if s & set(c.r): n = max(n, 4)
            if p.trans and not c.trans and v & set(c.r): n = max(n, 1)
            if s & set(c.r): n = max(n, 2)
            if p.op.startswith("v_dot") and v & set(c.r + c.w):
                if p.op != c.op or v & set(regs_of(c.ops[1]) + regs_of(c.ops[2])): n = max(n, 3)
        if c.cls == "vmem" and s & set(c.r): n = max(n, 5)
        if c.cls == "salu" and s & set(c.r): n = max(n, 4)
        if c.cls in ("vmem", "ds", "mfma") and p.op.startswith("v_dot") and v & set(c.r + c.srcc): n = max(n, 3)
    if p.cls == "salu":
        if ("m0", 0) in pw and ("m0", 0) in c.r and c.cls == "vmem": n = max(n, 1)
    if p.cls == "mfma":
        far = {2: 5, 4: 8, 8: 12}[p.passes]
        if c.cls == "mfma":
            if pw & set(c.r): n = max(n, far)
            if pw & set(c.srcc):
                if not (c.passes == p.passes and c.srcc == p.w): n = max(n, max(far - 2, 4))
                elif p.passes == 2: n = max(n, 2)
            elif pw & set(c.w): n = max(n, far - 2)
        elif c.cls in ("valu", "vmem", "ds") and pw & set(c.r + c.w): n = max(n, far)
        if c.cls in ("valu", "vmem", "ds") and set(p.srcc) & set(c.w): n = max(n, p.passes - 1)
    if p.wide_store and set(p.data) & set(c.w): n = max(n, 2)
    return n

class Kern:
    def __init__(self, name, grid, block=256, lds=0, vgpr=256, agpr=0, sgpr=100):
        self.name, self.grid, self.block, self.lds = name, grid, block, lds
        self.vgpr, self.agpr, self.sgpr = vgpr, agpr, sgpr
        self.lines = []
        self.hist = []
        self.vmq, self.lgq = [], []
        self.nlab = 0
        self.nops = 0
        self.count = {}
    def raw(self, s):
        self.lines.append(s)
    def comment(self, s):
        self.lines.append("    ; " + s)
    def _put(self, ins):
        self.lines.append("    " + ins.text)
        self.hist.append(ins)
        if len(self.hist) > 24: self.hist.pop(0)
        self.count[ins.cls] = self.count.get(ins.cls, 0) + 1
    def _waitcnt(self, vm, lg):
        parts = []
        if vm is not None:
            vm = min(vm, 63); parts.append("vmcnt(%d)" % vm)
            self.vmq = self.vmq[len(self.vmq)-vm:] if vm else []
        if lg is not None:
            lg = min(lg, 15); parts.append("lgkmcnt(%d)" % lg)
            self.lgq = self.lgq[len(self.lgq)-lg:] if lg else []
        if parts:
            self._put(Ins("s_waitcnt " + " ".join(parts)))
    def _after(self, q, pred):
        for n in range(len(q)-1, -1, -1):
            if pred(q[n]): return len(q)-1-n
        return None
    def wait(self, vm=None, lg=None):
        a = b = None
        if vm == "all": a = 0 if self.vmq else None
        elif vm is not None: a = self._after(self.vmq, lambda e: e[0] == vm)
        if lg == "all": b = 0 if self.lgq else None
        elif lg is not None: b = self._after(self.lgq, lambda e: e[0] == lg)
        if b is not None and any(e[2] for e in self.lgq): b = 0
        self._waitcnt(a, b)
    def __call__(self, text, tag=None):
        for l in text.strip("\n").split("\n"):
            l = l.strip()
            if not l: continue
            if l.endswith(":"):
                self.lines.append(l); continue
            ins = Ins(l)
            touched = set(ins.r + ins.w + ins.srcc)
            a = self._after(self.vmq, lambda e: e[1] & touched)
            b = self._after(self.lgq, lambda e: e[1] & touched)
            if b is not None and any(e[2] for e in self.lgq): b = 0
            self._waitcnt(a, b)
            dist = 0; need = 0
            for p in reversed(self.hist):
                need = max(need, need_states(p, ins) - dist)
                dist += p.states
                if dist >= 20: break
            while need > 0:
                n = min(need, 16)
                self._put(Ins("s_nop %d" % (n-1))); self.nops += 1
                need -= n
            self._put(ins)
            if ins.cls == "vmem": self.vmq.append((tag, set(ins.w), False))
            elif ins.cls == "ds": self.lgq.append((tag, set(ins.w), False))
            elif ins.cls == "smem": self.lgq.append((tag, set(ins.w), True))
            if ins.op == "s_waitcnt":
                m = re.search(r"vmcnt\((\d+)\)", l)
                if m: n = int(m.group(1)); self.vmq = self.vmq[len(self.vmq)-n:] if n and n < len(self.vmq) else (self.vmq if n else [])
                m = re.search(r"lgkmcnt\((\d+)\)", l)
                if m: n = int(m.group(1)); self.lgq = self.lgq[len(self.lgq)-n:] if n and n < len(self.lgq) else (self.lgq if n else [])
    stamps_on = False
    dbg_mode = None
    dbg_list = []
    dbg_regs = [100] + list(range(38, 50)) + [21, 22, 23]
    def stamp(self, name):
        if self.dbg_mode:
            if name in self.dbg_mode:
                self("s_memrealtime s[98:99]"); self("s_waitcnt lgkmcnt(0)")
                key = (name, getattr(self, "dbg_layer", 0))
                if key not in self.dbg_list: self.dbg_list.append(key)
                self("s_mov_b32 s%d, s98" % self.dbg_regs[self.dbg_list.index(key)])
            return
        if not self.stamps_on: return
        if not hasattr(self, "stamp_names"): self.stamp_names = []
        n = len(self.stamp_names) if name not in self.stamp_names else self.stamp_names.index(name)
        if name not in self.stamp_names: self.stamp_names.append(name)
        self("s_memrealtime s[98:99]")
        self("s_waitcnt lgkmcnt(0)")
        self("s_mov_b32 s%d, s98" % self.stamp_regs[n])
    def stamp_val(self, name, sreg):
        if not self.stamps_on: return
        if name not in self.stamp_names: self.stamp_names.append(name)
        self("s_mov_b32 s%d, s%d" % (self.stamp_regs[self.stamp_names.index(name)], sreg))
    def flush_stamps(self, base, slot):
        if not self.stamps_on: return
        self("s_lshl_b32 s98, s2, 2")
        self("s_add_u32 s98, s98, s3")
        self("s_lshl_b32 s98, s98, 7")
        self("s_add_u32 s98, s98, 0x%x" % (base + slot*131072))
        for n in range(len(self.stamp_names)):
            self("v_mov_b32 v1, s%d" % self.stamp_regs[n])
            self("buffer_store_dword v1, off, s[8:11], s98 offset:%d" % (4*n))
            self("s_nop 1")
        self.stamp_log = getattr(self, "stamp_log", []) + [(slot, list(self.stamp_names))]
        self.stamp_names = []
    def label(self, base):
        self.nlab += 1
        return "L_%s_%s_%d" % (self.name[:4], base, self.nlab)
    def settle(self, vm=True):
        a = self._after(self.vmq, lambda e: e[1]) if vm else None
        b = self._after(self.lgq, lambda e: e[1])
        if b is not None and any(e[2] for e in self.lgq): b = 0
        self._waitcnt(a, b)
        dist = 0; need = 0
        for p in reversed(self.hist):
            far = {"mfma": 12 if p.passes == 8 else 8, "valu": 5}.get(p.cls, 2 if p.wide_store else 0)
            need = max(need, far - dist); dist += p.states
        if need > 0: self._put(Ins("s_nop %d" % (need-1)))
    def fork(self):
        return (list(self.vmq), list(self.lgq), list(self.hist))
    def restore(self, st):
        self.vmq, self.lgq, self.hist = list(st[0]), list(st[1]), list(st[2])
    def srd(self, s, base, nbytes):
        self("s_mov_b32 s%d, s%d" % (s, base))
        self("s_mov_b32 s%d, s%d" % (s+1, base+1))
        self("s_mov_b32 s%d, 0x%x" % (s+2, nbytes))
        self("s_mov_b32 s%d, 0x00020000" % (s+3))
    def text(self):
        acc = (self.vgpr + 3)//4*4
        nfv = acc + self.agpr if self.agpr else self.vgpr
        code = ".text\n.globl %s\n.p2align 8\n.type %s,@function\n%s:\n%s\n" % (self.name, self.name, self.name, "\n".join(self.lines))
        desc = (".amdhsa_kernel %s\n  .amdhsa_next_free_vgpr %d\n  .amdhsa_next_free_sgpr %d\n  .amdhsa_accum_offset %d\n"
                "  .amdhsa_group_segment_fixed_size 0\n  .amdhsa_kernarg_size 104\n  .amdhsa_user_sgpr_count 2\n"
                "  .amdhsa_user_sgpr_kernarg_segment_ptr 1\n  .amdhsa_system_sgpr_workgroup_id_x 1\n"
                "  .amdhsa_float_denorm_mode_32 3\n.end_amdhsa_kernel\n") % (self.name, nfv, self.sgpr, acc)
        return code, desc

NAME = "interleave_layers__spectral_fnet__dense_activation_squared_relu__prompt"
KA = dict(x=0, seq_re=8, seq_im=16, hid_re=24, hid_im=32, bx=40, w1=48, b1=56, w2=64, b2=72, out=80, dbg=88, ws=96)

def assemble(header, kerns, order, tables=""):
    out = [header]
    if len(order) == 1 and order[0].name == NAME + "_kernel":
        k = order[0]
        out.append("; @launch grid=(%d,1,1) block=(%d,1,1) lds=%d\n" % (k.grid, k.block, k.lds))
    else:
        for k in order:
            out.append("; @launch kernel=%s grid=(%d,1,1) block=(%d,1,1) lds=%d\n" % (k.name, k.grid, k.block, k.lds))
    out.append('.amdgcn_target "amdgcn-amd-amdhsa--gfx950"\n')
    descs = []
    for k in kerns:
        c, d = k.text(); out.append(c); descs.append(d)
    out.append(tables)
    out.append('.section .rodata,"a"\n')
    for d in descs:
        out.append(".p2align 6\n" + d)
    return "".join(out)

def interleave(k, main, fill, per_gap, start=0):
    def put(x):
        if callable(x): x()
        elif isinstance(x, tuple): k(x[0], tag=x[1])
        else: k(x)
    fill = list(fill)
    for n, m in enumerate(main):
        put(m)
        if n >= start:
            for _ in range(per_gap):
                if fill: put(fill.pop(0))
    return fill
```

```python
import sys, json
from common import *
import p0, cph, ff

HEADER = open(__file__.replace("fused.py", "header.txt")).read()
SPIN = 100000
P = ff.P
P.update(n1=2, n2=2, touch=1, ithr=8)

def shard_poll(k, bar, vexp, vt):
    again, ok = k.label("again"), k.label("ok")
    k("v_and_b32 v%d, 15, v0" % vt)
    k("v_lshlrev_b32 v%d, 8, v%d" % (vt, vt))
    k("s_mov_b32 s88, 0x%x" % (GBAR + bar*4096))
    k("s_mov_b32 s91, 0")
    k(again + ":")
    k("buffer_load_dword v%d, v%d, %s, s88 offen sc1" % (vt+1, vt, srd(WS)))
    k("s_add_u32 s91, s91, 1")
    k("s_waitcnt vmcnt(0)")
    k("v_cmp_lt_u32 vcc, v%d, v%d" % (vt+1, vexp))
    k("s_cmp_ge_u32 s91, %d" % SPIN)
    k("s_cbranch_scc1 " + ok)
    k("s_cmp_eq_u64 vcc, 0")
    k("s_cbranch_scc0 " + again)
    k(ok + ":")

def shard_add(k, bar, sshard, vt):
    k("s_lshl_b32 s88, s%d, 8" % sshard)
    k("s_add_u32 s88, s88, 0x%x" % (GBAR + bar*4096))
    k("v_mov_b32 v%d, 1" % vt)
    k("s_mov_b64 exec, 1")
    k("buffer_atomic_add v%d, off, %s, s88 sc1" % (vt, srd(WS)))
    k("s_mov_b64 exec, -1")

def split_waves(k, wave0, others):
    lo, join = k.label("others"), k.label("join")
    k.settle(vm=False)
    st = k.fork()
    k("s_cmp_eq_u32 s3, 0")
    k("s_cbranch_scc0 " + lo)
    wave0(); k.settle()
    k("s_branch " + join)
    k.restore(st)
    k(lo + ":")
    others(); k.settle(vm=False)
    k(join + ":")
    k("s_barrier")
    k.vmq = []; k.lgq = []

def touch_code(k):
    skip, here = k.label("notouch"), k.label("here")
    k("s_sub_u32 s40, s5, 16")
    k("s_lshl_b32 s40, s40, 2")
    k("s_add_u32 s40, s40, s3")
    k("s_lshl_b32 s40, s40, 12")
    k("s_cmp_lt_u32 s40, dft_end-%s-4096" % k.name)
    k("s_cbranch_scc0 " + skip)
    k("s_sub_u32 s42, s6, dft_tables-%s" % k.name)
    k("s_subb_u32 s43, s7, 0")
    k("v_lshl_add_u32 v2, v0, 6, s40")
    k("v_mov_b32 v3, 0")
    k("v_lshl_add_u64 v[2:3], v[2:3], 0, s[42:43]")
    k("global_load_dword v255, v[2:3], off")
    k.vmq.pop()
    k(skip + ":")

def setup(k):
    l1, l2, l3, join = k.label("w1"), k.label("w2"), k.label("misc"), k.label("p0join")
    k.settle()
    st = k.fork()
    k("s_cmp_lt_u32 s2, 128"); k("s_cbranch_scc0 " + l1)
    p0.px(k, 2); k.settle(); k("s_branch " + join)
    k.restore(st); k(l1 + ":")
    if P["touch"]: touch_code(k)
    k("s_sub_u32 s38, s2, 202"); k("s_cmp_lt_u32 s38, 54"); k("s_cbranch_scc0 " + l2)
    p0.pw1(k, 38); k.settle(); k("s_branch " + join)
    k.restore(st); k(l2 + ":")
    k("s_sub_u32 s38, s2, 148"); k("s_cmp_lt_u32 s38, 54"); k("s_cbranch_scc0 " + l3)
    p0.pw2(k, 38); k.settle(); k("s_branch " + join)
    k.restore(st); k(l3 + ":")
    k("s_sub_u32 s38, s2, 128")
    p0.pmisc2(k, 38); k.settle()
    k(join + ":")
    k.vmq = [("st", set(), False)]; k.lgq = []

def build():
    k = Kern(NAME + "_kernel", 256, 256, lds=LDS_BYTES, vgpr=256, agpr=256, sgpr=102)
    prologue(k)
    k.stamp_regs = list(range(70, 90))
    k.stamp("start")
    setup(k)
    k.stamp("p_end")
    k.flush_stamps(STAMP, 0)
    k.stamp_regs = list(range(38, 50)) + list(range(20, 32)) + [100, 101]
    ff.roles(k)
    cph.role_flag(k)
    for layer in range(2):
        k.dbg_layer = layer
        bin_, bout = 2*layer, 2*layer + 1
        idle, go = k.label("idle"), k.label("go")
        ff.pre_s(k, layer)
        k.settle()
        entry = k.fork()
        k("s_cmp_eq_u32 s68, 0")
        k("s_cbranch_scc1 " + idle)
        cph.offsets(k, layer)
        cph.pre(k)
        k("v_lshlrev_b32 v1, 4, v0")
        k.wait(vm="st" if layer == 0 else "fin")
        k.stamp("drained")
        k("s_barrier")
        def w0(layer=layer, bin_=bin_):
            if layer == 0: init_check(k)
            k("s_and_b32 s89, s2, 15")
            shard_add(k, bin_, 89, 16)
            k("v_mov_b32 v17, 16")
            shard_poll(k, bin_, 17, 18)
        split_waves(k, w0, lambda: None)
        k.stamp("c_go")
        cph.main(k, ff.w1_dma(k, 0, 16, "w1") + [l for idx in range(P["n1"]) for l in ff.w2_loads(k, idx)])
        k.stamp("c_stored")
        ff.pre_v(k)
        k.wait(vm="cst")
        k.stamp("c_drained")
        k("s_barrier")
        def window3():
            for idx in range(P["n1"], P["n2"]):
                for l in ff.w2_loads(k, idx):
                    l(); k("s_waitcnt vmcnt(%d)" % P["thr"])
        def w0b(bout=bout):
            k("s_lshl_b32 s89, s50, 2"); k("s_add_u32 s89, s89, s51"); k("s_and_b32 s89, s89, 15")
            shard_add(k, bout, 89, 16)
            window3()
            expect164(k, 17)
            shard_poll(k, bout, 17, 18)
        split_waves(k, w0b, lambda: (ff.w1_dma3(k, 64, 148, "w1"), window3(), k("s_waitcnt vmcnt(%d)" % min(5*(P["n2"]-P["n1"]), P["thr"]))))
        k("s_branch " + go)
        k.restore(entry)
        k(idle + ":")
        ff.pre_v(k)
        k.wait(vm="st" if layer == 0 else "fin")
        k("s_barrier")
        def w0i(layer=layer, bin_=bin_):
            if layer == 0: init_check(k)
            k("s_and_b32 s89, s2, 15")
            shard_add(k, bin_, 89, 16)
            if layer == 0:
                k("v_mov_b32 v17, 16")
                shard_poll(k, bin_, 17, 18)
        split_waves(k, w0i, lambda: None)
        ff.w2_touch(k)
        for j, l in enumerate(ff.w1_dma(k, 0, 37, "w1") + [l for idx in range(P["n2"]) for l in ff.w2_loads(k, idx)]):
            l()
            if j >= P["ithr"]: k("s_waitcnt vmcnt(%d)" % P["ithr"])
        k("s_waitcnt vmcnt(0)")
        def w0j(bout=bout):
            expect164(k, 17)
            shard_poll(k, bout, 17, 18)
        split_waves(k, w0j, lambda: None)
        k(go + ":")
        k.stamp("g_go")
        ff.g1(k, layer, P["n2"])
        ff.g2(k, layer)
        k.stamp("issued_end")
        if layer == 1 and k.stamps_on: k("s_waitcnt vmcnt(0)")
        k.stamp("end")
        k.flush_stamps(STAMP, 1 + layer)
        if k.stamps_on and layer == 0: k.vmq.append(("fin", set(), False)); k("s_nop 0")
    if k.dbg_mode:
        lab = k.label("nodbg")
        k("s_waitcnt vmcnt(0)")
        k.dbg_layer = 2; k.stamp("end")
        k("s_or_b32 s98, s2, s3"); k("s_cmp_eq_u32 s98, 0"); k("s_cbranch_scc0 " + lab)
        k.srd(AUX2, pDBG, 256)
        for n in range(1, len(k.dbg_list)):
            k("s_sub_u32 s98, s%d, s100" % k.dbg_regs[n]); k("v_mov_b32 v1, s98")
            k("buffer_store_dword v1, off, %s, 0 offset:%d" % (srd(AUX2), 4*n)); k("s_nop 1")
        k(lab + ":")
        print(k.dbg_list)
    finish(k)
    return k

def expect164(k, vd):
    k("v_and_b32 v%d, 15, v0" % vd)
    k("v_cmp_gt_u32 vcc, 4, v%d" % vd)
    k("v_cndmask_b32 v%d, 10, 11, vcc" % vd)

def init_check(k):
    again, ok = k.label("again"), k.label("ok")
    k.srd(AUX2, pDBG, 256)
    k("s_mov_b32 s91, 0")
    k(again + ":")
    k("buffer_load_dword v16, off, %s, 0 sc1" % srd(AUX2))
    k("s_add_u32 s91, s91, 1")
    k("s_waitcnt vmcnt(0)")
    k("v_readfirstlane_b32 s88, v16")
    k("s_cmp_ge_u32 s91, %d" % SPIN)
    k("s_cbranch_scc1 " + ok)
    k("s_cmp_eq_u32 s88, 1")
    k("s_cbranch_scc0 " + again)
    k(ok + ":")

if __name__ == "__main__":
    out = sys.argv[1]
    for a_ in sys.argv[2:]:
        if a_ == "stamps": Kern.stamps_on = True
        elif a_.startswith("wsoff="): WSOFF[0] = int(a_[6:]) << 20
        elif a_ == "reuse": H[1] = H[0]; U[1] = U[0]; XG[2] = XG[0]; XG[3] = XG[1]
        elif a_ == "dbg": Kern.dbg_mode = ("start", "drained", "c_go", "c_drained", "g_go", "g1_end", "g2_mfma", "end")
        else:
            n, val = a_.split("="); P[n] = int(val)
    k = build()
    open(out, "w").write(assemble(HEADER, [k], [k], TABTXT + "dft_end:\n"))
    print(k.count, "nops", k.nops)
    if Kern.stamps_on: json.dump(k.stamp_log, open(out + ".stamps.json", "w"))
```

```python
from common import *

sG, sR = 50, 51
vO = [2, 3, 8, 9]
vXW = 4
vTR, vRSR, vRSW, vXR, vDMA, vST = 10, 11, 12, 13, 14, 15
VA, RES, F0R, FAR, TWR, FBR, RSB, AFB, DB = 16, 48, 64, 96, 104, 112, 128, 160, 192

def role(k, lskip):
    k("s_lshr_b32 s50, s5, 2")
    k("s_lshl_b32 s50, s50, 3")
    k("s_add_u32 s50, s50, s4")
    k("s_and_b32 s51, s5, 3")
    k("s_cmp_gt_u32 s50, 40")
    k("s_cbranch_scc1 " + lskip)

def role_flag(k):
    k("s_lshr_b32 s50, s5, 2")
    k("s_lshl_b32 s50, s50, 3")
    k("s_add_u32 s50, s50, s4")
    k("s_and_b32 s51, s5, 3")
    k("s_cmp_le_u32 s50, 40")
    k("s_cselect_b32 s68, 1, 0")

def row_off(k, vd, vk, t):
    k("v_lshrrev_b32 v%d, 9, v%d" % (t, vk))
    k("v_bfe_u32 v%d, v%d, 1, 4" % (vd, vk))
    k("v_lshl_add_u32 v%d, v%d, 4, v%d" % (vd, t, vd))
    k("v_mul_u32_u24 v%d, 40960, v%d" % (vd, vd))
    k("v_and_b32 v%d, 1, v%d" % (t, vk))
    k("v_lshl_add_u32 v%d, v%d, 8, v%d" % (vd, t, vd))
    k("v_bfe_u32 v%d, v%d, 5, 1" % (t, vk))
    k("v_lshl_add_u32 v%d, v%d, 7, v%d" % (vd, t, vd))
    k("v_bfe_u32 v%d, v%d, 6, 3" % (t, vk))
    k("v_lshl_add_u32 v%d, v%d, 4, v%d" % (vd, t, vd))

def pre(k):
    k.comment("column phase: constants and addresses")
    k("v_lshlrev_b32 v%d, 4, v0" % vST)
    k("s_lshl_b32 s52, s50, 10")
    k("s_add_u32 s52, s52, %d" % TAB["F0"])
    k("s_lshl_b32 s53, s51, 11")
    k("s_add_u32 s53, s53, %d" % (TAB["FA"] - 1024))
    k("s_mov_b32 s54, %d" % (TAB["FB"] - 3072))
    for j in range(2):
        k("s_lshl_b32 s55, s3, 1")
        k("s_add_u32 s55, s55, %d" % j)
        k("s_min_u32 s55, s55, 6")
        k("s_cmp_lt_u32 s55, 3")
        k("s_cselect_b32 s56, s53, s54")
        k("s_cmp_eq_u32 s55, 0")
        k("s_cselect_b32 s56, s52, s56")
        k("s_lshl_b32 s55, s55, 10")
        k("s_add_u32 s56, s56, s55")
        k("v_add_u32 v16, s56, v%d" % vST)
        k("v_mov_b32 v17, 0")
        k("v_lshl_add_u64 v[16:17], v[16:17], 0, s[6:7]")
        k("s_add_u32 m0, s55, %d" % L_TAB)
        k("global_load_lds_dwordx4 v[16:17], off", tag="tab")
    k("s_lshl_b32 s52, s51, 2")
    k("s_add_u32 s52, s52, s3")
    k("s_lshl_b32 s52, s52, 10")
    k("v_lshrrev_b32 v34, 5, v0")
    k("v_and_b32 v35, 15, v0")
    k("v_lshl_add_u32 v34, v34, 4, v35")
    k("v_lshl_add_u32 v34, v34, 3, s52")
    tab_addr(k, 38, 34, TAB["TW"])
    for p in range(4):
        k("global_load_dwordx2 %s, v[38:39], off offset:%d" % (v(TWR+2*p, 2), p*256))
    k("s_mul_i32 s58, s3, 18432")
    k("s_add_u32 s58, s58, %d" % L_CU)
    k("s_lshl_b32 s59, s3, 11")
    k("s_add_u32 s59, s59, %d" % L_CRS)
    k("v_lshrrev_b32 v42, 4, v0")
    k("v_lshrrev_b32 v43, 5, v0")
    k("v_bfe_u32 v44, v0, 4, 1")
    k("v_bfe_u32 v45, v0, 3, 1")
    k("v_bfe_u32 v46, v0, 2, 1")
    k("v_and_b32 v47, 3, v0")
    k("v_lshl_add_u32 v1, v43, 1, v45")
    k("v_mul_u32_u24 v1, 1152, v1")
    k("v_lshl_add_u32 v1, v44, 6, v1")
    k("v_lshl_add_u32 v1, v46, 5, v1")
    k("v_lshl_add_u32 v1, v47, 3, v1")
    k("v_add_u32 v%d, s58, v1" % vTR)
    k("v_lshlrev_b32 v1, 6, v45")
    k("v_lshl_add_u32 v1, v42, 4, v1")
    k("v_add_u32 v%d, s59, v1" % vRSR)
    k("v_lshl_add_u32 v%d, v0, 3, s59" % vRSW)
    k("v_and_b32 v1, 31, v0")
    k("v_lshlrev_b32 v1, 4, v1")
    k("v_lshl_add_u32 v%d, v43, 13, v1" % vDMA)
    k("v_lshlrev_b32 v1, 11, v44")
    k("v_bfe_u32 v34, v0, 2, 2")
    k("v_lshl_add_u32 v1, v34, 9, v1")
    k("v_lshl_add_u32 v1, v43, 8, v1")
    k("v_lshl_add_u32 v1, v47, 6, v1")
    k("v_add_u32 v1, s58, v1")
    k("v_bfe_u32 v35, v0, 1, 2")
    for r in range(4):
        k("v_xor_b32 v36, %d, v35" % r)
        k("v_lshl_add_u32 v%d, v36, 4, v1" % (vXW+r))
    k("v_mul_u32_u24 v1, 18432, v43")
    k("v_lshl_add_u32 v1, v44, 8, v1")
    k("v_lshl_add_u32 v1, v34, 6, v1")
    k("s_lshl_b32 s52, s3, 1")
    k("v_add_u32 v36, s52, v45")
    k("v_and_b32 v36, 3, v36")
    k("v_xor_b32 v36, v36, v47")
    k("v_lshl_add_u32 v1, v36, 4, v1")
    k("s_lshl_b32 s52, s3, 9")
    k("s_add_u32 s52, s52, %d" % L_CU)
    k("v_add_u32 v%d, s52, v1" % vXR)
    k("s_lshl_b32 s52, s3, 4")
    k("s_add_u32 s52, s52, s51")
    k("v_and_b32 v34, 15, v0")
    k("v_lshlrev_b32 v34, 6, v34")
    k("v_lshl_add_u32 v34, v42, 2, v34")
    k("v_add_u32 v34, s52, v34")
    row_off(k, vO[0], 34, 1)
    k("v_add_u32 v%d, %d, v%d" % (vO[1], 32*40960, vO[0]))
    k("v_sub_u32 v35, 2048, v34")
    k("v_and_b32 v35, 2047, v35")
    row_off(k, vO[2], 35, 1)
    k("v_sub_u32 v35, 1024, v34")
    k("v_and_b32 v35, 2047, v35")
    row_off(k, vO[3], 35, 1)

def offsets(k, layer):
    k("s_lshl_b32 s60, s3, 10")
    k("s_add_u32 s60, s60, 0x%x" % ST[layer])
    k("s_cmp_eq_u32 s50, 40")
    k("s_cselect_b32 s61, 0, s50")
    k("s_lshl_b32 s62, s61, 16")
    k("s_lshl_b32 s63, s3, 9")
    k("s_add_u32 s62, s62, s63")
    k("s_add_u32 s62, s62, 0x%x" % U[layer])
    k("s_lshl_b32 s63, s50, 9")
    k("s_add_u32 s64, s63, 0x%x" % XG[2*layer])
    k("s_add_u32 s66, s63, 0x%x" % XG[2*layer+1])
    k("s_sub_u32 s65, 0x%x, s63" % (XG[2*layer] + 80*512))
    k("s_sub_u32 s67, 0x%x, s63" % (XG[2*layer+1] + 80*512))
    k("s_cmp_eq_u32 s61, 0")
    k("s_cselect_b32 s65, 0x%x, s65" % OOB)
    k("s_cselect_b32 s67, 0x%x, s67" % OOB)

def main(k, late=(), gate=None):
    late = list(late)
    for aa in range(4):
        if aa: k("s_add_u32 s60, s60, 4096")
        k("buffer_load_dwordx4 %s, v%d, %s, s60 offen sc1" % (v(RSB+4*aa, 4), vST, srd(WS)))
    for aa in range(4):
        for dp in range(4):
            k("s_add_u32 m0, s58, %d" % ((4*aa + dp)*1152))
            k("s_add_u32 s63, s62, %d" % (dp*16384 + aa*2048))
            k("buffer_load_dwordx4 v%d, %s, s63 offen sc1 lds" % (vDMA, srd(WS)), tag="u%d" % aa)
    res = ["buffer_load_dwordx4 %s, v%d, %s, s%d offen sc1" % (v(RES+4*n, 4), vO[n], srd(WS), 64 + (n >> 1)) for n in range(4)]
    for r in range(32): k("v_mov_b32 v%d, 0" % (F0R+r))
    k("v_lshrrev_b32 v16, 5, v0")
    k("v_and_b32 v17, 7, v0")
    k("v_lshlrev_b32 v16, 7, v16")
    k("v_lshl_add_u32 v16, v17, 4, v16")
    for aa in range(4):
        for ri in range(2):
            k("s_mul_i32 s53, s51, %d" % aa)
            k("s_add_u32 s53, s53, %d" % ri)
            k("s_and_b32 s53, s53, 3")
            k("s_lshl_b32 s53, s53, 8")
            k("s_add_u32 s53, s53, %d" % L_TAB)
            k("v_add_u32 v%d, s53, v16" % (18+2*aa+ri))
    k("v_add_u32 v17, %d, v%d" % (L_TAB + 1024, vST))
    k("s_mov_b32 exec_lo, 0xff0000ff")
    k("s_mov_b32 exec_hi, 0xff0000ff")
    for n in range(8):
        k("ds_read_b128 %s, v%d" % (v(F0R+4*n, 4), 18+n))
    k("s_mov_b64 exec, -1")
    for n in range(2): k("ds_read_b128 %s, v17 offset:%d" % (v(FAR+4*n, 4), n*1024))
    for n in range(4): k("ds_read_b128 %s, v17 offset:%d" % (v(FBR+4*n, 4), 2048 + n*1024))
    c = f2u(1.0/D)
    for aa in range(4):
        b = RSB + 4*aa
        for e in range(2):
            k("v_mul_f32 v%d, 0x%x, v%d" % (b+2*e, c, b+2*e))
            k("v_mul_f32 v%d, 0x%x, v%d" % (b+2*e+1, c, b+2*e+1))
        for e in range(2):
            k("v_fma_f32 v%d, -v%d, v%d, v%d" % (b+2*e+1, b+2*e, b+2*e, b+2*e+1))
        for e in range(2):
            k("v_max_f32 v%d, 0, v%d" % (b+2*e+1, b+2*e+1))
        for e in range(2):
            k("v_add_f32 v%d, 0x%x, v%d" % (b+2*e+1, f2u(1e-5), b+2*e+1))
        for e in range(2):
            k("v_rsq_f32 v%d, v%d" % (b+e, b+2*e+1))
        k("ds_write_b64 v%d, %s offset:%d" % (vRSW, v(b, 2), aa*512))
    def reads(aa):
        out = []
        for p in range(4):
            for h in range(2):
                out.append("ds_read_b64_tr_b16 %s, v%d offset:%d" % (v(AFB+16*(aa & 1)+4*p+2*h, 2), vTR, aa*4608 + h*512 + p*128))
        for p in range(4):
            out.append("ds_read_b128 %s, v%d offset:%d" % (v(RSB+16*(aa & 1)+4*p, 4), vRSR, aa*512 + p*128))
        return out
    def mfmas(aa):
        return ["v_mfma_f32_16x16x32_bf16 %s, %s, %s, 0" % (v(DB+32*(aa & 1)+8*p+4*ri, 4), v(AFB+16*(aa & 1)+4*p, 4), v(F0R+8*aa+4*ri, 4))
                for p in range(4) for ri in range(2)]
    def fmas(aa):
        op = "v_mul_f32" if aa == 0 else "v_fmac_f32"
        return ["%s v%d, v%d, v%d" % (op, VA+8*p+e, DB+32*(aa & 1)+8*p+e, RSB+16*(aa & 1)+4*p+(e & 3))
                for p in range(4) for e in range(8)]
    raw = k
    class Dripper:
        def __call__(self, text, tag=None):
            raw(text, tag=tag); raw.drip()
        def __getattr__(self, n): return getattr(raw, n)
    k = Dripper()
    k.wait(vm="u0")
    k.stamp("c_u0")
    for l in reads(0): k(l)
    for aa in range(4):
        fill = fmas(aa-1) if aa else []
        m = mfmas(aa)
        if aa == 0:
            for l in m: k(l)
        else:
            rest = interleave(k, m, fill, 4)
            for l in rest: k(l)
        if aa < 2:
            k(res[2*aa]); k(res[2*aa+1])
        if aa == 1:
            if gate: gate[0]()
            else: raw.bg = late
        if aa < 3:
            k.wait(vm="u%d" % (aa+1))
            for l in reads(aa+1): k(l)
    if gate:
        gate[1](); raw.bg = late
    fm = fmas(3)
    for p in range(4):
        for l in fm[8*p:8*p+8]: k(l)
        for r in range(4):
            k("v_cvt_pk_bf16_f32 v%d, v%d, v%d" % (AFB+4*p+r, VA+8*p+r, VA+8*p+4+r))
        for ri in range(2):
            k("v_mfma_f32_16x16x32_bf16 %s, %s, %s, 0" % (v(DB+8*p+4*ri, 4), v(AFB+4*p, 4), v(FAR+4*ri, 4)))
    for p in range(4):
        c_, s_ = TWR+2*p, TWR+2*p+1
        for r in range(4):
            k("v_mul_f32 v%d, v%d, v%d" % (RSB+8*p+2*r, DB+8*p+r, c_))
            k("v_mul_f32 v%d, v%d, v%d" % (RSB+8*p+2*r+1, DB+8*p+r, s_))
        for r in range(4):
            k("v_fma_f32 v%d, -v%d, v%d, v%d" % (RSB+8*p+2*r, DB+8*p+4+r, s_, RSB+8*p+2*r))
            k("v_fmac_f32 v%d, v%d, v%d" % (RSB+8*p+2*r+1, DB+8*p+4+r, c_))
        for r in range(4):
            k("v_cvt_pk_bf16_f32 v%d, v%d, v%d" % (VA+4*r+p, RSB+8*p+2*r, RSB+8*p+2*r+1))
    for r in range(4):
        k("ds_write_b128 v%d, %s" % (vXW+r, v(VA+4*r, 4)), tag="xw")
    for n in range(4):
        for jj in range(4):
            lo, hi = (2*jj, 2*jj+1) if n < 2 else (7-2*jj, 6-2*jj)
            k("v_lshlrev_b32 v%d, 16, v%d" % (F0R+8*n+lo, RES+4*n+jj))
            k("v_and_b32 v%d, 0xffff0000, v%d" % (F0R+8*n+hi, RES+4*n+jj))
    k.wait(lg="xw")
    k("s_barrier")
    for ch in range(2):
        for ks in range(2):
            k("ds_read_b128 %s, v%d offset:%d" % (v(AFB+8*ch+4*ks, 4), vXR, ks*36864 + ch*2048), tag="xr")
    for ks in range(2):
        for n in range(4):
            for ch in range(2):
                d = v(DB+8*n+4*ch, 4)
                k("v_mfma_f32_16x16x32_bf16 %s, %s, %s, %s" % (d, v(AFB+8*ch+4*ks, 4), v(FBR+8*ks+4*(n & 1), 4), v(F0R+8*n+4*ch, 4) if ks == 0 else d))
    left, raw.bg = raw.bg, []
    for n in range(4):
        for jj in range(4):
            lo, hi = (2*jj, 2*jj+1) if n < 2 else (7-2*jj, 6-2*jj)
            k("v_cvt_pk_bf16_f32 v%d, v%d, v%d" % (DB+32+4*n+jj, DB+8*n+lo, DB+8*n+hi))
        k("buffer_store_dwordx4 %s, v%d, %s, s%d offen sc1" % (v(DB+32+4*n, 4), vO[n], srd(WS), 66 + (n >> 1)), tag="cst")
    for l in left: l()
    if left: print('column phase: %d background loads left for after the stores' % len(left))
```

```python
import re, struct

def f2u(x):
    return struct.unpack("<I", struct.pack("<f", x))[0]

_REG = re.compile(r"^(-?)\|?(v|a|s)(?:(\d+)|\[(\d+):(\d+)\])\|?$")

def regs_of(op):
    op = op.strip()
    if op.startswith("abs(") or op.startswith("-abs("):
        op = op[op.index("(")+1:-1]
    if op in ("vcc", "exec", "m0", "scc"):
        return [(op, 0)]
    if op in ("vcc_lo", "vcc_hi"):
        return [("vcc", 0)]
    if op in ("exec_lo", "exec_hi"):
        return [("exec", 0)]
    m = _REG.match(op)
    if not m:
        return []
    kind = m.group(2)
    if m.group(3) is not None:
        return [(kind, int(m.group(3)))]
    return [(kind, i) for i in range(int(m.group(4)), int(m.group(5))+1)]

TRANS = ("v_exp_f32", "v_log_f32", "v_rcp_f32", "v_rsq_f32", "v_sqrt_f32", "v_sin_f32", "v_cos_f32")
RMW = ("v_fmac_f32", "v_dot2c_f32_bf16", "v_writelane_b32", "v_pk_fmac_f16")

class Ins:
    def __init__(self, text):
        self.text = text
        parts = text.split(None, 1)
        self.op = parts[0]
        rest = parts[1] if len(parts) > 1 else ""
        head = re.split(r"\s(?=(?:quad_perm|op_sel|op_sel_hi|neg_lo|neg_hi):)", rest, 1)
        toks = [t.strip() for t in head[0].split(",")]
        ops = []
        self.mods = ""
        for n, t in enumerate(toks):
            if n == len(toks)-1 and " " in t:
                a, b = t.split(None, 1); ops.append(a); self.mods = b
            elif t:
                ops.append(t)
        if len(head) > 1: self.mods += " " + head[1]
        self.ops = ops
        op = self.op
        R = lambda xs: [r for o in xs for r in regs_of(o)]
        self.w, self.r, self.srcc, self.data = [], [], [], []
        self.passes = 0
        if op.startswith("v_mfma"):
            self.cls = "mfma"
            self.w = R(ops[:1]); self.r = R(ops[1:3]); self.srcc = R(ops[3:4])
            self.passes = 8 if "32x32" in op else (2 if "4x4x4" in op else 4)
        elif op.startswith("buffer_") or op.startswith("global_"):
            self.cls = "vmem"
            lds = "lds" in self.mods.split() or "_lds_" in op
            isbuf = op.startswith("buffer_")
            if "_load" in op:
                if lds: self.r = R(ops)
                else: self.w = R(ops[:1]); self.r = R(ops[1:])
            elif "_store" in op or "_atomic" in op:
                self.data = R(ops[:1]) if isbuf else R(ops[1:2])
                self.r = R(ops)
                if "_atomic" in op and "sc0" in self.mods.split():
                    self.w = R(ops[:1])
            if lds: self.r.append(("m0", 0))
        elif op.startswith("ds_"):
            self.cls = "ds"
            if "read" in op or "permute" in op or "swizzle" in op:
                self.w = R(ops[:1]); self.r = R(ops[1:])
            else:
                self.r = R(ops)
        elif op.startswith("s_load") or op in ("s_memtime", "s_memrealtime"):
            self.cls = "smem"; self.w = R(ops[:1]); self.r = R(ops[1:])
        elif op.startswith("v_"):
            self.cls = "valu"
            if op.startswith("v_permlane") and "swap" in op:
                self.w = R(ops[:2]); self.r = R(ops[:2])
            elif op.startswith("v_cmp"):
                self.w = R(ops[:1]); self.r = R(ops[1:])
            elif "_co_" in op:
                self.w = R(ops[:2]); self.r = R(ops[2:])
            else:
                self.w = R(ops[:1]); self.r = R(ops[1:])
                base = op.replace("_e32", "").replace("_e64", "")
                if base in RMW or "dpp" in op or "quad_perm" in self.mods or "row_" in self.mods:
                    self.r += self.w
        elif op.startswith("s_"):
            self.cls = "salu"
            if op.startswith("s_cmp") or op.startswith("s_cbranch") or op in ("s_branch", "s_barrier", "s_nop", "s_waitcnt", "s_endpgm", "s_sleep", "s_setprio"):
                self.r = R(ops)
            else:
                self.w = R(ops[:1]); self.r = R(ops[1:])
                if "saveexec" in op: self.w.append(("exec", 0))
        else:
            raise ValueError("unknown instruction: " + text)
        self.dpp = self.cls == "valu" and ("dpp" in op or "quad_perm" in self.mods or "row_" in self.mods)
        self.trans = op.replace("_e32", "").replace("_e64", "") in TRANS
        self.wide_store = self.cls == "vmem" and "_store" in op and ("x3" in op or "x4" in op)
        self.states = 1
        if op == "s_nop": self.states = int(ops[0], 0) + 1

def need_states(p, c):
    n = 0
    pw = set(p.w)
    isv = lambda rs: set(r for r in rs if r[0] in "va" and len(r[0]) == 1)
    iss = lambda rs: set(r for r in rs if r[0] in ("s", "vcc"))
    if p.cls == "valu":
        v = isv(pw); s = iss(pw)
        if c.cls == "mfma" and v & set(c.r + c.srcc): n = max(n, 2)
        if c.cls == "valu":
            if c.op.startswith("v_permlane") and v & set(c.r): n = max(n, 2)
            if c.dpp and v & set(c.r): n = max(n, 2)
            if c.op.startswith("v_readlane") or c.op.startswith("v_readfirstlane"):
                if v & set(c.r): n = max(n, 1)
                if s & set(c.r): n = max(n, 4)
            if p.trans and not c.trans and v & set(c.r): n = max(n, 1)
            if s & set(c.r): n = max(n, 2)
            if p.op.startswith("v_dot") and v & set(c.r + c.w):
                if p.op != c.op or v & set(regs_of(c.ops[1]) + regs_of(c.ops[2])): n = max(n, 3)
        if c.cls == "vmem" and s & set(c.r): n = max(n, 5)
        if c.cls == "salu" and s & set(c.r): n = max(n, 4)
        if c.cls in ("vmem", "ds", "mfma") and p.op.startswith("v_dot") and v & set(c.r + c.srcc): n = max(n, 3)
    if p.cls == "salu":
        if ("m0", 0) in pw and ("m0", 0) in c.r and c.cls == "vmem": n = max(n, 1)
    if p.cls == "mfma":
        far = {2: 5, 4: 8, 8: 12}[p.passes]
        if c.cls == "mfma":
            if pw & set(c.r): n = max(n, far)
            if pw & set(c.srcc):
                if not (c.passes == p.passes and c.srcc == p.w): n = max(n, max(far - 2, 4))
                elif p.passes == 2: n = max(n, 2)
            elif pw & set(c.w): n = max(n, far - 2)
        elif c.cls in ("valu", "vmem", "ds") and pw & set(c.r + c.w): n = max(n, far)
        if c.cls in ("valu", "vmem", "ds") and set(p.srcc) & set(c.w): n = max(n, p.passes - 1)
    if p.wide_store and set(p.data) & set(c.w): n = max(n, 2)
    return n

class Kern:
    def __init__(self, name, grid, block=256, lds=0, vgpr=256, agpr=0, sgpr=100):
        self.name, self.grid, self.block, self.lds = name, grid, block, lds
        self.vgpr, self.agpr, self.sgpr = vgpr, agpr, sgpr
        self.lines = []
        self.hist = []
        self.vmq, self.lgq = [], []
        self.nlab = 0
        self.nops = 0
        self.tails = []
        self.writer = {}
        self.protected = set()
        self.bg, self.bg_gap, self.since_vm = [], 14, 0
        self.count = {}
    def raw(self, s):
        self.lines.append(s)
    def comment(self, s):
        self.lines.append("    ; " + s)
    def _put(self, ins):
        self.lines.append("    " + ins.text)
        self.hist.append(ins)
        if len(self.hist) > 24: self.hist.pop(0)
        self.count[ins.cls] = self.count.get(ins.cls, 0) + 1
    def _waitcnt(self, vm, lg):
        parts = []
        if vm is not None:
            vm = min(vm, 63); parts.append("vmcnt(%d)" % vm)
            self.vmq = self.vmq[len(self.vmq)-vm:] if vm else []
        if lg is not None:
            lg = min(lg, 15); parts.append("lgkmcnt(%d)" % lg)
            self.lgq = self.lgq[len(self.lgq)-lg:] if lg else []
        if parts:
            self._put(Ins("s_waitcnt " + " ".join(parts)))
    def _after(self, q, pred):
        for n in range(len(q)-1, -1, -1):
            if pred(q[n]): return len(q)-1-n
        return None
    def wait(self, vm=None, lg=None):
        a = b = None
        if vm == "all": a = 0 if self.vmq else None
        elif vm is not None: a = self._after(self.vmq, lambda e: e[0] == vm)
        if lg == "all": b = 0 if self.lgq else None
        elif lg is not None: b = self._after(self.lgq, lambda e: e[0] == lg)
        if b is not None and any(e[2] for e in self.lgq): b = 0
        self._waitcnt(a, b)
    def __call__(self, text, tag=None):
        for l in text.strip("\n").split("\n"):
            l = l.strip()
            if not l: continue
            if l.endswith(":"):
                self.lines.append(l); continue
            ins = Ins(l)
            touched = set(ins.r + ins.w + ins.srcc)
            a = self._after(self.vmq, lambda e: e[1] & touched)
            b = self._after(self.lgq, lambda e: e[1] & touched)
            if b is not None and any(e[2] for e in self.lgq): b = 0
            self._waitcnt(a, b)
            dist = 0; need = 0
            for p in reversed(self.hist):
                need = max(need, need_states(p, ins) - dist)
                dist += p.states
                if dist >= 20: break
            while need > 0:
                n = min(need, 16)
                self._put(Ins("s_nop %d" % (n-1))); self.nops += 1
                need -= n
            if ins.op.startswith("global_"):
                pair = regs_of(ins.ops[0] if "_lds_" in ins.op else ins.ops[1])
                assert len(pair) == 2 and all(self.writer.get(r) == "v_lshl_add_u64" for r in pair), "unsafe address: " + l
            assert not any(r[0] == "s" and r[1] in self.protected for r in ins.w), "write to a protected register: " + l
            for r in ins.w: self.writer[r] = ins.op
            self._put(ins)
            self.since_vm = 0 if ins.cls == "vmem" else self.since_vm + (4 if ins.cls == "mfma" else 1)
            if ins.cls == "vmem": self.vmq.append((tag, set(ins.w), False))
            elif ins.cls == "ds": self.lgq.append((tag, set(ins.w), False))
            elif ins.cls == "smem": self.lgq.append((tag, set(ins.w), True))
            if ins.op == "s_waitcnt":
                m = re.search(r"vmcnt\((\d+)\)", l)
                if m: n = int(m.group(1)); self.vmq = self.vmq[len(self.vmq)-n:] if n and n < len(self.vmq) else (self.vmq if n else [])
                m = re.search(r"lgkmcnt\((\d+)\)", l)
                if m: n = int(m.group(1)); self.lgq = self.lgq[len(self.lgq)-n:] if n and n < len(self.lgq) else (self.lgq if n else [])
    stamps_on = False
    dbg_mode = None
    dbg_list = []
    dbg_regs = [100] + list(range(38, 47)) + [49] + list(range(24, 32))
    def stamp(self, name):
        if self.dbg_mode:
            if name in self.dbg_mode:
                self("s_memrealtime s[98:99]"); self("s_waitcnt lgkmcnt(0)")
                key = (name, getattr(self, "dbg_layer", 0))
                if key not in self.dbg_list: self.dbg_list.append(key)
                self("s_mov_b32 s%d, s98" % self.dbg_regs[self.dbg_list.index(key)])
            return
        if not self.stamps_on: return
        if not hasattr(self, "stamp_names"): self.stamp_names = []
        n = len(self.stamp_names) if name not in self.stamp_names else self.stamp_names.index(name)
        if name not in self.stamp_names: self.stamp_names.append(name)
        self("s_memrealtime s[98:99]")
        self("s_waitcnt lgkmcnt(0)")
        self("s_mov_b32 s%d, s98" % self.stamp_regs[n])
    def stamp_val(self, name, sreg):
        if not self.stamps_on: return
        if name not in self.stamp_names: self.stamp_names.append(name)
        self("s_mov_b32 s%d, s%d" % (self.stamp_regs[self.stamp_names.index(name)], sreg))
    def flush_stamps(self, base, slot):
        if not self.stamps_on: return
        self("s_lshl_b32 s98, s2, 2")
        self("s_add_u32 s98, s98, s3")
        self("s_lshl_b32 s98, s98, 7")
        self("s_add_u32 s98, s98, 0x%x" % (base + slot*131072))
        for n in range(len(self.stamp_names)):
            self("v_mov_b32 v1, s%d" % self.stamp_regs[n])
            self("buffer_store_dword v1, off, s[8:11], s98 offset:%d" % (4*n))
            self("s_nop 1")
        self.stamp_log = getattr(self, "stamp_log", []) + [(slot, list(self.stamp_names))]
        self.stamp_names = []
    def drip(self):
        if self.bg and self.since_vm >= self.bg_gap:
            self.bg.pop(0)()
    def label(self, base):
        self.nlab += 1
        return "L_%s_%s_%d" % (self.name[:4], base, self.nlab)
    def settle(self, vm=True):
        a = self._after(self.vmq, lambda e: e[1]) if vm else None
        b = self._after(self.lgq, lambda e: e[1])
        if b is not None and any(e[2] for e in self.lgq): b = 0
        self._waitcnt(a, b)
        dist = 0; need = 0
        for p in reversed(self.hist):
            far = {"mfma": 12 if p.passes == 8 else 8, "valu": 5}.get(p.cls, 2 if p.wide_store else 0)
            need = max(need, far - dist); dist += p.states
        if need > 0: self._put(Ins("s_nop %d" % (need-1)))
    def fork(self):
        return (list(self.vmq), list(self.lgq), list(self.hist))
    def restore(self, st):
        self.vmq, self.lgq, self.hist = list(st[0]), list(st[1]), list(st[2])
    def srd(self, s, base, nbytes):
        self("s_mov_b32 s%d, s%d" % (s, base))
        self("s_mov_b32 s%d, s%d" % (s+1, base+1))
        self("s_mov_b32 s%d, 0x%x" % (s+2, nbytes))
        self("s_mov_b32 s%d, 0x00020000" % (s+3))
    def text(self):
        acc = (self.vgpr + 3)//4*4
        nfv = acc + self.agpr if self.agpr else self.vgpr
        code = ".text\n.globl %s\n.p2align 8\n.type %s,@function\n%s:\n%s\n" % (self.name, self.name, self.name, "\n".join(self.lines))
        desc = (".amdhsa_kernel %s\n  .amdhsa_next_free_vgpr %d\n  .amdhsa_next_free_sgpr %d\n  .amdhsa_accum_offset %d\n"
                "  .amdhsa_group_segment_fixed_size 0\n  .amdhsa_kernarg_size 104\n  .amdhsa_user_sgpr_count 2\n"
                "  .amdhsa_user_sgpr_kernarg_segment_ptr 1\n  .amdhsa_system_sgpr_workgroup_id_x 1\n"
                "  .amdhsa_float_denorm_mode_32 3\n.end_amdhsa_kernel\n") % (self.name, nfv, self.sgpr, acc)
        return code, desc

NAME = "interleave_layers__spectral_fnet__dense_activation_squared_relu__prompt"
KA = dict(x=0, seq_re=8, seq_im=16, hid_re=24, hid_im=32, bx=40, w1=48, b1=56, w2=64, b2=72, out=80, dbg=88, ws=96)

def assemble(header, kerns, order, tables=""):
    out = [header]
    if len(order) == 1 and order[0].name == NAME + "_kernel":
        k = order[0]
        out.append("; @launch grid=(%d,1,1) block=(%d,1,1) lds=%d\n" % (k.grid, k.block, k.lds))
    else:
        for k in order:
            out.append("; @launch kernel=%s grid=(%d,1,1) block=(%d,1,1) lds=%d\n" % (k.name, k.grid, k.block, k.lds))
    out.append('.amdgcn_target "amdgcn-amd-amdhsa--gfx950"\n')
    descs = []
    for k in kerns:
        c, d = k.text(); out.append(c); descs.append(d)
    out.append(tables)
    out.append('.section .rodata,"a"\n')
    for d in descs:
        out.append(".p2align 6\n" + d)
    return "".join(out)

def interleave(k, main, fill, per_gap, start=0):
    def put(x):
        if callable(x): x()
        elif isinstance(x, tuple): k(x[0], tag=x[1])
        else: k(x)
    fill = list(fill)
    for n, m in enumerate(main):
        put(m)
        if n >= start:
            for _ in range(per_gap):
                if fill: put(fill.pop(0))
    return fill
```

```python
from common import *

sKP, sC, sRH, sCB = 70, 71, 72, 73
sXO, sW1O, sHS, sHS3 = 74, 75, 76, 77
sCNT, sCNTP = 78, 79
sHB = [80, 81, 82, 83]
sWB = [84, 85, 86, 87]
sT0, sT1, sT2 = 88, 89, 90
sSPIN = 91
vL, vA0, vA1, vA2, vX, vH3, vBQ, vSIG, vONE, vBS, vRW = 1, 2, 3, 4, 5, 6, 7, 8, 9, 10, 11
vHL = 12
SB, TMP = 16, 24
ACCP, ACCS, GR = 32, 80, 88
XBR = 96
RING, NRING = 220, 9
G2ACC, HR, RB, RT = 16, 96, 216, 236
SPIN_LIMIT = 100000
NS = 7
M80R = 40

P = dict(J=3, touch2=0, slp=0, map42=1, la=24, nx=3, epi=3, w2end=120, h0=40, hB=-1, hC=3, thr=60)

def roles(k):
    if P["map42"]:
        k("s_lshr_b32 s70, s4, 1")
        k("s_lshl_b32 s70, s70, 2")
        k("s_lshr_b32 s88, s5, 3")
        k("s_add_u32 s70, s70, s88")
        k("s_and_b32 s88, s4, 1")
        k("s_and_b32 s89, s5, 7")
        k("s_lshl_b32 s71, s88, 3")
        k("s_add_u32 s71, s71, s89")
        k("s_lshr_b32 s72, s89, 2")
        k("s_and_b32 s73, s89, 3")
        k("s_lshl_b32 s88, s88, 2")
        k("s_add_u32 s73, s73, s88")
    else:
        k("s_lshr_b32 s70, s5, 4")
        k("s_lshl_b32 s88, s4, 1")
        k("s_add_u32 s70, s70, s88")
        k("s_and_b32 s71, s5, 15")
        k("s_lshr_b32 s72, s71, 3")
        k("s_and_b32 s73, s71, 7")
    k("s_mul_i32 s75, s71, %d" % LW1)
    k("s_lshl_b32 s69, s3, 10")
    k("s_add_u32 s75, s75, s69")
    k("s_add_u32 s75, s75, 0x%x" % W1P)

def w1_dma3(k, lo, hi, tag, nw=3):
    k("s_add_u32 s89, s75, %d" % ((lo-4+nw)*1024))
    k("s_add_u32 s88, s69, %d" % ((lo-4+nw)*1024))
    for j in range((hi - lo)//nw):
        k("s_add_u32 m0, s88, %d" % (j*nw*1024))
        if j: k("s_add_u32 s89, s89, %d" % (nw*1024))
        else: k("s_nop 0")
        k("buffer_load_dwordx4 v%d, %s, s89 offen lds" % (vL, srd(WS)), tag=tag)
        if j >= P["thr"]: k("s_waitcnt vmcnt(%d)" % P["thr"])

def w1_dma(k, lo, hi, tag):
    out = []
    for j in range(lo, hi):
        def one(j=j):
            k("s_add_u32 m0, s69, %d" % (j*4096))
            k("s_add_u32 s88, s75, %d" % (j*4096))
            k("buffer_load_dwordx4 v%d, %s, s88 offen lds" % (vL, srd(WS)), tag=tag)
        out.append(one)
    return out

def pre_v(k):
    k.comment("feed-forward: addresses")
    k("v_lshlrev_b32 v%d, 4, v0" % vL)
    k("v_add_u32 v%d, %d, v%d" % (vA0, PT_OFF[0], vL))
    k("v_add_u32 v%d, %d, v%d" % (vA1, PT_OFF[2], vL))
    k("v_add_u32 v%d, %d, v%d" % (vA2, PT_OFF[4], vL))
    k("v_and_b32 v16, 15, v0")
    k("v_lshrrev_b32 v17, 4, v0")
    k("v_lshlrev_b32 v18, 4, v16")
    k("v_lshl_add_u32 v%d, v17, 9, v18" % vX)
    k("s_mul_i32 s88, s71, 3")
    k("v_add_u32 v19, s88, v17")
    k("v_and_b32 v20, 1, v19")
    k("v_lshl_add_u32 v18, v20, 3, v18")
    k("v_bfe_u32 v20, v19, 1, 2")
    k("v_lshl_add_u32 v18, v20, 8, v18")
    k("v_lshrrev_b32 v20, 3, v19")
    k("v_add_u32 v20, 48, v20")
    k("v_lshl_add_u32 v18, v20, 12, v18")
    k("v_add_u32 v19, 1, v17")
    k("v_lshrrev_b32 v19, 2, v19")
    k("v_lshl_add_u32 v%d, v19, 30, v18" % vH3)
    k("v_lshrrev_b32 v19, 2, v16")
    k("v_lshl_add_u32 v19, v19, 4, v16")
    k("v_lshlrev_b32 v%d, 2, v19" % vBQ)
    k("v_add_lshl_u32 v%d, v16, 48, 2" % vBS)
    k("s_lshl_b32 s88, s3, 7")
    k("s_add_u32 s88, s88, %d" % L_RS2)
    k("v_lshl_add_u32 v%d, v16, 2, s88" % vRW)
    k("v_min_u32 v16, 1, v0")
    k("v_lshlrev_b32 v%d, 30, v16" % vSIG)
    k("v_mov_b32 v%d, 1" % vONE)
    for r, m in ((1, 0x22222222), (2, 0x44444444), (3, 0x88888888)):
        k("s_mov_b32 s%d, 0x%x" % (90+2*r, m)); k("s_mov_b32 s%d, 0x%x" % (91+2*r, m))
    for lam in range(4):
        k("s_add_u32 s88, s3, %d" % (lam+1))
        k("s_and_b32 s88, s88, 3")
        k("s_lshl_b32 s88, s88, 10")
        k("v_add_u32 v%d, s88, v%d" % (vHL+lam, vL))

def pre_s(k, layer):
    k("s_lshl_b32 s88, s70, 2")
    k("s_add_u32 s88, s88, s3")
    k("s_mul_i32 s74, s88, 40960")
    k("s_add_u32 s74, s74, 0x%x" % XG[2*layer+1])
    k("s_lshr_b32 s89, s88, 1")
    k("s_mul_i32 s77, s89, %d" % HBLK)
    k("s_and_b32 s90, s3, 1")
    k("s_lshl_b32 s90, s90, 11")
    k("s_add_u32 s77, s77, s90")
    k("s_add_u32 s77, s77, 0x%x" % H[layer])
    k("s_lshl_b32 s90, s71, 13")
    k("s_add_u32 s76, s77, s90")
    k("s_mul_i32 s78, s89, 768")
    k("s_add_u32 s78, s78, 0x%x" % (CNT + layer*32*768))
    k("s_lshl_b32 s89, s70, 1")
    k("s_add_u32 s89, s89, s72")
    k("s_mul_i32 s79, s89, 768")
    k("s_add_u32 s79, s79, 0x%x" % (CNT + layer*32*768))
    k("s_mul_i32 s89, s89, %d" % HBLK)
    k("s_add_u32 s89, s89, 0x%x" % H[layer])
    step_bases(k, 89, 4096, sHB)

def step_bases(k, base, unit, regs):
    k("s_mul_i32 s88, s3, %d" % (8*unit)); k("s_add_u32 s%d, s%d, s88" % (regs[0], base))
    k("s_mul_i32 s88, s3, %d" % unit); k("s_add_u32 s88, s88, %d" % (48*unit)); k("s_add_u32 s%d, s%d, s88" % (regs[1], base))
    k("s_add_u32 s%d, s%d, %d" % (regs[2], regs[1], 4*unit))
    k("s_cmp_lt_u32 s3, 2"); k("s_cselect_b32 s%d, s%d, 0x%x" % (regs[2], regs[2], OOB))
    k("s_mul_i32 s88, s3, %d" % (4*unit)); k("s_add_u32 s88, s88, %d" % (32*unit)); k("s_add_u32 s%d, s%d, s88" % (regs[3], base))

def pre_w(k, layer):
    k("s_mul_i32 s89, s73, %d" % LW2)
    k("s_add_u32 s89, s89, 0x%x" % W2P[layer])
    step_bases(k, 89, 5120, sWB)

def pre(k, layer):
    pre_s(k, layer); pre_v(k)

def step_base(idx):
    if idx < 4: return 0, 2*idx
    if idx == 4: return 1, 0
    if idx == 5: return 2, 0
    if idx < 10: return 0, 2*(idx-6) + 1
    return 3, idx-10

def w2_reg(idx, dt):
    return a(20*(idx % 12)+4*dt, 4)

def w2_loads(k, idx):
    b, n = step_base(idx)
    out = []
    for dt in range(5):
        def one(dt=dt):
            if dt == 0: k("s_add_u32 s89, s%d, %d" % (sWB[b], n*5120))
            if dt == 4: k("s_add_u32 s89, s%d, %d" % (sWB[b], n*5120 + 4096))
            k("buffer_load_dwordx4 %s, v%d, %s, s89 offen offset:%d" % (w2_reg(idx, dt), vL, srd(WS), (dt & 3)*1024))
        out.append(one)
    return out

def poison_h(k, layer, vz):
    for r in range(4): k("v_mov_b32 v%d, -1" % (vz+r))
    k("s_add_u32 s%d, s%d, 0x%x" % (AUX, pWS, H[layer]))
    k("s_addc_u32 s%d, s%d, 0" % (AUX+1, pWS+1))
    k("s_mov_b32 s%d, %d" % (AUX+2, 32*HBLK))
    k("s_mov_b32 s%d, 0x00020000" % (AUX+3))
    k("s_lshl_b32 s90, s22, 2")
    k("s_add_u32 s90, s90, s3")
    k("s_mul_i32 s90, s90, %d" % (19*1024))
    out = []
    for j in range(19):
        def one(j=j):
            if j and j % 4 == 0: k("s_add_u32 s90, s90, 4096")
            k("buffer_store_dwordx4 %s, v%d, %s, s90 offen offset:%d sc1" % (v(vz, 4), vL, srd(AUX), (j & 3)*1024), tag="pz")
        out.append(one)
    return out

def poison_next(k, vz):
    out = ["v_mov_b32 v%d, -1" % (vz+r) for r in range(4)]
    out += ["s_lshl_b32 s95, s2, 2", "s_add_u32 s95, s95, s3", "s_mul_i32 s95, s95, 6912", "s_add_u32 s95, s95, 0x%x" % H[1]]
    for j in range(7):
        if j == 4: out.append("s_add_u32 s95, s95, 4096")
        if j == 6: out.append("s_mov_b32 exec_hi, 0xffff")
        out.append("buffer_store_dwordx4 %s, v%d, %s, s95 offen offset:%d sc1" % (v(vz, 4), vL, srd(WS), (j & 3)*1024))
    return out

def touch_next(k):
    def setup():
        k("s_and_b32 s97, s70, 3")
        k("s_lshl_b32 s97, s97, 1")
        k("s_add_u32 s97, s97, s72")
        k("s_lshl_b32 s97, s97, 2")
        k("s_add_u32 s97, s97, s3")
        k("s_mul_i32 s97, s97, 8640")
        k("s_mul_i32 s96, s73, %d" % LW2)
        k("s_add_u32 s96, s96, s97")
        k("s_add_u32 s96, s96, 0x%x" % W2P[1])
        k("v_lshlrev_b32 v11, 6, v0")
    def one(j):
        if j: k("s_add_u32 s96, s96, %d" % (4096 if j == 1 else 448))
        k("buffer_load_dword v%d, v11, %s, s96 offen" % (208+j, srd(WS)))
    return [setup] + [lambda j=j: one(j) for j in range(3)]

def h_loads(k, idx):
    b, n = step_base(idx)
    out = []
    for lam in range(4):
        def one(lam=lam):
            if lam == 0: k("s_add_u32 s90, s%d, %d" % (sHB[b], n*4096))
            k("buffer_load_dwordx4 %s, v%d, %s, s90 offen sc1" % (v(HR+16*(idx % NS)+4*lam, 4), vHL+lam, srd(WS)), tag="h%d" % idx)
        out.append(one)
    return out

def x_load(k, n):
    s, tt = n >> 1, n & 1
    if n and n % 4 == 0: k("s_add_u32 s74, s74, 4096")
    k("buffer_load_dwordx4 %s, v%d, %s, s74 offen offset:%d sc1" % (v(XBR+4*n, 4), vX, srd(WS), (s & 1)*2048 + tt*256), tag="x%d" % n)

def signal(k, stage, tag):
    def f():
        if stage == 0: k.stamp("sigA_pre")
        k.wait(vm=tag)
        k("buffer_atomic_add v%d, v%d, %s, s%d offen offset:%d sc1" % (vONE, vSIG, srd(WS), sCNT, stage*256))
        k.stamp("sig%d" % stage)
    return f

def poll_issue(k, stage, vp):
    return lambda: k("buffer_load_dword v%d, off, %s, s%d offset:%d sc1" % (vp, srd(WS), sCNTP, stage*256))

def poll_check(k, vp, soff, off, want):
    ok, again = k.label("ok"), k.label("again")
    k("v_readfirstlane_b32 s88, v%d" % vp)
    k("s_mov_b32 s%d, 0" % sSPIN)
    k("s_cmp_ge_u32 s88, %d" % want)
    k("s_cbranch_scc1 " + ok)
    st = k.fork()
    k(again + ":")
    k("buffer_load_dword v%d, off, %s, s%d offset:%d sc1" % (vp, srd(WS), soff, off))
    k("s_add_u32 s%d, s%d, 1" % (sSPIN, sSPIN))
    k("s_waitcnt vmcnt(0)")
    if P["slp"]: k("s_sleep %d" % P["slp"])
    k("v_readfirstlane_b32 s88, v%d" % vp)
    k("s_cmp_ge_u32 s%d, %d" % (sSPIN, SPIN_LIMIT))
    k("s_cbranch_scc1 " + ok)
    k("s_cmp_ge_u32 s88, %d" % want)
    k("s_cbranch_scc0 " + again)
    k.restore(st)
    k(ok + ":")
    k.stamp_val("#spin%d" % (off // 256), sSPIN)

def pair_epilogue(p, tag):
    out = []
    for tt in range(2):
        b = ACCP + 16*p + 8*tt
        for r in range(8): out.append("v_mul_f32 v%d, v%d, |v%d|" % (b+r, b+r, b+r))
        for r in range(4): out.append("v_cvt_pk_bf16_f32 v%d, v%d, v%d" % (b+r, b+2*r, b+2*r+1))
        for r in range(4): out.append("v_pk_max_i16 v%d, v%d, 0" % (b+r, b+r))
        out.append(("buffer_store_dwordx4 %s, v%d, %s, s%d offen offset:%d sc1" % (v(b, 4), vL, srd(WS), sHS, tt*1024), tag))
    return out

def short_epilogue(tag):
    out = []
    for tt in range(2):
        b = ACCS + 4*tt
        for r in range(4): out.append("v_mul_f32 v%d, v%d, |v%d|" % (b+r, b+r, b+r))
        for r in range(2): out.append("v_cvt_pk_bf16_f32 v%d, v%d, v%d" % (b+r, b+2*r, b+2*r+1))
        for r in range(2): out.append("v_pk_max_i16 v%d, v%d, 0" % (b+r, b+r))
        out.append(("buffer_store_dwordx2 %s, v%d, %s, s%d offen offset:%d sc1" % (v(b, 2), vH3, srd(WS), sHS3, tt*1024), tag))
    return out

def stats_ops():
    c = f2u(1.0/D)
    out = []
    both = lambda f: [f(GR+4*tt, SB+4*tt, TMP+4*tt, tt) for tt in range(2)]
    out += both(lambda G, S_, T, tt: "ds_bpermute_b32 v%d, v%d, v%d" % (T, vBS, ACCS+4*tt))
    for r in range(1, 4):
        out += both(lambda G, S_, T, tt: "v_cndmask_b32 v%d, v%d, v%d, s[%d:%d]" % (G, G, G+r, 90+2*r, 91+2*r))
    out += both(lambda G, S_, T, tt: "ds_bpermute_b32 v%d, v%d, v%d" % (G+1, vBQ, G))
    for f in (
        lambda G, S_, T, tt: "v_mov_b32 v%d, 0" % (S_+3),
        lambda G, S_, T, tt: "v_mul_f32 v%d, 0x%x, v%d" % (T, f2u(-1.0/D), T),
        lambda G, S_, T, tt: "v_cvt_pk_bf16_f32 v%d, v%d, v%d" % (S_, T, T),
        lambda G, S_, T, tt: "v_lshlrev_b32 v%d, 16, v%d" % (T+1, S_),
        lambda G, S_, T, tt: "v_sub_f32 v%d, v%d, v%d" % (T+1, T, T+1),
        lambda G, S_, T, tt: "v_mul_f32 v%d, 0x%x, v%d" % (G, c, G+1),
        lambda G, S_, T, tt: "v_fma_f32 v%d, -v%d, v%d, v%d" % (G, T, T, G),
        lambda G, S_, T, tt: "v_max_f32 v%d, 0, v%d" % (G, G),
        lambda G, S_, T, tt: "v_add_f32 v%d, 0x%x, v%d" % (G, f2u(1e-5), G),
        lambda G, S_, T, tt: "v_sqrt_f32 v%d, v%d" % (T+2, G),
        lambda G, S_, T, tt: "v_rcp_f32 v%d, v%d" % (G, G),
        lambda G, S_, T, tt: "v_cvt_pk_bf16_f32 v%d, v%d, v%d" % (S_+1, T+1, T+2),
        lambda G, S_, T, tt: "v_and_b32 v%d, 0xffff0000, v%d" % (T+3, S_+1),
        lambda G, S_, T, tt: "v_sub_f32 v%d, v%d, v%d" % (T+3, T+2, T+3),
        lambda G, S_, T, tt: "v_cvt_pk_bf16_f32 v%d, v%d, 0" % (S_+2, T+3),
        lambda G, S_, T, tt: "ds_write_b32 v%d, v%d offset:%d" % (vRW, G, tt*64)):
        out += both(f)
    return out

def extract_residual(k):
    done = k.label("exdone")
    k.settle(vm=False)
    k("s_lshr_b32 s88, s3, 1")
    k("s_cmp_eq_u32 s88, s72")
    k("s_cbranch_scc0 " + done)
    st = k.fork()
    k("s_and_b32 s88, s73, 1")
    k("s_mov_b32 s95, 0x05040100")
    k("s_cmp_eq_u32 s88, 0")
    k("s_cselect_b32 s95, s95, 0x07060302")
    k("v_and_b32 v24, 15, v0")
    k("v_mul_u32_u24 v24, 160, v24")
    k("v_lshrrev_b32 v25, 4, v0")
    k("v_lshl_add_u32 v24, v25, 2, v24")
    k("s_and_b32 s88, s3, 1")
    k("s_mul_i32 s88, s88, 5120")
    k("s_add_u32 s88, s88, %d" % L_RES)
    k("v_add_u32 v24, s88, v24")
    k("v_add_u32 v25, 2560, v24")
    k("s_lshr_b32 s88, s73, 1")
    labs = [k.label("ex") for _ in range(4)]
    for r in range(1, 4):
        k("s_cmp_eq_u32 s88, %d" % r); k("s_cbranch_scc1 " + labs[r])
    st2 = k.fork()
    for r in range(4):
        k.restore(st2)
        k(labs[r] + ":")
        for tt in range(2):
            for u in range(0, 10, 2):
                t = 26 + 2*((u >> 1) % 3)
                for e in range(2):
                    x = XBR + 16*(u+e) + 4*tt + r
                    k("v_perm_b32 v%d, v%d, v%d, s95" % (t+e, x+8, x))
                k("ds_write2_b32 v%d, v%d, v%d offset0:%d offset1:%d" % (24+tt, t, t+1, 4*u, 4*u+4))
        k("s_waitcnt lgkmcnt(0)")
        if r < 3: k("s_branch " + done)
    k.restore(st)
    k(done + ":")

def put(k, x):
    if callable(x): x()
    elif isinstance(x, tuple): k(x[0], tag=x[1])
    else: k(x)

def g1(k, layer, w2_idx, late_image):
    k.comment("first GEMM")
    LA = P["la"]
    groups = [[(6, s), (0, s), (1, s)] for s in range(20)]
    G2_ = len(groups)
    nx = P["nx"]
    half = lambda p, a_, b_: [[(t, s) for s in (2*u, 2*u+1) for t in (2*p, 2*p+1)] for u in range(a_, b_)]
    groups += half(1, 0, nx) + [[("x", 0), ("x", 1), ("x", 6)]] + half(1, nx, 10)
    G3_ = len(groups)
    groups += [[("x", 2), ("x", 3)]] + half(2, 0, 10) + [[("x", 4), ("x", 5)]]
    frags = [(g, f) for g, fs in enumerate(groups) for f in fs]
    slot = lambda n: a(RING + 4*(n % NRING), 4)
    def read(n):
        g, (t, s) = frags[n]
        if t == "x": txt = "v%d offset:%d" % (vL, EX_OFF + ((s+1) % 7)*1024)
        elif t == 6: txt = "v%d offset:%d" % (vL, S_OFF + s*1024)
        else: txt = "v%d offset:%d" % ((vA0, vA1, vA2)[t >> 1], (t & 1)*20480 + s*1024)
        return ("ds_read_b128 %s, %s" % (slot(n), txt), "g%d" % g)
    def acc(t, tt): return v(ACCS+4*tt, 4) if t == 6 else v(ACCP+16*(t >> 1)+8*tt+4*(t & 1), 4)
    mm = []
    for n, (g, (t, s)) in enumerate(frags):
        for tt in range(2):
            if t == "x": mm.append((g, n, "v_mfma_f32_16x16x32_bf16 %s, %s, %s, %s" % (acc(s, tt), slot(n), v(SB+4*tt, 4), acc(s, tt))))
            else: mm.append((g, n, "v_mfma_f32_16x16x32_bf16 %s, %s, %s, %s" % (acc(t, tt), slot(n), v(XBR+8*s+4*tt, 4), acc(t, tt) if s else "0")))
        if g < G2_ and t == 1:
            for tt in range(2):
                x = v(XBR+8*s+4*tt, 4)
                mm.append((g, None, "v_mfma_f32_16x16x32_bf16 %s, %s, %s, %s" % (v(GR+4*tt, 4), x, x, v(GR+4*tt, 4) if s else "0")))
    first = {}
    for i, (g, n, _) in enumerate(mm): first.setdefault(g, i)
    M2, M3, END = first[G2_], first[G3_], len(mm)
    MX = first[G2_ + nx]
    fill = {i: [] for i in range(END)}
    def spread(ops, i0, num, den=1):
        for j, op in enumerate(ops): fill[min(i0 + j*den//num, END-1)].append(op)
        return i0 + len(ops)*den//num + 1
    for n in range(LA, 40):
        fill[8*((n-LA) >> 1) + 1 + 4*(n & 1)].append(lambda n=n: x_load(k, n))
    st = stats_ops()
    spread(st, M2 + 3, len(st), MX - M2 - 5)
    nex = spread(pair_epilogue(0, "hA") + short_epilogue("hA"), MX + 8, P["epi"], 2)
    spread(["s_add_u32 s76, s76, 4096"] + pair_epilogue(1, "hB"), M3 + 9, P["epi"], 2)
    w2l = [l for idx in w2_idx for l in w2_loads(k, idx)]
    lo = 8*((40-LA) >> 1) + 2
    if w2l: spread(w2l, lo, len(w2l), P["w2end"] + M2 - lo)
    hl = [l for idx in range(6) for l in h_loads(k, idx)]
    nin = 0
    for j, l in enumerate(hl):
        i = max(M3 + P["h0"] + 2*j, M3 + 4 + 8*((j >> 2) + 1))
        if i >= END: break
        fill[i].append(l); nin += 1
    for n in range(LA): x_load(k, n)
    nread = 0
    while nread < NRING - 3: put(k, read(nread)); nread += 1
    last_use = {n: i for i, (g, n, _) in enumerate(mm) if n is not None}
    for i, (g, n, txt) in enumerate(mm):
        if i == 0: k.stamp("g1_start")
        if i == 8: k.stamp("g1_x0")
        if i == M2: k.stamp("g1_p1")
        if i == M3: k.stamp("g1_p2")
        if i == nex and layer == 1: extract_residual(k)
        if i == first[g]:
            k.wait(vm="x%d" % (2*g+1) if g < G2_ else None, lg="g%d" % g)
        k(txt)
        if (i & 1) == 0 and nread < len(frags) and (nread < NRING or last_use[nread - NRING] <= i):
            if late_image and frags[nread][0] == G2_ and frags[nread-1][0] < G2_: k("s_barrier")
            put(k, read(nread)); nread += 1
        for x in fill[i]: put(k, x)
    assert nread == len(frags)
    k("s_lshl_b32 s88, s71, 12")
    k("s_add_u32 s76, s77, s88")
    k("s_add_u32 s76, s76, %d" % (32*4096))
    for x in pair_epilogue(2, "hC"): put(k, x)
    for x in hl[nin:]: put(k, x)

def check_ops(idx, vt):
    b = HR + 16*(idx % NS)
    out = ["v_or3_b32 v%d, v%d, v%d, v%d" % (vt, b, b+1, b+2)]
    for r in range(3, 15, 2): out.append("v_or3_b32 v%d, v%d, v%d, v%d" % (vt, vt, b+r, b+r+1))
    out.append("v_or_b32 v%d, v%d, v%d" % (vt, vt, b+15))
    out.append("v_cmp_gt_i32 vcc, 0, v%d" % vt)
    return out

def check_branch(k, idx, vt):
    retry, back = k.label("retry"), k.label("back")
    k("s_cbranch_vccnz " + retry)
    k(back + ":")
    def tail():
        b_, n = step_base(idx)
        loop = k.label("loop")
        k.vmq = []; k.lgq = []; k.hist = []
        k(retry + ":")
        k("s_mov_b32 s%d, 0" % sSPIN)
        k("s_add_u32 s88, s%d, %d" % (sHB[b_], n*4096))
        k(loop + ":")
        for lam in range(4):
            k("buffer_load_dwordx4 %s, v%d, %s, s88 offen sc1" % (v(HR+16*(idx % NS)+4*lam, 4), vHL+lam, srd(WS)))
        k("s_add_u32 s%d, s%d, 1" % (sSPIN, sSPIN))
        if k.stamps_on: k("s_add_u32 s101, s101, 1")
        k("s_waitcnt vmcnt(0)")
        for l in check_ops(idx, vt): k(l)
        k("s_cmp_ge_u32 s%d, %d" % (sSPIN, SPIN_LIMIT))
        k("s_cbranch_scc1 " + back)
        k("s_nop 2")
        k("s_cbranch_vccnz " + loop)
        k("s_branch " + back)
    k.tails.append(tail)

def m80_dma(k):
    def one(j):
        if j == 0:
            k("v_add_u32 v6, s69, v%d" % vL)
            tab_addr(k, 6, 6, TAB["M80"])
            k("s_mov_b32 s96, 4096"); k("s_mov_b32 s97, 0")
        k("s_add_u32 m0, s69, %d" % (L_M80 + j*4096))
        if j: k("v_lshl_add_u64 v[6:7], v[6:7], 0, s[96:97]")
        k("global_load_lds_dwordx4 v[6:7], off", tag="m80")
    return [lambda j=j: one(j) for j in range(4)]

def g2(k, layer, tail_idx=()):
    k.comment("second GEMM")
    k("s_waitcnt lgkmcnt(0)")
    k.stamp("g1_end")
    k("s_barrier")
    vE = 248
    k("v_lshrrev_b32 v%d, 4, v0" % vE)
    k("s_mul_i32 s88, s73, 320")
    k("s_add_u32 s88, s88, 0x%x" % (B2P + layer*2560))
    k("s_add_u32 m0, s69, %d" % L_B2)
    k("s_mov_b64 exec, 0xfffff")
    k("buffer_load_dwordx4 v%d, %s, s88 offen lds" % (vL, srd(WS)), tag="b2")
    k("s_mov_b64 exec, -1")
    k("s_add_u32 s88, s69, %d" % L_B2)
    k("v_mul_u32_u24 v%d, 80, v%d" % (vE+1, vE))
    k("v_add_u32 v%d, s88, v%d" % (vE+1, vE+1))
    k("v_and_b32 v%d, 15, v0" % (vE+2))
    k("s_lshl_b32 s92, s70, 3")
    k("s_lshl_b32 s88, s72, 2")
    k("s_add_u32 s92, s92, s88")
    k("s_add_u32 s92, s92, s3")
    pre_ops = []
    if layer == 0:
        k("v_lshlrev_b32 v%d, 4, v%d" % (vE+3, vE+2))
        k("v_lshl_add_u32 v%d, v%d, 12, v%d" % (vE+4, vE, vE+3))
        k("v_lshrrev_b32 v%d, 5, v0" % (vE+5))
        k("v_lshl_add_u32 v%d, v%d, 12, v%d" % (vE+5, vE+5, vE+3))
        k("v_bfe_u32 v%d, v0, 4, 1" % (vE+3))
        k("v_lshl_add_u32 v%d, v%d, 3, v%d" % (vE+5, vE+3, vE+5))
        k("s_lshr_b32 s88, s92, 1")
        k("s_mul_i32 s93, s88, 40960")
        k("s_and_b32 s88, s92, 1")
        k("s_lshl_b32 s88, s88, 8")
        k("s_add_u32 s93, s93, s88")
        k("s_lshl_b32 s88, s73, 9")
        k("s_add_u32 s93, s93, s88")
        k("s_add_u32 s88, s93, 0x%x" % XG[1])
        k("buffer_load_dwordx4 %s, v%d, %s, s88 offen sc1" % (v(RT, 4), vE+4, srd(WS)))
        k("s_add_u32 s88, s93, 0x%x" % (XG[1] + 16384))
        k("buffer_load_dwordx4 %s, v%d, %s, s88 offen sc1" % (v(RT+4, 4), vE+4, srd(WS)))
        k("s_add_u32 s88, s93, 0x%x" % (XG[1] + 32768))
        k("buffer_load_dwordx2 %s, v%d, %s, s88 offen sc1" % (v(RT+8, 2), vE+5, srd(WS)))
        src = [(RT + (e >> 1), e & 1) for e in range(20)]
    else:
        k("v_mul_u32_u24 v%d, 160, v%d" % (vE+3, vE+2))
        k("s_mul_i32 s88, s3, 2560")
        k("s_add_u32 s88, s88, %d" % L_RES)
        k("v_add_u32 v%d, s88, v%d" % (vE+3, vE+3))
        k("v_lshl_add_u32 v%d, v%d, 4, v%d" % (vE+4, vE, vE+3))
        k("v_lshrrev_b32 v%d, 5, v0" % (vE+5))
        k("v_lshl_add_u32 v%d, v%d, 4, v%d" % (vE+5, vE+5, vE+3))
        k("ds_read_b128 %s, v%d" % (v(RT, 4), vE+4))
        k("ds_read_b128 %s, v%d offset:64" % (v(RT+4, 4), vE+4))
        k("ds_read_b128 %s, v%d offset:128" % (v(RT+8, 4), vE+5))
        k("v_and_b32 v%d, 16, v0" % (vE+4))
        k("v_xor_b32 v%d, 16, v%d" % (vE+4, vE+4))
        src = [(RT + 4*(e >> 3) + (e & 3), (e >> 2) & 1) for e in range(16)]
        for r in range(4):
            pre_ops.append("v_lshlrev_b32 v%d, v%d, v%d" % (RT+8+r, vE+4, RT+8+r))
            src.append((RT + 8 + r, 1))
    k("s_lshl_b32 s88, s72, 2")
    k("s_add_u32 s88, s88, s3")
    k("s_lshl_b32 s88, s88, 6")
    k("s_add_u32 s88, s88, %d" % L_RS2)
    k("v_lshl_add_u32 v%d, v%d, 2, s88" % (vE+3, vE+2))
    k("ds_read_b32 v%d, v%d" % (vE+6, vE+3))
    for e, (r, hi) in enumerate(src):
        pre_ops.append("v_and_b32 v%d, 0xffff0000, v%d" % (vE+7, r) if hi else "v_lshlrev_b32 v%d, 16, v%d" % (vE+7, r))
        pre_ops.append("v_add_f32 v%d, v%d, v%d" % (RB+e, RB+e, vE+7))
    red = []
    for lam in range(3):
        red.append(2+lam)
        k("s_add_u32 s88, s3, %d" % (lam+1))
        k("s_and_b32 s88, s88, 3")
        k("s_mul_i32 s88, s88, 15360")
        k("s_add_u32 s88, s88, %d" % (L_RED + lam*5120))
        k("v_add_u32 v%d, s88, v%d" % (2+lam, vL))
    k("s_mul_i32 s88, s3, 15360")
    k("s_add_u32 s88, s88, %d" % L_RED)
    k("v_add_u32 v5, s88, v%d" % vL)
    def mf(idx, lam, dt):
        d = v(G2ACC+20*lam+4*dt, 4)
        return "v_mfma_f32_16x16x32_bf16 %s, %s, %s, %s" % (d, w2_reg(idx, dt), v(HR+16*(idx % NS)+4*lam, 4), d if idx else "0")
    J = P["J"]; NK = 14 - J
    F_ = {(idx, n): [] for idx in range(NK) for n in range(20)}
    pb, pc = P["hB"], P["hC"]
    def checked(idx):
        return [lambda: k.wait(vm="h%d" % idx)] + check_ops(idx, 10)
    for idx in range(1, NK+1):
        for j, l in enumerate(checked(idx)): F_[idx-1, 7+j].append(l)
    slots = [(idx, n) for idx in range(NK) for n in (1, 5, 9, 13, 17)]
    used = set()
    def place(ops, after):
        for op in ops:
            sl = next(x for x in slots if x[0] > after and x not in used)
            used.add(sl); F_[sl].append(op)
    for idx in range(6, 14): place(h_loads(k, idx), max(pb if idx < 10 else pc, idx - NS))
    if layer == 0: place(m80_dma(k), -1)
    place(w2_loads(k, 11), -1); place(w2_loads(k, 12), 0); place(w2_loads(k, 13), 1)
    F_[6, 2].append(lambda: k.wait(vm="b2"))
    for dt in range(5): F_[6, 3+dt].append("ds_read_b128 %s, v%d offset:%d" % (v(RB+4*dt, 4), vE+1, dt*16))
    spots = [(idx, n) for idx in range(7, NK) for n in (0, 1, 2, 3, 4, 5, 6, 17, 18, 19)]
    for j, l in enumerate(pre_ops): F_[spots[j*len(spots)//len(pre_ops)]].append(l)
    if layer == 0:
        F_[NK-1, 0].append(lambda: (k.wait(vm="m80"), k("s_barrier"), k("v_add_u32 v6, %d, v%d" % (L_M80, vL))))
    for l in checked(0): put(k, l)
    k("s_nop 1")
    for idx in range(NK):
        check_branch(k, idx, 10)
        if idx in (0, 5): k.stamp("g2_step%d" % idx)
        for n, m in enumerate([mf(idx, lam, dt) for lam in range(4) for dt in range(5)]):
            k(m)
            for x in F_[idx, n]: put(k, x)
    late = []
    if layer == 0:
        late += ["ds_read_b128 %s, v6 offset:%d" % (a(M80R+4*j, 4), j*1024) for j in range(13)]
        if P["touch2"]: k.bg += touch_next(k)
    f = []
    for lam in range(4):
        m = [mf(idx, lam, dt) for idx in range(NK, 14) for dt in range(5)]
        if lam == 0:
            for j in range(J):
                check_branch(k, NK+j, 10)
                rest = interleave(k, m[5*j:5*j+5], checked(NK+1+j) if j < J-1 else [], 3)
                assert not rest
        else:
            for n, x in enumerate(m):
                k(x)
                if n >= 3 and f: put(k, f.pop(0))
                elif late: put(k, late.pop(0))
                k.drip()
            for x in f: put(k, x)
        f = [("ds_write_b128 v%d, %s offset:%d" % (red[lam], v(G2ACC+20*lam+4*dt, 4), dt*1024), "red") for dt in range(5)] if lam < 3 else []
    for x in late: put(k, x)
    k.wait(lg="red")
    k.stamp("g2_mfma")
    k("s_barrier")
    for sl in range(3):
        for dt in range(5):
            k("ds_read_b128 %s, v5 offset:%d" % (v(HR+20*sl+4*dt, 4), sl*5120 + dt*1024))
    O = G2ACC + 60
    if tail_idx:
        pre_w(k, layer+1)
        k.bg += [l for idx in tail_idx for l in w2_loads(k, idx)]
    for sl in range(3):
        for e in range(20):
            k("v_add_f32 v%d, v%d, v%d" % (O+e, O+e, HR+20*sl+e)); k.drip()
    for e in range(20):
        k("v_fma_f32 v%d, v%d, v%d, v%d" % (O+e, O+e, vE+6, RB+e)); k.drip()
    XP = 36
    for e in range(10):
        k("v_cvt_pk_bf16_f32 v%d, v%d, v%d" % (XP+e, O+2*e, O+2*e+1))
    if layer == 0:
        m = dft80_mfmas(XP, XP+4, XP+8, M80R, 16, "a")
        st = ["s_add_u32 s88, s93, 0x%x" % XG[2],
              ("buffer_store_dwordx4 %s, v%d, %s, s88 offen sc1" % (v(XP, 4), vE+4, srd(WS)), "fin"),
              "s_add_u32 s88, s93, 0x%x" % (XG[2] + 16384),
              ("buffer_store_dwordx4 %s, v%d, %s, s88 offen sc1" % (v(XP+4, 4), vE+4, srd(WS)), "fin"),
              "s_add_u32 s88, s93, 0x%x" % (XG[2] + 32768),
              ("buffer_store_dwordx2 %s, v%d, %s, s88 offen sc1" % (v(XP+8, 2), vE+5, srd(WS)), "fin"),
              "v_add_f32 v46, v%d, v%d" % (O, O+1), "v_mul_f32 v47, v%d, v%d" % (O, O),
              "v_fmac_f32 v47, v%d, v%d" % (O+1, O+1)]
        for e in range(2, 20):
            st += ["v_add_f32 v46, v46, v%d" % (O+e), "v_fmac_f32 v47, v%d, v%d" % (O+e, O+e)]
        rest = interleave(k, m, st, 2)
        for x in rest: k(x)
        u_addr(k, 50, 51)
        k("s_lshl_b32 s88, s73, 7")
        k("s_add_u32 s88, s88, s92")
        k("s_lshl_b32 s88, s88, 6")
        k("s_add_u32 s94, s88, 0x%x" % U[1])
        u_stores(k, 16, 50, 94, 88, tag="fin")
        xsum(k, [46, 47], 48, [4, 5])
        k("v_cmp_gt_u32 vcc, 16, v0")
        k("v_lshlrev_b32 v48, 3, v%d" % (vE+2))
        k("v_lshl_add_u32 v48, v%d, 2, v48" % vE)
        k("v_cndmask_b32 v46, v47, v46, vcc")
        k("s_lshl_b32 s88, s92, 7")
        k("s_add_u32 s88, s88, 0x%x" % ST[1])
        k("s_mov_b32 exec_hi, 0")
        k("buffer_atomic_add_f32 v46, v48, %s, s88 offen" % srd(WS), tag="fin")
        k("s_mov_b64 exec, -1")
        if k.bg: print("second GEMM: %d background items left for after the stores" % len(k.bg))
        while k.bg: k.bg.pop(0)()
    else:
        k.srd(AUX, pOUT, XB)
        k("v_and_b32 v46, 7, v0")
        k("v_bfe_u32 v47, v0, 3, 1")
        k("v_lshl_add_u32 v46, v46, 1, v47")
        k("v_mul_u32_u24 v46, 40960, v46")
        k("v_lshl_add_u32 v47, v%d, 4, v46" % vE)
        k("v_lshl_add_u32 v46, v%d, 3, v46" % vE)
        k("s_lshr_b32 s88, s92, 5")
        k("s_lshl_b32 s88, s88, 9")
        k("s_and_b32 s89, s92, 31")
        k("s_add_u32 s88, s88, s89")
        k("s_mul_i32 s88, s88, 1280")
        k("s_mul_i32 s89, s73, 160")
        k("s_add_u32 s88, s88, s89")
        k("buffer_store_dwordx4 %s, v47, %s, s88 offen" % (v(XP, 4), srd(AUX)))
        k("buffer_store_dwordx4 %s, v47, %s, s88 offen offset:64" % (v(XP+4, 4), srd(AUX)))
        k("buffer_store_dwordx2 %s, v46, %s, s88 offen offset:128" % (v(XP+8, 2), srd(AUX)))
```

```python
from common import *

def px(k, sT):
    k.comment("input row tile: granule copy, row sums, 80-point partial transform")
    k.srd(AUX, pX, XB)
    k("s_lshr_b32 s40, s%d, 5" % sT)
    k("s_lshl_b32 s40, s40, 9")
    k("s_and_b32 s41, s%d, 31" % sT)
    k("s_add_u32 s40, s40, s41")
    k("s_lshl_b32 s41, s3, 2")
    k("s_mul_i32 s42, s3, 5120")
    k("s_mov_b32 s43, 1280")
    for n in range(5):
        k("v_add_u32 v1, %d, v0" % (64*n))
        k("v_mul_u32_u24 v2, 205, v1")
        k("v_lshrrev_b32 v2, 14, v2")
        k("v_mul_u32_u24 v3, 80, v2")
        k("v_sub_u32 v1, v1, v3")
        k("v_add_u32 v2, s41, v2")
        k("v_and_b32 v3, 7, v2")
        k("v_lshrrev_b32 v2, 3, v2")
        k("v_lshl_add_u32 v2, v3, 1, v2")
        k("v_lshl_add_u32 v2, v2, 5, s40")
        k("v_lshlrev_b32 v1, 4, v1")
        k("v_mad_u32_u24 v1, v2, s43, v1")
        k("s_add_u32 m0, s42, %d" % (n*1024))
        k("buffer_load_dwordx4 v1, %s, 0 offen lds" % srd(AUX), tag="raw")
    M = 80
    k("v_lshlrev_b32 v4, 4, v0")
    k("s_lshl_b32 s50, s3, 10")
    k("v_add_u32 v6, s50, v4")
    tab_addr(k, 6, 6, TAB["M80"])
    k("s_mov_b32 s52, 4096"); k("s_mov_b32 s53, 0")
    for j in range(4):
        k("s_add_u32 m0, s50, %d" % (49152 + j*4096))
        if j: k("v_lshl_add_u64 v[6:7], v[6:7], 0, s[52:53]")
        k("global_load_lds_dwordx4 v[6:7], off", tag="m80")
    k("v_and_b32 v1, 3, v0")
    k("v_mul_u32_u24 v10, 1280, v1")
    k("v_add_u32 v10, s42, v10")
    k("v_lshrrev_b32 v2, 4, v0")
    k("v_lshl_add_u32 v10, v2, 3, v10")
    k("v_bfe_u32 v3, v0, 2, 2")
    k("v_mul_u32_u24 v11, 160, v3")
    k("v_add_u32 v10, v10, v11")
    k("v_lshl_add_u32 v12, v2, 2, v1")
    k("v_add_u32 v13, s41, v3")
    k("v_mul_u32_u24 v14, 288, v12")
    k("v_lshl_add_u32 v14, v13, 4, v14")
    k("v_add_u32 v14, 20480, v14")
    k("v_lshlrev_b32 v15, 9, v12")
    k("v_lshl_add_u32 v15, v13, 4, v15")
    k("s_lshr_b32 s44, s%d, 1" % sT)
    k("s_mul_i32 s44, s44, 40960")
    k("s_and_b32 s45, s%d, 1" % sT)
    k("s_lshl_b32 s45, s45, 8")
    k("s_add_u32 s44, s44, s45")
    k("s_add_u32 s44, s44, 0x%x" % XG[0])
    G = 20
    k.stamp("p_issued")
    k.wait(vm="raw")
    k.stamp("p_raw")
    for n in range(5):
        for h in range(2):
            k("ds_read_b64_tr_b16 %s, v10 offset:%d" % (v(G+4*n+2*h, 2), n*32 + h*640))
    k("v_mov_b32 v16, 0"); k("v_mov_b32 v17, 0")
    k("s_mov_b32 s46, 0x%x" % ONES)
    for n in range(5):
        k("ds_write_b128 v14, %s offset:%d" % (v(G+4*n, 4), n*16*288), tag="g")
        if n: k("s_add_u32 s44, s44, 8192")
        k("buffer_store_dwordx4 %s, v15, %s, s44 offen sc1" % (v(G+4*n, 4), srd(WS)))
    for n in range(20):
        k("v_dot2c_f32_bf16 v16, s46, v%d" % (G+n))
        k("v_dot2c_f32_bf16 v17, v%d, v%d" % (G+n, G+n))
    k("v_and_b32 v1, 15, v0")
    k("v_lshlrev_b32 v1, 4, v1")
    k("s_mul_i32 s47, s3, 576")
    k("s_add_u32 s47, s47, 20480")
    k("v_mul_u32_u24 v5, 2304, v2")
    k("v_add3_u32 v5, v5, v1, s47")
    k("v_lshrrev_b32 v3, 5, v0")
    k("v_mul_u32_u24 v6, 2304, v3")
    k("v_bfe_u32 v3, v0, 4, 1")
    k("v_lshl_add_u32 v6, v3, 3, v6")
    k("v_add3_u32 v6, v6, v1, s47")
    k.wait(vm="m80", lg="g")
    k("s_barrier")
    A = 40
    for dd in range(2):
        k("ds_read_b128 %s, v5 offset:%d" % (v(A+10*dd, 4), dd*288))
        k("ds_read_b128 %s, v5 offset:%d" % (v(A+10*dd+4, 4), dd*288 + 9216))
        k("ds_read_b64 %s, v6 offset:%d" % (v(A+10*dd+8, 2), dd*288 + 18432))
    for j in range(13): k("ds_read_b128 %s, v4 offset:%d" % (v(M+4*j, 4), 49152 + j*1024))
    xsum(k, [16, 17], 18, [0, 1, 4, 5])
    k("v_lshlrev_b32 v13, 3, v13")
    k("s_lshl_b32 s45, s%d, 7" % sT)
    k("s_add_u32 s45, s45, 0x%x" % ST[0])
    k("s_mov_b64 exec, 0x1111")
    k("buffer_store_dwordx2 v[16:17], v13, %s, s45 offen sc1" % srd(WS))
    k("s_mov_b64 exec, -1")
    u_addr(k, 7, 8)
    k("s_lshl_b32 s48, s3, 8")
    k("s_add_u32 s48, s48, s%d" % sT)
    k("s_lshl_b32 s48, s48, 6")
    k("s_add_u32 s48, s48, 0x%x" % U[0])
    for dd in range(2):
        for m in dft80_mfmas(A+10*dd, A+10*dd+4, A+10*dd+8, M, 140+20*dd): k(m)
    for dd in range(2):
        if dd: k("s_add_u32 s48, s48, 8192")
        u_stores(k, 140+20*dd, 7, 48, 49)

def pw1(k, sT):
    k.comment("w1 block -> fragment image")
    k.srd(AUX, pW1, D*F*2)
    k.srd(AUX2, pB1, F*2)
    k("s_lshr_b32 s39, s%d, 1" % sT)
    k("s_and_b32 s47, s%d, 1" % sT)
    k("v_lshrrev_b32 v1, 3, v0")
    k("s_mov_b32 s40, %d" % (80*3456))
    k("v_mul_lo_u32 v1, v1, s40")
    k("v_and_b32 v3, 7, v0")
    k("v_lshl_add_u32 v1, v3, 4, v1")
    k("s_lshl_b32 s40, s47, 2")
    k("s_add_u32 s48, s40, s3")
    k("s_mul_i32 s40, s48, 34560")
    k("s_lshl_b32 s41, s39, 7")
    k("s_add_u32 s40, s40, s41")
    k("s_mul_i32 s42, s3, 10240")
    for n in range(10):
        k("s_add_u32 m0, s42, %d" % (n*1024))
        if n: k("s_add_u32 s40, s40, 3456")
        else: k("s_nop 0")
        k("buffer_load_dwordx4 v1, %s, s40 offen lds" % srd(AUX), tag="raw")
    k("v_lshrrev_b32 v2, 4, v0")
    k("v_and_b32 v3, 3, v0")
    k("v_bfe_u32 v4, v0, 2, 2")
    k("s_lshr_b32 s43, s3, 1")
    k("s_and_b32 s44, s3, 1")
    k("s_lshl_b32 s45, s43, 5")
    k("s_lshl_b32 s46, s44, 2")
    k("s_add_u32 s45, s45, s46")
    k("s_mov_b32 s46, 8")
    k("v_lshlrev_b32 v11, 4, v0")
    k("s_sub_u32 s52, s39, 16")
    k("s_lshl_b32 s52, s52, 1")
    k("s_add_u32 s52, s52, s43")
    k("s_lshl_b32 s53, s43, 1")
    k("s_cmp_lt_u32 s39, 16")
    k("s_cselect_b32 s52, s39, s52")
    k("s_cselect_b32 s53, s53, 4")
    k("s_add_u32 s53, s53, s44")
    k("s_mul_i32 s52, s52, %d" % LW1)
    k("s_add_u32 s52, s52, 0x%x" % W1P)
    k("s_mul_i32 s54, s53, 20480")
    k("s_add_u32 s54, s54, s52")
    k("s_add_u32 s54, s54, %d" % PT_OFF[0])
    k("s_lshl_b32 s55, s53, 10")
    k("s_add_u32 s55, s55, s52")
    k("s_add_u32 s55, s55, %d" % (EX_OFF + 1024))
    ready = k.label("ready")
    k.settle()
    k("s_cmp_lt_u32 s39, 24")
    k("s_cbranch_scc1 " + ready)
    k("s_lshl_b32 s45, s3, 4")
    k("s_mov_b32 s46, 4")
    k("s_sub_u32 s53, s39, 24")
    k("s_lshl_b32 s53, s53, 2")
    k("s_add_u32 s53, s53, s3")
    k("s_lshl_b32 s53, s53, 2")
    k("v_add_u32 v5, s53, v4")
    k("v_mul_u32_u24 v6, 43, v5")
    k("v_lshrrev_b32 v6, 7, v6")
    k("v_mul_u32_u24 v7, 3, v6")
    k("v_sub_u32 v5, v5, v7")
    k("s_mov_b32 s53, %d" % LW1)
    k("v_mul_lo_u32 v6, v6, s53")
    k("v_lshl_add_u32 v5, v5, 2, v3")
    k("v_lshl_add_u32 v5, v2, 4, v5")
    k("v_lshl_add_u32 v11, v5, 4, v6")
    k("s_mov_b32 s54, 0x%x" % (W1P + S_OFF))
    k("s_mov_b32 s55, 0x%x" % (W1P + EX_OFF))
    k.settle()
    k(ready + ":")
    k("s_mul_i32 s53, s47, 10240")
    k("s_add_u32 s54, s54, s53")
    k("v_mul_lo_u32 v5, v3, s46")
    k("v_add_lshl_u32 v5, v5, s45, 1")
    k("v_lshl_add_u32 v10, v2, 10, v5")
    k("v_lshl_add_u32 v10, v4, 7, v10")
    k("v_mul_lo_u32 v5, v4, s46")
    k("v_add_u32 v5, s45, v5")
    k("v_add_lshl_u32 v5, v5, v3, 1")
    k("buffer_load_ushort v18, v5, %s, s41 offen" % srd(AUX2))
    k("s_lshl_b32 s53, s3, 2")
    k("v_add_u32 v5, s53, v2")
    k("v_lshlrev_b32 v6, 10, v5")
    k("v_lshl_add_u32 v6, v4, 8, v6")
    k("v_lshl_add_u32 v6, v3, 4, v6")
    k("v_cmp_gt_u32 vcc, 10, v5")
    k("v_mov_b32 v7, 0x%x" % OOB)
    k("v_cndmask_b32 v6, v7, v6, vcc")
    k("s_mul_i32 s53, s47, 10240")
    k("s_add_u32 s53, s53, s52")
    k("s_add_u32 s53, s53, %d" % (S_OFF + 192))
    k("s_cmp_lt_u32 s39, 16")
    k("s_cselect_b32 s53, s53, 0x%x" % OOB)
    for r in range(4): k("v_mov_b32 v%d, 0x%x" % (64+r, ONES))
    k("buffer_store_dwordx4 v[64:67], v6, %s, s53 offen sc1" % srd(WS))
    k("v_mov_b32 v16, 0"); k("v_mov_b32 v17, 0")
    k("s_mov_b32 s53, 0x%x" % ONES)
    G = 20
    k.stamp("p_issued")
    k.wait(vm="raw")
    k("s_barrier")
    k.stamp("p_raw")
    for n in range(10):
        for h in range(2):
            k("ds_read_b64_tr_b16 %s, v10 offset:%d" % (v(G+4*n+2*h, 2), n*4096 + h*512))
    for n in range(10):
        if n and n % 4 == 0: k("s_add_u32 s54, s54, 4096")
        k("buffer_store_dwordx4 %s, v11, %s, s54 offen offset:%d sc1" % (v(G+4*n, 4), srd(WS), (n & 3)*1024))
        for jj in range(4):
            k("v_dot2c_f32_bf16 v%d, s53, v%d" % (16 + (jj & 1), G+4*n+jj))
    k("v_add_f32 v60, v16, v17")
    xsum(k, [60], 62, [4, 5])
    k("s_cmp_eq_u32 s47, 0")
    k("s_cselect_b32 s52, -1, 0")
    k("v_cvt_pk_bf16_f32 v61, v60, v60")
    k("v_lshlrev_b32 v62, 16, v61")
    k("v_sub_f32 v62, v60, v62")
    k("v_and_b32 v70, s52, v18")
    k("v_lshlrev_b32 v63, 16, v70")
    k("v_cvt_pk_bf16_f32 v68, v60, v62")
    k("v_cvt_pk_bf16_f32 v69, v60, v63")
    k("v_mov_b32 v71, 0")
    k("v_cmp_gt_u32 vcc, 32, v0")
    for r in range(3):
        k("v_cndmask_b32 v%d, 0, v%d, vcc" % (68+r, 68+r))
    k("s_xor_b32 s52, s52, 0xffff0000")
    k("s_mov_b32 exec_lo, s52")
    k("s_mov_b32 exec_hi, s52")
    k("buffer_store_dwordx4 v[68:71], v11, %s, s55 offen sc1" % srd(WS))
    k("s_mov_b64 exec, -1")

def pw2(k, sT):
    k.comment("w2 row block -> fragment images for both layers")
    k.srd(AUX, pW2, D*F*2)
    k("v_lshlrev_b32 v1, 4, v0")
    k("s_mul_i32 s40, s%d, 40960" % sT)
    k("s_mul_i32 s42, s3, 10240")
    k("s_add_u32 s40, s40, s42")
    for n in range(10):
        k("s_add_u32 m0, s42, %d" % (n*1024))
        if n: k("s_add_u32 s40, s40, 1024")
        else: k("s_nop 0")
        k("buffer_load_dwordx4 v1, %s, s40 offen lds" % srd(AUX), tag="raw")
    k("v_lshrrev_b32 v2, 4, v0")
    k("v_and_b32 v3, 3, v0")
    k("v_bfe_u32 v4, v0, 2, 2")
    k("v_mul_u32_u24 v10, 1280, v4")
    k("v_mul_u32_u24 v5, 160, v2")
    k("v_add3_u32 v10, v10, v5, s42")
    k("v_lshl_add_u32 v10, v3, 3, v10")
    k("s_mov_b32 s43, %d" % LW2)
    k("s_lshl_b32 s44, s3, 8")
    k("v_bfe_u32 v6, v0, 3, 1")
    k("v_and_b32 v7, 7, v0")
    k("v_mul_lo_u32 v7, v7, s43")
    k("v_add_u32 v7, s44, v7")
    k("v_lshl_add_u32 v7, v2, 4, v7")
    k("v_lshl_add_u32 v11, v6, 6, v7")
    k("v_lshl_add_u32 v12, v6, 7, v7")
    k("v_add_u32 v12, 4096, v12")
    k("v_mul_lo_u32 v8, v2, s43")
    k("v_add_u32 v8, s44, v8")
    k("v_bfe_u32 v5, v0, 2, 1")
    k("v_lshl_add_u32 v68, v5, 10, v8")
    k("v_lshl_add_u32 v68, v6, 6, v68")
    k("v_lshl_add_u32 v68, v3, 4, v68")
    k("v_and_b32 v5, 15, v0")
    k("v_lshl_add_u32 v69, v5, 4, v8")
    k("v_add_u32 v69, 4096, v69")
    k("s_mul_i32 s45, s%d, 5120" % sT)
    k("s_add_u32 s46, s45, 0x%x" % W2P[0])
    k("s_add_u32 s47, s45, 0x%x" % W2P[1])
    k("s_add_u32 s48, s45, 0x%x" % (W2P[1] + 4*LW2))
    G = 24
    k.stamp("p_issued")
    k.wait(vm="raw")
    k.stamp("p_raw")
    for jh in range(2):
        for n in range(5):
            for h in range(2):
                k("ds_read_b64_tr_b16 %s, v10 offset:%d" % (v(G+20*jh+4*n+2*h, 2), h*5120 + jh*640 + n*32))
    for jh in range(2):
        for n in range(5):
            r = v(G+20*jh+4*n, 4)
            if n < 4: k("buffer_store_dwordx4 %s, v11, %s, s46 offen offset:%d sc1" % (r, srd(WS), (2*(n >> 1) + jh)*1024 + (n & 1)*128))
            else: k("buffer_store_dwordx4 %s, v12, %s, s46 offen offset:%d sc1" % (r, srd(WS), jh*64))

def pw2_second(k):
    G = 24
    for jh in range(2):
        for n in range(5):
            r = v(G+20*jh+4*n, 4)
            if n < 4: k("buffer_store_dwordx4 %s, v68, %s, s%d offen offset:%d sc1" % (r, srd(WS), 47+jh, (n >> 1)*2048 + (n & 1)*128))
            else: k("buffer_store_dwordx4 %s, v69, %s, s%d offen sc1" % (r, srd(WS), 47+jh))

def pw2_half(k, sT, sJ):
    k.comment("half of a w2 row block -> fragment images for both layers")
    k.srd(AUX, pW2, D*F*2)
    k("s_mul_i32 s40, s%d, 40960" % sT)
    k("s_mul_i32 s42, s3, 10240")
    k("s_add_u32 s40, s40, s42")
    k("s_mul_i32 s41, s%d, 640" % sJ)
    k("s_add_u32 s40, s40, s41")
    k("s_mul_i32 s42, s3, 5120")
    for n in range(5):
        k("v_add_u32 v1, %d, v0" % (64*n))
        k("v_mul_u32_u24 v2, 205, v1")
        k("v_lshrrev_b32 v2, 13, v2")
        k("v_mul_u32_u24 v3, 640, v2")
        k("v_lshl_add_u32 v1, v1, 4, v3")
        k("s_add_u32 m0, s42, %d" % (n*1024))
        k("buffer_load_dwordx4 v1, %s, s40 offen lds" % srd(AUX), tag="raw")
    k("v_lshrrev_b32 v2, 4, v0")
    k("v_and_b32 v3, 3, v0")
    k("v_bfe_u32 v4, v0, 2, 2")
    k("v_mul_u32_u24 v10, 640, v4")
    k("v_mul_u32_u24 v5, 160, v2")
    k("v_add3_u32 v10, v10, v5, s42")
    k("v_lshl_add_u32 v10, v3, 3, v10")
    k("s_mov_b32 s43, %d" % LW2)
    k("s_lshl_b32 s44, s3, 8")
    k("v_bfe_u32 v6, v0, 3, 1")
    k("v_and_b32 v7, 7, v0")
    k("v_mul_lo_u32 v7, v7, s43")
    k("v_add_u32 v7, s44, v7")
    k("v_lshl_add_u32 v7, v2, 4, v7")
    k("v_lshl_add_u32 v11, v6, 6, v7")
    k("v_lshl_add_u32 v12, v6, 7, v7")
    k("v_add_u32 v12, 4096, v12")
    k("v_mul_lo_u32 v8, v2, s43")
    k("v_add_u32 v8, s44, v8")
    k("v_bfe_u32 v5, v0, 2, 1")
    k("v_lshl_add_u32 v68, v5, 10, v8")
    k("v_lshl_add_u32 v68, v6, 6, v68")
    k("v_lshl_add_u32 v68, v3, 4, v68")
    k("v_and_b32 v5, 15, v0")
    k("v_lshl_add_u32 v69, v5, 4, v8")
    k("v_add_u32 v69, 4096, v69")
    k("s_mul_i32 s45, s%d, 5120" % sT)
    k("s_add_u32 s46, s45, 0x%x" % W2P[0])
    k("s_mul_i32 s47, s%d, %d" % (sJ, 4*LW2))
    k("s_add_u32 s47, s47, s45")
    k("s_add_u32 s47, s47, 0x%x" % W2P[1])
    k("s_lshl_b32 s48, s%d, 6" % sJ)
    k("s_add_u32 s48, s48, s46")
    k("s_lshl_b32 s43, s%d, 10" % sJ)
    k("s_add_u32 s46, s46, s43")
    G = 24
    k.wait(vm="raw")
    for n in range(5):
        for h in range(2):
            k("ds_read_b64_tr_b16 %s, v10 offset:%d" % (v(G+4*n+2*h, 2), h*2560 + n*32))
    for n in range(5):
        r = v(G+4*n, 4)
        if n < 4: k("buffer_store_dwordx4 %s, v11, %s, s46 offen offset:%d sc1" % (r, srd(WS), (n >> 1)*2048 + (n & 1)*128))
        else: k("buffer_store_dwordx4 %s, v12, %s, s48 offen sc1" % (r, srd(WS)))
    for n in range(5):
        r = v(G+4*n, 4)
        if n < 4: k("buffer_store_dwordx4 %s, v68, %s, s47 offen offset:%d sc1" % (r, srd(WS), (n >> 1)*2048 + (n & 1)*128))
        else: k("buffer_store_dwordx4 %s, v69, %s, s47 offen sc1" % (r, srd(WS)))

def pmisc(k, sT):
    k.comment("clear counters and accumulators, lay out b2")
    k("s_lshl_b32 s40, s3, 6")
    k("v_add_u32 v1, s40, v0")
    k("v_lshlrev_b32 v2, 4, v1")
    for r in range(4): k("v_mov_b32 v%d, 0" % (4+r))
    k("s_lshl_b32 s41, s%d, 12" % sT)
    k("s_add_u32 s42, s41, 0x%x" % CNT)
    k("buffer_store_dwordx4 v[4:7], v2, %s, s42 offen sc1" % srd(WS))
    k("s_add_u32 s42, s41, 0x%x" % ST[1])
    k("s_cmp_lt_u32 s%d, 4" % sT)
    k("s_cselect_b32 s42, s42, 0x%x" % OOB)
    k("buffer_store_dwordx4 v[4:7], v2, %s, s42 offen sc1" % srd(WS))
    done = k.label("done")
    k("s_cmp_eq_u32 s%d, 4" % sT)
    k.settle()
    k("s_cbranch_scc0 " + done)
    k.srd(AUX, pB2, D*2)
    k("s_mov_b32 s43, 0x%x" % B2P)
    for n in range(5):
        k("v_add_u32 v8, %d, v1" % (256*n))
        k("v_mul_u32_u24 v9, 3277, v8")
        k("v_lshrrev_b32 v9, 16, v9")
        k("v_mul_u32_u24 v10, 20, v9")
        k("v_sub_u32 v10, v8, v10")
        k("v_and_b32 v11, 3, v9")
        k("v_bfe_u32 v12, v9, 2, 3")
        k("v_lshrrev_b32 v13, 3, v10")
        k("v_lshl_add_u32 v13, v13, 2, v11")
        k("v_and_b32 v14, 7, v10")
        k("v_lshrrev_b32 v15, 1, v11")
        k("v_add_u32 v15, 8, v15")
        k("v_and_b32 v16, 1, v11")
        k("v_and_b32 v17, 3, v10")
        k("v_lshl_add_u32 v16, v16, 2, v17")
        k("v_cmp_gt_u32 vcc, 16, v10")
        k("v_cndmask_b32 v13, v15, v13, vcc")
        k("v_cndmask_b32 v14, v16, v14, vcc")
        k("v_cmp_gt_u32 vcc, 32, v9")
        k("v_cndmask_b32 v15, v14, v12, vcc")
        k("v_cndmask_b32 v16, v12, v14, vcc")
        k("v_mul_u32_u24 v16, 80, v16")
        k("v_lshl_add_u32 v16, v13, 3, v16")
        k("v_add_lshl_u32 v16, v16, v15, 1")
        k("buffer_load_ushort v18, v16, %s, 0 offen" % srd(AUX))
        k("v_lshlrev_b32 v8, 2, v8")
        k("v_lshlrev_b32 v18, 16, v18")
        k("buffer_store_dword v18, v8, %s, s43 offen sc1" % srd(WS))
    k.settle()
    k(done + ":")

def p0_dispatch(k, lend):
    l1, l2, l3 = k.label("w1"), k.label("w2"), k.label("misc")
    k.settle()
    st = k.fork()
    k("s_cmp_lt_u32 s2, 128"); k("s_cbranch_scc0 " + l1)
    px(k, 2); k.settle(); k("s_branch " + lend)
    k.restore(st); k(l1 + ":")
    k("s_sub_u32 s38, s2, 128"); k("s_cmp_lt_u32 s38, 54"); k("s_cbranch_scc0 " + l2)
    pw1(k, 38); k.settle(); k("s_branch " + lend)
    k.restore(st); k(l2 + ":")
    k("s_sub_u32 s38, s2, 182"); k("s_cmp_lt_u32 s38, 54"); k("s_cbranch_scc0 " + l3)
    pw2(k, 38); k.settle(); k("s_branch " + lend)
    k.restore(st); k(l3 + ":")
    k("s_sub_u32 s38, s2, 236")
    pmisc(k, 38); k.settle()

def pmisc2(k, sT):
    k.comment("clear counters and accumulators, lay out b2")
    done, j1 = k.label("done"), k.label("j1")
    k("s_lshl_b32 s40, s3, 6")
    k("v_add_u32 v1, s40, v0")
    k.settle()
    st = k.fork()
    k("s_cmp_eq_u32 s%d, 0" % sT)
    k("s_cbranch_scc0 " + j1)
    for r in range(4): k("v_mov_b32 v%d, 0" % (4+r))
    k("v_lshlrev_b32 v2, 8, v1")
    k("s_mov_b32 s42, 0x%x" % CNT)
    k("buffer_store_dword v4, v2, %s, s42 offen sc1" % srd(WS))
    k("v_lshlrev_b32 v2, 4, v1")
    for n in range(4):
        k("s_mov_b32 s42, 0x%x" % (ST[1] + n*4096))
        k("buffer_store_dwordx4 v[4:7], v2, %s, s42 offen sc1" % srd(WS))
    k.srd(AUX2, pDBG, 256)
    k("v_mov_b32 v8, 1")
    k("s_waitcnt vmcnt(0)")
    k("s_barrier")
    k("s_mov_b64 exec, 1")
    k("buffer_store_dword v8, off, %s, 0 sc1" % srd(AUX2))
    k("s_mov_b64 exec, -1")
    k.settle()
    k("s_branch " + done)
    k.restore(st)
    k(j1 + ":")
    k("s_cmp_eq_u32 s%d, 3" % sT)
    k("s_cbranch_scc0 " + done)
    k.srd(AUX, pB2, D*2)
    k("s_mov_b32 s43, 0x%x" % B2P)
    for n in range(5):
        k("v_add_u32 v8, %d, v1" % (256*n))
        k("v_mul_u32_u24 v9, 3277, v8")
        k("v_lshrrev_b32 v9, 16, v9")
        k("v_mul_u32_u24 v10, 20, v9")
        k("v_sub_u32 v10, v8, v10")
        k("v_and_b32 v11, 3, v9")
        k("v_bfe_u32 v12, v9, 2, 3")
        k("v_lshrrev_b32 v13, 3, v10")
        k("v_lshl_add_u32 v13, v13, 2, v11")
        k("v_and_b32 v14, 7, v10")
        k("v_lshrrev_b32 v15, 1, v11")
        k("v_add_u32 v15, 8, v15")
        k("v_and_b32 v16, 1, v11")
        k("v_and_b32 v17, 3, v10")
        k("v_lshl_add_u32 v16, v16, 2, v17")
        k("v_cmp_gt_u32 vcc, 16, v10")
        k("v_cndmask_b32 v13, v15, v13, vcc")
        k("v_cndmask_b32 v14, v16, v14, vcc")
        k("v_cmp_gt_u32 vcc, 32, v9")
        k("v_cndmask_b32 v15, v14, v12, vcc")
        k("v_cndmask_b32 v16, v12, v14, vcc")
        k("v_mul_u32_u24 v16, 80, v16")
        k("v_lshl_add_u32 v16, v13, 3, v16")
        k("v_add_lshl_u32 v16, v16, v15, 1")
        k("buffer_load_ushort v%d, v16, %s, 0 offen" % (70+n, srd(AUX)))
    k("v_lshlrev_b32 v8, 2, v1")
    for n in range(5):
        k("v_lshlrev_b32 v%d, 16, v%d" % (70+n, 70+n))
        if n == 4: k("s_add_u32 s43, s43, 4096")
        k("buffer_store_dword v%d, v8, %s, s43 offen offset:%d sc1" % (70+n, srd(WS), (n & 3)*1024))
    k.settle()
    k(done + ":")
```

```python
import sys, json
from common import *
import p0, cph, ff

HEADER = open(__file__.replace("fused.py", "header.txt")).read()
SPIN = 100000
P = ff.P
P.update(pwait=0, ntail=0, nmid=5, nmid0=4, prefirst=1, touch=1, twait=2, ithr=24)

def flag_load(k, bar, vt):
    k("v_and_b32 v%d, 15, v0" % vt)
    k("v_lshlrev_b32 v%d, 8, v%d" % (vt, vt))
    k("v_add_u32 v%d, 0x%x, v%d" % (vt, GBAR + bar*8192 + 4096, vt))
    k("buffer_load_dword v%d, v%d, %s, 0 offen sc1" % (vt+1, vt, srd(WS)))

def flag_wait(k, vt):
    again, ok = k.label("again"), k.label("ok")
    k("s_mov_b32 s91, 0")
    k("v_cmp_eq_u32 vcc, 0, v%d" % (vt+1))
    k("s_cmp_eq_u64 vcc, 0")
    k("s_cbranch_scc1 " + ok)
    st = k.fork()
    k(again + ":")
    k("buffer_load_dword v%d, v%d, %s, 0 offen sc1" % (vt+1, vt, srd(WS)))
    k("s_add_u32 s91, s91, 1")
    k("s_waitcnt vmcnt(0)")
    k("v_cmp_eq_u32 vcc, 0, v%d" % (vt+1))
    k("s_cmp_ge_u32 s91, %d" % SPIN)
    k("s_cbranch_scc1 " + ok)
    k("s_cmp_eq_u64 vcc, 0")
    k("s_cbranch_scc0 " + again)
    k.restore(st)
    k(ok + ":")

def poll(k, bar, vt=18):
    flag_load(k, bar, vt); flag_wait(k, vt)

def arrive(k, sline, swant, vt=16):
    done = k.label("notlast")
    k("s_lshl_b32 s88, s%d, 8" % sline)
    k("s_add_u32 s88, s88, 0x%x" % GBAR)
    k("v_mov_b32 v%d, 1" % vt)
    k("v_mov_b32 v%d, 1" % (vt+1))
    k("s_mov_b64 exec, 1")
    k("buffer_atomic_add v%d, off, %s, s88 sc0 sc1" % (vt, srd(WS)))
    k("v_readfirstlane_b32 s91, v%d" % vt)
    k("s_add_u32 s88, s88, 4096")
    k("s_add_u32 s91, s91, 1")
    k("s_cmp_eq_u32 s91, s%d" % swant)
    k("s_cbranch_scc0 " + done)
    st = k.fork()
    k("buffer_store_dword v%d, off, %s, s88 sc1" % (vt+1, srd(WS)))
    k.restore(st)
    k(done + ":")
    k("s_mov_b64 exec, -1")

def arrive_on(k, bar, sidx, counts):
    base = min(counts); extra = sum(c > base for c in counts)
    assert counts == [base + (n < extra) for n in range(16)]
    k("s_and_b32 s89, s%d, 15" % sidx)
    k("s_cmp_lt_u32 s89, %d" % extra)
    k("s_cselect_b32 s90, %d, %d" % (base+1, base))
    k("s_add_u32 s89, s89, %d" % (32*bar))
    arrive(k, 89, 90)

def split_waves(k, wave0, others):
    lo, join = k.label("others"), k.label("join")
    k.settle(vm=False)
    st = k.fork()
    k("s_cmp_eq_u32 s3, 0")
    k("s_cbranch_scc0 " + lo)
    wave0(); k.settle()
    k("s_branch " + join)
    k.restore(st)
    k(lo + ":")
    others(); k.settle(vm=False)
    k(join + ":")
    k("s_barrier")
    k.vmq = []; k.lgq = []

def touch_code(k):
    skip, here = k.label("notouch"), k.label("here")
    k("s_sub_u32 s40, s5, 16")
    k("s_lshl_b32 s40, s40, 2")
    k("s_add_u32 s40, s40, s3")
    k("s_lshl_b32 s40, s40, 12")
    k("s_cmp_lt_u32 s40, dft_end-%s-4096" % k.name)
    k("s_cbranch_scc0 " + skip)
    k("s_sub_u32 s42, s6, dft_tables-%s" % k.name)
    k("s_subb_u32 s43, s7, 0")
    k("v_lshl_add_u32 v2, v0, 6, s40")
    k("v_mov_b32 v3, 0")
    k("v_lshl_add_u64 v[2:3], v[2:3], 0, s[42:43]")
    k("global_load_dword v255, v[2:3], off")
    k.vmq.pop()
    k(skip + ":")

B_IN, B_OUT, B_W = (0, 2), (1, 3), 4

def setup(k):
    l1, lw2, lmisc, join = k.label("w"), k.label("w2"), k.label("misc"), k.label("p0join")
    k("v_mov_b32 v68, 0x%x" % OOB); k("v_mov_b32 v69, 0x%x" % OOB)
    k("s_mov_b32 s23, 0")
    k("s_and_b32 s22, s2, 15")
    k.settle()
    st = k.fork()
    k("s_cmp_lt_u32 s2, 128"); k("s_cbranch_scc0 " + l1)
    p0.px(k, 2); k.settle(); k("s_branch " + join)
    k.restore(st); k(l1 + ":")
    k("s_mov_b32 s23, 2")
    if P["touch"]: touch_code(k)
    if P["twait"] == 2:
        nw = k.label("nowait")
        k("s_cmp_eq_u32 s2, 128"); k("s_cbranch_scc1 " + nw)
        k("s_waitcnt vmcnt(0)")
        k(nw + ":")
    k("s_cmp_eq_u32 s68, 0"); k("s_cbranch_scc0 " + lmisc)
    if P["twait"] == 1: k("s_waitcnt vmcnt(0)")
    k("s_sub_u32 s60, s5, 20"); k("s_mul_i32 s60, s60, 7"); k("s_add_u32 s60, s60, s4"); k("s_sub_u32 s60, s60, 1")
    k("s_sub_u32 s62, s2, 164")
    k("s_cmp_lt_u32 s2, 192"); k("s_cselect_b32 s60, s60, s62")
    k("s_cmp_lt_u32 s60, 54"); k("s_cbranch_scc0 " + lw2)
    k("s_mov_b32 s23, 1")
    k("s_mov_b32 s22, s60")
    p0.pw1(k, 60); k.settle(); k("s_branch " + join)
    k.restore(st); k(lw2 + ":")
    k("s_mov_b32 s22, s60")
    k("s_sub_u32 s60, s60, 54")
    k("s_cmp_lt_u32 s60, 36"); k("s_cbranch_scc0 " + join)
    k("s_mov_b32 s23, 1")
    p0.pw2(k, 60); k.settle(); k("s_branch " + join)
    k.restore(st); k(lmisc + ":")
    k("s_sub_u32 s38, s2, 128")
    k("s_mov_b32 s23, 1")
    p0.pmisc2(k, 38); k.settle()
    k("s_sub_u32 s60, s5, 20"); k("s_add_u32 s60, s60, 32")
    k("s_cmp_lt_u32 s2, 160"); k("s_cselect_b32 s60, s38, s60")
    k("s_add_u32 s22, s60, 90")
    k("s_and_b32 s61, s60, 1"); k("s_lshr_b32 s60, s60, 1"); k("s_add_u32 s60, s60, 36")
    p0.pw2_half(k, 60, 61); k.settle()
    k(join + ":")
    k.vmq = [("st", set(), False)]; k.lgq = []

def arrive_setup(k):
    other, skip = k.label("wjob"), k.label("nojob")
    init_check(k)
    st = k.fork()
    k("s_cmp_eq_u32 s23, 0")
    k("s_cbranch_scc0 " + other)
    arrive_on(k, 0, 2, [8]*16)
    k("s_branch " + skip)
    k.restore(st)
    k(other + ":")
    k("s_cmp_eq_u32 s23, 2")
    k("s_cbranch_scc1 " + skip)
    arrive_on(k, B_W, 22, CNT_W)
    k(skip + ":")

def by_wave(k, fns):
    join = k.label("join")
    k.settle(vm=False)
    st = k.fork()
    groups = {}
    for w, f in enumerate(fns): groups.setdefault(id(f), (f, []))[1].append(w)
    items = list(groups.values())
    for n, (f, ws) in enumerate(items):
        nxt = k.label("next")
        k.restore(st)
        last = n == len(items) - 1
        if not last:
            assert len(ws) == 1
            k("s_cmp_eq_u32 s3, %d" % ws[0]); k("s_cbranch_scc0 " + nxt)
        f(); k.settle(vm=False)
        if not last:
            k("s_branch " + join); k(nxt + ":")
    k(join + ":")
    k("s_barrier")
    k.vmq = []; k.lgq = []

CNT_W = [sum(1 for j in range(126) if j & 15 == n) for n in range(16)]
CNT_OUT = [sum(1 for j in range(164) if j & 15 == n) + 4 for n in range(16)]

def build():
    k = Kern(NAME + "_kernel", 256, 256, lds=LDS_BYTES, vgpr=256, agpr=256, sgpr=102)
    prologue(k)
    k.protected = {6, 7, 8, 9, 10, 11, 20, 21} | set(range(24, 38))
    k.stamp_regs = list(range(70, 90))
    k.stamp("start")
    cph.role_flag(k)
    setup(k)
    k.stamp("p_end")
    k.flush_stamps(STAMP, 0)
    k.protected = {6, 7, 8, 9, 10, 11, 22, 23, 32, 33, 34, 35, 36, 37}
    k.stamp_regs = list(range(38, 47)) + [49] + list(range(24, 32)) + [20, 21, 100]
    ff.roles(k)
    cph.role_flag(k)
    nothing = lambda: None
    for layer in range(2):
        k.dbg_layer = layer
        bin_, bout = B_IN[layer], B_OUT[layer]
        idle, go = k.label("idle"), k.label("go")
        tail_idx = list(range(11 - P["ntail"], 11))
        mid_idx = list(range(P["nmid"] if layer else P["nmid0"]))
        g1_idx = [i for i in range(11) if i not in mid_idx and (layer == 0 or i not in tail_idx)]
        w2mid = lambda: [l for idx in mid_idx for l in ff.w2_loads(k, idx)]
        add_own = lambda bar: arrive_on(k, bar, 2, [16]*16)
        add_out = lambda: add_own(bout)
        poll_out = lambda: poll(k, bout)
        poll_w = lambda: poll(k, B_W)
        if k.stamps_on: k("s_mov_b32 s101, 0")
        ff.pre_s(k, layer)
        if layer == 0 or not tail_idx: ff.pre_w(k, layer)
        k.settle(vm=False)
        entry = k.fork()
        k("s_cmp_eq_u32 s68, 0")
        k("s_cbranch_scc1 " + idle)
        if P["prefirst"]: cph.offsets(k, layer); cph.pre(k)
        k.wait(vm="st" if layer == 0 else "fin")
        k.stamp("drained")
        k("s_barrier")
        def late_pre():
            if not P["prefirst"]: cph.offsets(k, layer); cph.pre(k)
            k("v_lshlrev_b32 v1, 4, v0")
        def w0():
            if layer == 0: arrive_setup(k)
            else: add_own(bin_)
            late_pre()
            poll(k, bin_)
        split_waves(k, w0, lambda: (late_pre(), ff.w1_dma3(k, 0, 63, "w1") if layer else None, k.wait(vm="tab")))
        k.stamp("c_go")
        cph.main(k, w2mid(), None if layer else (lambda: flag_load(k, B_W, 14), lambda: flag_wait(k, 14)))
        k.stamp("c_stored")
        ff.pre_v(k)
        k.wait(vm="cst")
        k.stamp("c_drained")
        k("s_barrier")
        split_waves(k, lambda: (add_out(), poll_out()), lambda: (ff.w1_dma3(k, 63*layer, 147, "w1"), k("s_waitcnt vmcnt(26)")))
        k("s_branch " + go)
        k.restore(entry)
        k(idle + ":")
        k.wait(vm="st" if layer == 0 else "fin")
        k("s_barrier")
        split_waves(k, (lambda: arrive_setup(k)) if layer == 0 else (lambda: add_own(bin_)), nothing)
        ff.pre_v(k)
        if layer == 0:
            sk = k.label("nosecond")
            k("s_sub_u32 s88, s22, 54"); k("s_cmp_lt_u32 s88, 36"); k("s_cbranch_scc0 " + sk)
            p0.pw2_second(k); k.settle()
            k(sk + ":")
            if P["pwait"]: split_waves(k, lambda: poll(k, bin_), nothing)
            for l in ff.poison_h(k, layer, 64): l()
            k("s_waitcnt vmcnt(0)")
            k.stamp("i_poison")
            k("s_barrier")
            split_waves(k, lambda: (add_out(), poll_w()), nothing)
            k.stamp("i_wready")
            for l in ff.w1_dma(k, 0, 37, "w1") + w2mid(): l()
            k.wait(vm="w1")
        else:
            pz = ff.poison_h(k, layer, 64)
            for j, l in enumerate(ff.w1_dma(k, 0, 37, "w1")):
                l()
                if pz and j % 2 == 0: pz.pop(0)()
            k.wait(vm="pz")
            k.stamp("i_poison")
            k("s_barrier")
            split_waves(k, add_out, nothing)
            for l in w2mid(): l()
            k("s_waitcnt vmcnt(%d)" % (5*len(mid_idx)))
        k.stamp("i_fetched")
        split_waves(k, poll_out, nothing)
        k(go + ":")
        k.stamp("g_go")
        ff.g1(k, layer, g1_idx, True)
        ff.g2(k, layer, tail_idx if layer == 0 else [])
        k.stamp("issued_end")
        if layer == 1 and k.stamps_on: k("s_waitcnt vmcnt(0)")
        k.stamp("end")
        k.stamp_val("#retry", 101)
        k.flush_stamps(STAMP, 1 + layer)
        if k.stamps_on and layer == 0: k.vmq.append(("fin", set(), False)); k("s_nop 0")
    if k.dbg_mode:
        lab = k.label("nodbg")
        k("s_waitcnt vmcnt(0)")
        k.dbg_layer = 2; k.stamp("end")
        k("s_or_b32 s98, s2, s3"); k("s_cmp_eq_u32 s98, 0"); k("s_cbranch_scc0 " + lab)
        k.srd(AUX2, pDBG, 256)
        for n in range(1, len(k.dbg_list)):
            k("s_sub_u32 s98, s%d, s100" % k.dbg_regs[n]); k("v_mov_b32 v1, s98")
            k("buffer_store_dword v1, off, %s, 0 offset:%d" % (srd(AUX2), 4*n)); k("s_nop 1")
        k(lab + ":")
        print(k.dbg_list)
    finish(k)
    return k

def init_check(k):
    again, ok = k.label("again"), k.label("ok")
    k.srd(AUX2, pDBG, 256)
    k("s_mov_b32 s91, 0")
    k(again + ":")
    k("buffer_load_dword v16, off, %s, 0 sc1" % srd(AUX2))
    k("s_add_u32 s91, s91, 1")
    k("s_waitcnt vmcnt(0)")
    k("v_readfirstlane_b32 s88, v16")
    k("s_cmp_ge_u32 s91, %d" % SPIN)
    k("s_cbranch_scc1 " + ok)
    k("s_cmp_eq_u32 s88, 1")
    k("s_cbranch_scc0 " + again)
    k(ok + ":")

if __name__ == "__main__":
    out = sys.argv[1]
    for a_ in sys.argv[2:]:
        if a_ == "stamps": Kern.stamps_on = True
        elif a_.startswith("wsoff="): WSOFF[0] = int(a_[6:]) << 20
        elif a_ == "reuse": U[1] = U[0]; XG[2] = XG[0]; XG[3] = XG[1]
        elif a_ == "dbg": Kern.dbg_mode = ("start", "drained", "c_go", "c_drained", "g_go", "g1_end", "g2_mfma", "end")
        else:
            n, val = a_.split("="); P[n] = int(val)
    k = build()
    open(out, "w").write(assemble(HEADER, [k], [k], TABTXT + "dft_end:\n"))
    print(k.count, "nops", k.nops)
    if Kern.stamps_on: json.dump(k.stamp_log, open(out + ".stamps.json", "w"))
```

```python
import sys, json
from common import *
import p0, cph, ff

HEADER = open(__file__.replace("fused.py", "header.txt")).read()
SPIN = 100000
P = ff.P
P.update(amp=0, ampA=0, ampB=0, pwait=0, ntail=0, nmid=5, nmid0=4, prefirst=1, touch=1, twait=2, ithr=24)

def flag_load(k, bar, vt):
    k("v_and_b32 v%d, 15, v0" % vt)
    k("v_lshlrev_b32 v%d, 8, v%d" % (vt, vt))
    k("v_add_u32 v%d, 0x%x, v%d" % (vt, GBAR + bar*8192 + 4096, vt))
    k("buffer_load_dword v%d, v%d, %s, 0 offen sc1" % (vt+1, vt, srd(WS)))

def flag_wait(k, vt):
    again, ok = k.label("again"), k.label("ok")
    k("s_mov_b32 s91, 0")
    k("v_cmp_eq_u32 vcc, 0, v%d" % (vt+1))
    k("s_cmp_eq_u64 vcc, 0")
    k("s_cbranch_scc1 " + ok)
    st = k.fork()
    k(again + ":")
    k("buffer_load_dword v%d, v%d, %s, 0 offen sc1" % (vt+1, vt, srd(WS)))
    k("s_add_u32 s91, s91, 1")
    k("s_waitcnt vmcnt(0)")
    k("v_cmp_eq_u32 vcc, 0, v%d" % (vt+1))
    k("s_cmp_ge_u32 s91, %d" % SPIN)
    k("s_cbranch_scc1 " + ok)
    k("s_cmp_eq_u64 vcc, 0")
    k("s_cbranch_scc0 " + again)
    k.restore(st)
    k(ok + ":")

def poll(k, bar, vt=18):
    flag_load(k, bar, vt); flag_wait(k, vt)

def arrive(k, sline, swant, vt=16):
    done = k.label("notlast")
    k("s_lshl_b32 s88, s%d, 8" % sline)
    k("s_add_u32 s88, s88, 0x%x" % GBAR)
    k("v_mov_b32 v%d, 1" % vt)
    k("v_mov_b32 v%d, 1" % (vt+1))
    k("s_mov_b64 exec, 1")
    k("buffer_atomic_add v%d, off, %s, s88 sc0 sc1" % (vt, srd(WS)))
    k("v_readfirstlane_b32 s91, v%d" % vt)
    k("s_add_u32 s88, s88, 4096")
    k("s_add_u32 s91, s91, 1")
    k("s_cmp_eq_u32 s91, s%d" % swant)
    k("s_cbranch_scc0 " + done)
    st = k.fork()
    k("buffer_store_dword v%d, off, %s, s88 sc1" % (vt+1, srd(WS)))
    k.restore(st)
    k(done + ":")
    k("s_mov_b64 exec, -1")

def arrive_on(k, bar, sidx, counts):
    base = min(counts); extra = sum(c > base for c in counts)
    assert counts == [base + (n < extra) for n in range(16)]
    k("s_and_b32 s89, s%d, 15" % sidx)
    k("s_cmp_lt_u32 s89, %d" % extra)
    k("s_cselect_b32 s90, %d, %d" % (base+1, base))
    k("s_add_u32 s89, s89, %d" % (32*bar))
    arrive(k, 89, 90)

def split_waves(k, wave0, others):
    lo, join = k.label("others"), k.label("join")
    k.settle(vm=False)
    st = k.fork()
    k("s_cmp_eq_u32 s3, 0")
    k("s_cbranch_scc0 " + lo)
    wave0(); k.settle()
    k("s_branch " + join)
    k.restore(st)
    k(lo + ":")
    others(); k.settle(vm=False)
    k(join + ":")
    k("s_barrier")
    k.vmq = []; k.lgq = []

def touch_code(k):
    skip, here = k.label("notouch"), k.label("here")
    k("s_sub_u32 s40, s5, 16")
    k("s_lshl_b32 s40, s40, 2")
    k("s_add_u32 s40, s40, s3")
    k("s_lshl_b32 s40, s40, 12")
    k("s_cmp_lt_u32 s40, dft_end-%s-4096" % k.name)
    k("s_cbranch_scc0 " + skip)
    k("s_sub_u32 s42, s6, dft_tables-%s" % k.name)
    k("s_subb_u32 s43, s7, 0")
    k("v_lshl_add_u32 v2, v0, 6, s40")
    k("v_mov_b32 v3, 0")
    k("v_lshl_add_u64 v[2:3], v[2:3], 0, s[42:43]")
    k("global_load_dword v255, v[2:3], off")
    k.vmq.pop()
    k(skip + ":")

B_IN, B_OUT, B_W = (0, 2), (1, 3), 4

def setup(k):
    l1, lw2, lmisc, join = k.label("w"), k.label("w2"), k.label("misc"), k.label("p0join")
    k("v_mov_b32 v68, 0x%x" % OOB); k("v_mov_b32 v69, 0x%x" % OOB)
    k("s_mov_b32 s23, 0")
    k("s_and_b32 s22, s2, 15")
    k.settle()
    st = k.fork()
    k("s_cmp_lt_u32 s2, 128"); k("s_cbranch_scc0 " + l1)
    p0.px(k, 2); k.settle(); k("s_branch " + join)
    k.restore(st); k(l1 + ":")
    k("s_mov_b32 s23, 2")
    if P["touch"]: touch_code(k)
    if P["twait"] == 2:
        nw = k.label("nowait")
        k("s_cmp_eq_u32 s2, 128"); k("s_cbranch_scc1 " + nw)
        k("s_waitcnt vmcnt(0)")
        k(nw + ":")
    k("s_cmp_eq_u32 s68, 0"); k("s_cbranch_scc0 " + lmisc)
    if P["twait"] == 1: k("s_waitcnt vmcnt(0)")
    k("s_sub_u32 s60, s5, 20"); k("s_mul_i32 s60, s60, 7"); k("s_add_u32 s60, s60, s4"); k("s_sub_u32 s60, s60, 1")
    k("s_sub_u32 s62, s2, 164")
    k("s_cmp_lt_u32 s2, 192"); k("s_cselect_b32 s60, s60, s62")
    k("s_cmp_lt_u32 s60, 54"); k("s_cbranch_scc0 " + lw2)
    k("s_mov_b32 s23, 1")
    k("s_mov_b32 s22, s60")
    p0.pw1(k, 60); k.settle(); k("s_branch " + join)
    k.restore(st); k(lw2 + ":")
    k("s_mov_b32 s22, s60")
    k("s_sub_u32 s60, s60, 54")
    k("s_cmp_lt_u32 s60, 36"); k("s_cbranch_scc0 " + join)
    k("s_mov_b32 s23, 1")
    p0.pw2(k, 60); k.settle(); k("s_branch " + join)
    k.restore(st); k(lmisc + ":")
    k("s_sub_u32 s38, s2, 128")
    k("s_mov_b32 s23, 1")
    p0.pmisc2(k, 38); k.settle()
    k("s_sub_u32 s60, s5, 20"); k("s_add_u32 s60, s60, 32")
    k("s_cmp_lt_u32 s2, 160"); k("s_cselect_b32 s60, s38, s60")
    k("s_add_u32 s22, s60, 90")
    k("s_and_b32 s61, s60, 1"); k("s_lshr_b32 s60, s60, 1"); k("s_add_u32 s60, s60, 36")
    p0.pw2_half(k, 60, 61); k.settle()
    k(join + ":")
    k.vmq = [("st", set(), False)]; k.lgq = []

def arrive_setup(k):
    other, skip = k.label("wjob"), k.label("nojob")
    init_check(k)
    st = k.fork()
    k("s_cmp_eq_u32 s23, 0")
    k("s_cbranch_scc0 " + other)
    arrive_on(k, 0, 2, [8]*16)
    k("s_branch " + skip)
    k.restore(st)
    k(other + ":")
    k("s_cmp_eq_u32 s23, 2")
    k("s_cbranch_scc1 " + skip)
    arrive_on(k, B_W, 22, CNT_W)
    k(skip + ":")

def by_wave(k, fns):
    join = k.label("join")
    k.settle(vm=False)
    st = k.fork()
    groups = {}
    for w, f in enumerate(fns): groups.setdefault(id(f), (f, []))[1].append(w)
    items = list(groups.values())
    for n, (f, ws) in enumerate(items):
        nxt = k.label("next")
        k.restore(st)
        last = n == len(items) - 1
        if not last:
            assert len(ws) == 1
            k("s_cmp_eq_u32 s3, %d" % ws[0]); k("s_cbranch_scc0 " + nxt)
        f(); k.settle(vm=False)
        if not last:
            k("s_branch " + join); k(nxt + ":")
    k(join + ":")
    k("s_barrier")
    k.vmq = []; k.lgq = []

CNT_W = [sum(1 for j in range(126) if j & 15 == n) for n in range(16)]
CNT_OUT = [sum(1 for j in range(164) if j & 15 == n) + 4 for n in range(16)]

def build():
    k = Kern(NAME + "_kernel", 256, 256, lds=LDS_BYTES, vgpr=256, agpr=256, sgpr=102)
    k.stamp_regs = list(range(70, 90))
    prologue(k)
    k.protected = {6, 7, 8, 9, 10, 11, 20, 21} | set(range(24, 38))
    k.stamp_regs = list(range(70, 90))
    k.stamp("start")
    cph.role_flag(k)
    setup(k)
    k.stamp("p_end")
    k.flush_stamps(STAMP, 0)
    k.protected = {6, 7, 8, 9, 10, 11, 22, 23, 32, 33, 34, 35, 36, 37}
    k.stamp_regs = list(range(38, 47)) + [49] + list(range(24, 32)) + [20, 21, 100]
    ff.roles(k)
    cph.role_flag(k)
    nothing = lambda: None
    for layer in range(2):
        k.dbg_layer = layer
        bin_, bout = B_IN[layer], B_OUT[layer]
        idle, go = k.label("idle"), k.label("go")
        tail_idx = list(range(11 - P["ntail"], 11))
        mid_idx = list(range(P["nmid"] if layer else P["nmid0"]))
        g1_idx = [i for i in range(11) if i not in mid_idx and (layer == 0 or i not in tail_idx)]
        w2mid = lambda: [l for idx in mid_idx for l in ff.w2_loads(k, idx)]
        add_own = lambda bar: arrive_on(k, bar, 2, [16]*16)
        add_out = lambda: add_own(bout)
        poll_out = lambda: poll(k, bout)
        poll_w = lambda: poll(k, B_W)
        if k.stamps_on: k("s_mov_b32 s101, 0")
        ff.pre_s(k, layer)
        if layer == 0 or not tail_idx: ff.pre_w(k, layer)
        k.settle(vm=False)
        entry = k.fork()
        k("s_cmp_eq_u32 s68, 0")
        k("s_cbranch_scc1 " + idle)
        if P["prefirst"]: cph.offsets(k, layer); cph.pre(k)
        k.wait(vm="st" if layer == 0 else "fin")
        k.stamp("drained")
        k("s_barrier")
        def late_pre():
            if not P["prefirst"]: cph.offsets(k, layer); cph.pre(k)
            k("v_lshlrev_b32 v1, 4, v0")
        def w0():
            if layer == 0: arrive_setup(k)
            else: add_own(bin_)
            late_pre()
            poll(k, bin_)
        split_waves(k, w0, lambda: (late_pre(), ff.w1_dma3(k, 0, 63, "w1") if layer else None, k.wait(vm="tab")))
        k.stamp("c_go")
        cph.main(k, w2mid(), None if layer else (lambda: flag_load(k, B_W, 14), lambda: flag_wait(k, 14)))
        k.stamp("c_stored")
        ff.pre_v(k)
        k.wait(vm="cst")
        k.stamp("c_drained")
        k("s_barrier")
        split_waves(k, lambda: (add_out(), poll_out()), lambda: (ff.w1_dma3(k, 63*layer, 147, "w1"), k("s_waitcnt vmcnt(26)")))
        k("s_branch " + go)
        k.restore(entry)
        k(idle + ":")
        k.wait(vm="st" if layer == 0 else "fin")
        k("s_barrier")
        split_waves(k, (lambda: arrive_setup(k)) if layer == 0 else (lambda: add_own(bin_)), nothing)
        ff.pre_v(k)
        if layer == 0:
            sk = k.label("nosecond")
            k("s_sub_u32 s88, s22, 54"); k("s_cmp_lt_u32 s88, 36"); k("s_cbranch_scc0 " + sk)
            p0.pw2_second(k); k.settle()
            k(sk + ":")
            if P["pwait"]: split_waves(k, lambda: poll(k, bin_), nothing)
            for l in ff.poison_h(k, layer, 64): l()
            k("s_waitcnt vmcnt(0)")
            k.stamp("i_poison")
            k("s_barrier")
            split_waves(k, lambda: (add_out(), poll_w()), nothing)
            k.stamp("i_wready")
            for l in ff.w1_dma(k, 0, 37, "w1") + w2mid(): l()
            k.wait(vm="w1")
        else:
            pz = ff.poison_h(k, layer, 64)
            for j, l in enumerate(ff.w1_dma(k, 0, 37, "w1")):
                l()
                if pz and j % 2 == 0: pz.pop(0)()
            k.wait(vm="pz")
            k.stamp("i_poison")
            k("s_barrier")
            split_waves(k, add_out, nothing)
            for l in w2mid(): l()
            k("s_waitcnt vmcnt(%d)" % (5*len(mid_idx)))
        k.stamp("i_fetched")
        split_waves(k, poll_out, nothing)
        k(go + ":")
        k.stamp("g_go")
        ff.g1(k, layer, g1_idx, True)
        ff.g2(k, layer, tail_idx if layer == 0 else [])
        k.stamp("issued_end")
        if layer == 1 and k.stamps_on: k("s_waitcnt vmcnt(0)")
        k.stamp("end")
        k.stamp_val("#retry", 101)
        k.flush_stamps(STAMP, 1 + layer)
        if k.stamps_on and layer == 0: k.vmq.append(("fin", set(), False)); k("s_nop 0")
    if k.dbg_mode:
        lab = k.label("nodbg")
        k("s_waitcnt vmcnt(0)")
        k.dbg_layer = 2; k.dbg_mode = ("end",); k.dbg_regs = k.dbg_regs[:len(k.dbg_list)] + [38]; k.stamp("end")
        k("s_or_b32 s98, s2, s3"); k("s_cmp_eq_u32 s98, 0"); k("s_cbranch_scc0 " + lab)
        A, B, mult = P["ampA"], P["ampB"], P["amp"]
        k("s_sub_u32 s90, s%d, s%d" % (k.dbg_regs[B], k.dbg_regs[A]))
        k("s_mul_i32 s90, s90, %d" % mult)
        k("s_min_u32 s90, s90, 50000")
        sp = k.label("amp")
        k(sp + ":")
        k("s_memrealtime s[98:99]"); k("s_waitcnt lgkmcnt(0)")
        k("s_sub_u32 s98, s98, s%d" % k.dbg_regs[len(k.dbg_list)-1])
        k("s_cmp_lt_u32 s98, s90"); k("s_cbranch_scc1 " + sp)
        k(lab + ":")
        print(k.dbg_list)
    finish(k)
    return k

def init_check(k):
    again, ok = k.label("again"), k.label("ok")
    k.srd(AUX2, pDBG, 256)
    k("s_mov_b32 s91, 0")
    k(again + ":")
    k("buffer_load_dword v16, off, %s, 0 sc1" % srd(AUX2))
    k("s_add_u32 s91, s91, 1")
    k("s_waitcnt vmcnt(0)")
    k("v_readfirstlane_b32 s88, v16")
    k("s_cmp_ge_u32 s91, %d" % SPIN)
    k("s_cbranch_scc1 " + ok)
    k("s_cmp_eq_u32 s88, 1")
    k("s_cbranch_scc0 " + again)
    k(ok + ":")

if __name__ == "__main__":
    out = sys.argv[1]
    for a_ in sys.argv[2:]:
        if a_ == "stamps": Kern.stamps_on = True
        elif a_.startswith("wsoff="): WSOFF[0] = int(a_[6:]) << 20
        elif a_ == "reuse": U[1] = U[0]; XG[2] = XG[0]; XG[3] = XG[1]
        elif a_ == "dbg2": Kern.dbg_mode = ("entry", "start"); Kern.dbg_regs = [100, 101]
        elif a_ == "dbg": Kern.dbg_mode = ("start", "drained", "c_go", "c_drained", "g_go", "g1_end", "g2_mfma", "end")
        else:
            n, val = a_.split("="); P[n] = int(val)
    k = build()
    open(out, "w").write(assemble(HEADER, [k], [k], TABTXT + "dft_end:\n"))
    print(k.count, "nops", k.nops)
    if Kern.stamps_on: json.dump(k.stamp_log, open(out + ".stamps.json", "w"))
```

```python
from common import *

sKP, sC, sRH, sCB = 70, 71, 72, 73
sXO, sW1O, sHS, sHS3 = 74, 75, 76, 77
sCNT, sCNTP = 78, 79
sHB = [80, 81, 82, 83]
sWB = [84, 85, 86, 87]
sT0, sT1, sT2 = 88, 89, 90
sSPIN = 91
vL, vA0, vA1, vA2, vX, vH3, vBQ, vSIG, vONE, vBS, vRW = 1, 2, 3, 4, 5, 6, 7, 8, 9, 10, 11
vHL = 12
SB, TMP = 16, 24
ACCP, ACCS, GR = 32, 80, 88
XBR = 96
RING, NRING = 220, 9
G2ACC, HR, RB, RT = 16, 96, 216, 236
SPIN_LIMIT = 100000
NS = 7
M80R = 40

P = dict(outpol=0, J=3, touch2=0, slp=0, map42=1, la=24, nx=3, epi=3, w2end=120, h0=40, hB=-1, hC=3, thr=60)

def roles(k):
    if P["map42"]:
        k("s_lshr_b32 s70, s4, 1")
        k("s_lshl_b32 s70, s70, 2")
        k("s_lshr_b32 s88, s5, 3")
        k("s_add_u32 s70, s70, s88")
        k("s_and_b32 s88, s4, 1")
        k("s_and_b32 s89, s5, 7")
        k("s_lshl_b32 s71, s88, 3")
        k("s_add_u32 s71, s71, s89")
        k("s_lshr_b32 s72, s89, 2")
        k("s_and_b32 s73, s89, 3")
        k("s_lshl_b32 s88, s88, 2")
        k("s_add_u32 s73, s73, s88")
    else:
        k("s_lshr_b32 s70, s5, 4")
        k("s_lshl_b32 s88, s4, 1")
        k("s_add_u32 s70, s70, s88")
        k("s_and_b32 s71, s5, 15")
        k("s_lshr_b32 s72, s71, 3")
        k("s_and_b32 s73, s71, 7")
    k("s_mul_i32 s75, s71, %d" % LW1)
    k("s_lshl_b32 s69, s3, 10")
    k("s_add_u32 s75, s75, s69")
    k("s_add_u32 s75, s75, 0x%x" % W1P)

def w1_dma3(k, lo, hi, tag, nw=3):
    k("s_add_u32 s89, s75, %d" % ((lo-4+nw)*1024))
    k("s_add_u32 s88, s69, %d" % ((lo-4+nw)*1024))
    for j in range((hi - lo)//nw):
        k("s_add_u32 m0, s88, %d" % (j*nw*1024))
        if j: k("s_add_u32 s89, s89, %d" % (nw*1024))
        else: k("s_nop 0")
        k("buffer_load_dwordx4 v%d, %s, s89 offen lds" % (vL, srd(WS)), tag=tag)
        if j >= P["thr"]: k("s_waitcnt vmcnt(%d)" % P["thr"])

def w1_dma(k, lo, hi, tag):
    out = []
    for j in range(lo, hi):
        def one(j=j):
            k("s_add_u32 m0, s69, %d" % (j*4096))
            k("s_add_u32 s88, s75, %d" % (j*4096))
            k("buffer_load_dwordx4 v%d, %s, s88 offen lds" % (vL, srd(WS)), tag=tag)
        out.append(one)
    return out

def pre_v(k):
    k.comment("feed-forward: addresses")
    k("v_lshlrev_b32 v%d, 4, v0" % vL)
    k("v_add_u32 v%d, %d, v%d" % (vA0, PT_OFF[0], vL))
    k("v_add_u32 v%d, %d, v%d" % (vA1, PT_OFF[2], vL))
    k("v_add_u32 v%d, %d, v%d" % (vA2, PT_OFF[4], vL))
    k("v_and_b32 v16, 15, v0")
    k("v_lshrrev_b32 v17, 4, v0")
    k("v_lshlrev_b32 v18, 4, v16")
    k("v_lshl_add_u32 v%d, v17, 9, v18" % vX)
    k("s_mul_i32 s88, s71, 3")
    k("v_add_u32 v19, s88, v17")
    k("v_and_b32 v20, 1, v19")
    k("v_lshl_add_u32 v18, v20, 3, v18")
    k("v_bfe_u32 v20, v19, 1, 2")
    k("v_lshl_add_u32 v18, v20, 8, v18")
    k("v_lshrrev_b32 v20, 3, v19")
    k("v_add_u32 v20, 48, v20")
    k("v_lshl_add_u32 v18, v20, 12, v18")
    k("v_add_u32 v19, 1, v17")
    k("v_lshrrev_b32 v19, 2, v19")
    k("v_lshl_add_u32 v%d, v19, 30, v18" % vH3)
    k("v_lshrrev_b32 v19, 2, v16")
    k("v_lshl_add_u32 v19, v19, 4, v16")
    k("v_lshlrev_b32 v%d, 2, v19" % vBQ)
    k("v_add_lshl_u32 v%d, v16, 48, 2" % vBS)
    k("s_lshl_b32 s88, s3, 7")
    k("s_add_u32 s88, s88, %d" % L_RS2)
    k("v_lshl_add_u32 v%d, v16, 2, s88" % vRW)
    k("v_min_u32 v16, 1, v0")
    k("v_lshlrev_b32 v%d, 30, v16" % vSIG)
    k("v_mov_b32 v%d, 1" % vONE)
    for r, m in ((1, 0x22222222), (2, 0x44444444), (3, 0x88888888)):
        k("s_mov_b32 s%d, 0x%x" % (90+2*r, m)); k("s_mov_b32 s%d, 0x%x" % (91+2*r, m))
    for lam in range(4):
        k("s_add_u32 s88, s3, %d" % (lam+1))
        k("s_and_b32 s88, s88, 3")
        k("s_lshl_b32 s88, s88, 10")
        k("v_add_u32 v%d, s88, v%d" % (vHL+lam, vL))

def pre_s(k, layer):
    k("s_lshl_b32 s88, s70, 2")
    k("s_add_u32 s88, s88, s3")
    k("s_mul_i32 s74, s88, 40960")
    k("s_add_u32 s74, s74, 0x%x" % XG[2*layer+1])
    k("s_lshr_b32 s89, s88, 1")
    k("s_mul_i32 s77, s89, %d" % HBLK)
    k("s_and_b32 s90, s3, 1")
    k("s_lshl_b32 s90, s90, 11")
    k("s_add_u32 s77, s77, s90")
    k("s_add_u32 s77, s77, 0x%x" % H[layer])
    k("s_lshl_b32 s90, s71, 13")
    k("s_add_u32 s76, s77, s90")
    k("s_mul_i32 s78, s89, 768")
    k("s_add_u32 s78, s78, 0x%x" % (CNT + layer*32*768))
    k("s_lshl_b32 s89, s70, 1")
    k("s_add_u32 s89, s89, s72")
    k("s_mul_i32 s79, s89, 768")
    k("s_add_u32 s79, s79, 0x%x" % (CNT + layer*32*768))
    k("s_mul_i32 s89, s89, %d" % HBLK)
    k("s_add_u32 s89, s89, 0x%x" % H[layer])
    step_bases(k, 89, 4096, sHB)

def step_bases(k, base, unit, regs):
    k("s_mul_i32 s88, s3, %d" % (8*unit)); k("s_add_u32 s%d, s%d, s88" % (regs[0], base))
    k("s_mul_i32 s88, s3, %d" % unit); k("s_add_u32 s88, s88, %d" % (48*unit)); k("s_add_u32 s%d, s%d, s88" % (regs[1], base))
    k("s_add_u32 s%d, s%d, %d" % (regs[2], regs[1], 4*unit))
    k("s_cmp_lt_u32 s3, 2"); k("s_cselect_b32 s%d, s%d, 0x%x" % (regs[2], regs[2], OOB))
    k("s_mul_i32 s88, s3, %d" % (4*unit)); k("s_add_u32 s88, s88, %d" % (32*unit)); k("s_add_u32 s%d, s%d, s88" % (regs[3], base))

def pre_w(k, layer):
    k("s_mul_i32 s89, s73, %d" % LW2)
    k("s_add_u32 s89, s89, 0x%x" % W2P[layer])
    step_bases(k, 89, 5120, sWB)

def pre(k, layer):
    pre_s(k, layer); pre_v(k)

def step_base(idx):
    if idx < 4: return 0, 2*idx
    if idx == 4: return 1, 0
    if idx == 5: return 2, 0
    if idx < 10: return 0, 2*(idx-6) + 1
    return 3, idx-10

def w2_reg(idx, dt):
    return a(20*(idx % 12)+4*dt, 4)

def w2_loads(k, idx):
    b, n = step_base(idx)
    out = []
    for dt in range(5):
        def one(dt=dt):
            if dt == 0: k("s_add_u32 s89, s%d, %d" % (sWB[b], n*5120))
            if dt == 4: k("s_add_u32 s89, s%d, %d" % (sWB[b], n*5120 + 4096))
            k("buffer_load_dwordx4 %s, v%d, %s, s89 offen offset:%d" % (w2_reg(idx, dt), vL, srd(WS), (dt & 3)*1024))
        out.append(one)
    return out

def poison_h(k, layer, vz):
    for r in range(4): k("v_mov_b32 v%d, -1" % (vz+r))
    k("s_add_u32 s%d, s%d, 0x%x" % (AUX, pWS, H[layer]))
    k("s_addc_u32 s%d, s%d, 0" % (AUX+1, pWS+1))
    k("s_mov_b32 s%d, %d" % (AUX+2, 32*HBLK))
    k("s_mov_b32 s%d, 0x00020000" % (AUX+3))
    k("s_lshl_b32 s90, s22, 2")
    k("s_add_u32 s90, s90, s3")
    k("s_mul_i32 s90, s90, %d" % (19*1024))
    out = []
    for j in range(19):
        def one(j=j):
            if j and j % 4 == 0: k("s_add_u32 s90, s90, 4096")
            k("buffer_store_dwordx4 %s, v%d, %s, s90 offen offset:%d sc1" % (v(vz, 4), vL, srd(AUX), (j & 3)*1024), tag="pz")
        out.append(one)
    return out

def poison_next(k, vz):
    out = ["v_mov_b32 v%d, -1" % (vz+r) for r in range(4)]
    out += ["s_lshl_b32 s95, s2, 2", "s_add_u32 s95, s95, s3", "s_mul_i32 s95, s95, 6912", "s_add_u32 s95, s95, 0x%x" % H[1]]
    for j in range(7):
        if j == 4: out.append("s_add_u32 s95, s95, 4096")
        if j == 6: out.append("s_mov_b32 exec_hi, 0xffff")
        out.append("buffer_store_dwordx4 %s, v%d, %s, s95 offen offset:%d sc1" % (v(vz, 4), vL, srd(WS), (j & 3)*1024))
    return out

def touch_next(k):
    def setup():
        k("s_and_b32 s97, s70, 3")
        k("s_lshl_b32 s97, s97, 1")
        k("s_add_u32 s97, s97, s72")
        k("s_lshl_b32 s97, s97, 2")
        k("s_add_u32 s97, s97, s3")
        k("s_mul_i32 s97, s97, 8640")
        k("s_mul_i32 s96, s73, %d" % LW2)
        k("s_add_u32 s96, s96, s97")
        k("s_add_u32 s96, s96, 0x%x" % W2P[1])
        k("v_lshlrev_b32 v11, 6, v0")
    def one(j):
        if j: k("s_add_u32 s96, s96, %d" % (4096 if j == 1 else 448))
        k("buffer_load_dword v%d, v11, %s, s96 offen" % (208+j, srd(WS)))
    return [setup] + [lambda j=j: one(j) for j in range(3)]

def h_loads(k, idx):
    b, n = step_base(idx)
    out = []
    for lam in range(4):
        def one(lam=lam):
            if lam == 0: k("s_add_u32 s90, s%d, %d" % (sHB[b], n*4096))
            k("buffer_load_dwordx4 %s, v%d, %s, s90 offen sc1" % (v(HR+16*(idx % NS)+4*lam, 4), vHL+lam, srd(WS)), tag="h%d" % idx)
        out.append(one)
    return out

def x_load(k, n):
    s, tt = n >> 1, n & 1
    if n and n % 4 == 0: k("s_add_u32 s74, s74, 4096")
    k("buffer_load_dwordx4 %s, v%d, %s, s74 offen offset:%d sc1" % (v(XBR+4*n, 4), vX, srd(WS), (s & 1)*2048 + tt*256), tag="x%d" % n)

def signal(k, stage, tag):
    def f():
        if stage == 0: k.stamp("sigA_pre")
        k.wait(vm=tag)
        k("buffer_atomic_add v%d, v%d, %s, s%d offen offset:%d sc1" % (vONE, vSIG, srd(WS), sCNT, stage*256))
        k.stamp("sig%d" % stage)
    return f

def poll_issue(k, stage, vp):
    return lambda: k("buffer_load_dword v%d, off, %s, s%d offset:%d sc1" % (vp, srd(WS), sCNTP, stage*256))

def poll_check(k, vp, soff, off, want):
    ok, again = k.label("ok"), k.label("again")
    k("v_readfirstlane_b32 s88, v%d" % vp)
    k("s_mov_b32 s%d, 0" % sSPIN)
    k("s_cmp_ge_u32 s88, %d" % want)
    k("s_cbranch_scc1 " + ok)
    st = k.fork()
    k(again + ":")
    k("buffer_load_dword v%d, off, %s, s%d offset:%d sc1" % (vp, srd(WS), soff, off))
    k("s_add_u32 s%d, s%d, 1" % (sSPIN, sSPIN))
    k("s_waitcnt vmcnt(0)")
    if P["slp"]: k("s_sleep %d" % P["slp"])
    k("v_readfirstlane_b32 s88, v%d" % vp)
    k("s_cmp_ge_u32 s%d, %d" % (sSPIN, SPIN_LIMIT))
    k("s_cbranch_scc1 " + ok)
    k("s_cmp_ge_u32 s88, %d" % want)
    k("s_cbranch_scc0 " + again)
    k.restore(st)
    k(ok + ":")
    k.stamp_val("#spin%d" % (off // 256), sSPIN)

def pair_epilogue(p, tag):
    out = []
    for tt in range(2):
        b = ACCP + 16*p + 8*tt
        for r in range(8): out.append("v_mul_f32 v%d, v%d, |v%d|" % (b+r, b+r, b+r))
        for r in range(4): out.append("v_cvt_pk_bf16_f32 v%d, v%d, v%d" % (b+r, b+2*r, b+2*r+1))
        for r in range(4): out.append("v_pk_max_i16 v%d, v%d, 0" % (b+r, b+r))
        out.append(("buffer_store_dwordx4 %s, v%d, %s, s%d offen offset:%d sc1" % (v(b, 4), vL, srd(WS), sHS, tt*1024), tag))
    return out

def short_epilogue(tag):
    out = []
    for tt in range(2):
        b = ACCS + 4*tt
        for r in range(4): out.append("v_mul_f32 v%d, v%d, |v%d|" % (b+r, b+r, b+r))
        for r in range(2): out.append("v_cvt_pk_bf16_f32 v%d, v%d, v%d" % (b+r, b+2*r, b+2*r+1))
        for r in range(2): out.append("v_pk_max_i16 v%d, v%d, 0" % (b+r, b+r))
        out.append(("buffer_store_dwordx2 %s, v%d, %s, s%d offen offset:%d sc1" % (v(b, 2), vH3, srd(WS), sHS3, tt*1024), tag))
    return out

def stats_ops():
    c = f2u(1.0/D)
    out = []
    both = lambda f: [f(GR+4*tt, SB+4*tt, TMP+4*tt, tt) for tt in range(2)]
    out += both(lambda G, S_, T, tt: "ds_bpermute_b32 v%d, v%d, v%d" % (T, vBS, ACCS+4*tt))
    for r in range(1, 4):
        out += both(lambda G, S_, T, tt: "v_cndmask_b32 v%d, v%d, v%d, s[%d:%d]" % (G, G, G+r, 90+2*r, 91+2*r))
    out += both(lambda G, S_, T, tt: "ds_bpermute_b32 v%d, v%d, v%d" % (G+1, vBQ, G))
    for f in (
        lambda G, S_, T, tt: "v_mov_b32 v%d, 0" % (S_+3),
        lambda G, S_, T, tt: "v_mul_f32 v%d, 0x%x, v%d" % (T, f2u(-1.0/D), T),
        lambda G, S_, T, tt: "v_cvt_pk_bf16_f32 v%d, v%d, v%d" % (S_, T, T),
        lambda G, S_, T, tt: "v_lshlrev_b32 v%d, 16, v%d" % (T+1, S_),
        lambda G, S_, T, tt: "v_sub_f32 v%d, v%d, v%d" % (T+1, T, T+1),
        lambda G, S_, T, tt: "v_mul_f32 v%d, 0x%x, v%d" % (G, c, G+1),
        lambda G, S_, T, tt: "v_fma_f32 v%d, -v%d, v%d, v%d" % (G, T, T, G),
        lambda G, S_, T, tt: "v_max_f32 v%d, 0, v%d" % (G, G),
        lambda G, S_, T, tt: "v_add_f32 v%d, 0x%x, v%d" % (G, f2u(1e-5), G),
        lambda G, S_, T, tt: "v_sqrt_f32 v%d, v%d" % (T+2, G),
        lambda G, S_, T, tt: "v_rcp_f32 v%d, v%d" % (G, G),
        lambda G, S_, T, tt: "v_cvt_pk_bf16_f32 v%d, v%d, v%d" % (S_+1, T+1, T+2),
        lambda G, S_, T, tt: "v_and_b32 v%d, 0xffff0000, v%d" % (T+3, S_+1),
        lambda G, S_, T, tt: "v_sub_f32 v%d, v%d, v%d" % (T+3, T+2, T+3),
        lambda G, S_, T, tt: "v_cvt_pk_bf16_f32 v%d, v%d, 0" % (S_+2, T+3),
        lambda G, S_, T, tt: "ds_write_b32 v%d, v%d offset:%d" % (vRW, G, tt*64)):
        out += both(f)
    return out

def extract_residual(k):
    done = k.label("exdone")
    k.settle(vm=False)
    k("s_lshr_b32 s88, s3, 1")
    k("s_cmp_eq_u32 s88, s72")
    k("s_cbranch_scc0 " + done)
    st = k.fork()
    k("s_and_b32 s88, s73, 1")
    k("s_mov_b32 s95, 0x05040100")
    k("s_cmp_eq_u32 s88, 0")
    k("s_cselect_b32 s95, s95, 0x07060302")
    k("v_and_b32 v24, 15, v0")
    k("v_mul_u32_u24 v24, 160, v24")
    k("v_lshrrev_b32 v25, 4, v0")
    k("v_lshl_add_u32 v24, v25, 2, v24")
    k("s_and_b32 s88, s3, 1")
    k("s_mul_i32 s88, s88, 5120")
    k("s_add_u32 s88, s88, %d" % L_RES)
    k("v_add_u32 v24, s88, v24")
    k("v_add_u32 v25, 2560, v24")
    k("s_lshr_b32 s88, s73, 1")
    labs = [k.label("ex") for _ in range(4)]
    for r in range(1, 4):
        k("s_cmp_eq_u32 s88, %d" % r); k("s_cbranch_scc1 " + labs[r])
    st2 = k.fork()
    for r in range(4):
        k.restore(st2)
        k(labs[r] + ":")
        for tt in range(2):
            for u in range(0, 10, 2):
                t = 26 + 2*((u >> 1) % 3)
                for e in range(2):
                    x = XBR + 16*(u+e) + 4*tt + r
                    k("v_perm_b32 v%d, v%d, v%d, s95" % (t+e, x+8, x))
                k("ds_write2_b32 v%d, v%d, v%d offset0:%d offset1:%d" % (24+tt, t, t+1, 4*u, 4*u+4))
        k("s_waitcnt lgkmcnt(0)")
        if r < 3: k("s_branch " + done)
    k.restore(st)
    k(done + ":")

def put(k, x):
    if callable(x): x()
    elif isinstance(x, tuple): k(x[0], tag=x[1])
    else: k(x)

def g1(k, layer, w2_idx, late_image):
    k.comment("first GEMM")
    LA = P["la"]
    groups = [[(6, s), (0, s), (1, s)] for s in range(20)]
    G2_ = len(groups)
    nx = P["nx"]
    half = lambda p, a_, b_: [[(t, s) for s in (2*u, 2*u+1) for t in (2*p, 2*p+1)] for u in range(a_, b_)]
    groups += half(1, 0, nx) + [[("x", 0), ("x", 1), ("x", 6)]] + half(1, nx, 10)
    G3_ = len(groups)
    groups += [[("x", 2), ("x", 3)]] + half(2, 0, 10) + [[("x", 4), ("x", 5)]]
    frags = [(g, f) for g, fs in enumerate(groups) for f in fs]
    slot = lambda n: a(RING + 4*(n % NRING), 4)
    def read(n):
        g, (t, s) = frags[n]
        if t == "x": txt = "v%d offset:%d" % (vL, EX_OFF + ((s+1) % 7)*1024)
        elif t == 6: txt = "v%d offset:%d" % (vL, S_OFF + s*1024)
        else: txt = "v%d offset:%d" % ((vA0, vA1, vA2)[t >> 1], (t & 1)*20480 + s*1024)
        return ("ds_read_b128 %s, %s" % (slot(n), txt), "g%d" % g)
    def acc(t, tt): return v(ACCS+4*tt, 4) if t == 6 else v(ACCP+16*(t >> 1)+8*tt+4*(t & 1), 4)
    mm = []
    for n, (g, (t, s)) in enumerate(frags):
        for tt in range(2):
            if t == "x": mm.append((g, n, "v_mfma_f32_16x16x32_bf16 %s, %s, %s, %s" % (acc(s, tt), slot(n), v(SB+4*tt, 4), acc(s, tt))))
            else: mm.append((g, n, "v_mfma_f32_16x16x32_bf16 %s, %s, %s, %s" % (acc(t, tt), slot(n), v(XBR+8*s+4*tt, 4), acc(t, tt) if s else "0")))
        if g < G2_ and t == 1:
            for tt in range(2):
                x = v(XBR+8*s+4*tt, 4)
                mm.append((g, None, "v_mfma_f32_16x16x32_bf16 %s, %s, %s, %s" % (v(GR+4*tt, 4), x, x, v(GR+4*tt, 4) if s else "0")))
    first = {}
    for i, (g, n, _) in enumerate(mm): first.setdefault(g, i)
    M2, M3, END = first[G2_], first[G3_], len(mm)
    MX = first[G2_ + nx]
    fill = {i: [] for i in range(END)}
    def spread(ops, i0, num, den=1):
        for j, op in enumerate(ops): fill[min(i0 + j*den//num, END-1)].append(op)
        return i0 + len(ops)*den//num + 1
    for n in range(LA, 40):
        fill[8*((n-LA) >> 1) + 1 + 4*(n & 1)].append(lambda n=n: x_load(k, n))
    st = stats_ops()
    spread(st, M2 + 3, len(st), MX - M2 - 5)
    nex = spread(pair_epilogue(0, "hA") + short_epilogue("hA"), MX + 8, P["epi"], 2)
    spread(["s_add_u32 s76, s76, 4096"] + pair_epilogue(1, "hB"), M3 + 9, P["epi"], 2)
    w2l = [l for idx in w2_idx for l in w2_loads(k, idx)]
    lo = 8*((40-LA) >> 1) + 2
    if w2l: spread(w2l, lo, len(w2l), P["w2end"] + M2 - lo)
    hl = [l for idx in range(6) for l in h_loads(k, idx)]
    nin = 0
    for j, l in enumerate(hl):
        i = max(M3 + P["h0"] + 2*j, M3 + 4 + 8*((j >> 2) + 1))
        if i >= END: break
        fill[i].append(l); nin += 1
    for n in range(LA): x_load(k, n)
    nread = 0
    while nread < NRING - 3: put(k, read(nread)); nread += 1
    last_use = {n: i for i, (g, n, _) in enumerate(mm) if n is not None}
    for i, (g, n, txt) in enumerate(mm):
        if i == 0: k.stamp("g1_start")
        if i == 8: k.stamp("g1_x0")
        if i == M2: k.stamp("g1_p1")
        if i == M3: k.stamp("g1_p2")
        if i == nex and layer == 1: extract_residual(k)
        if i == first[g]:
            k.wait(vm="x%d" % (2*g+1) if g < G2_ else None, lg="g%d" % g)
        k(txt)
        if (i & 1) == 0 and nread < len(frags) and (nread < NRING or last_use[nread - NRING] <= i):
            if late_image and frags[nread][0] == G2_ and frags[nread-1][0] < G2_: k("s_barrier")
            put(k, read(nread)); nread += 1
        for x in fill[i]: put(k, x)
    assert nread == len(frags)
    k("s_lshl_b32 s88, s71, 12")
    k("s_add_u32 s76, s77, s88")
    k("s_add_u32 s76, s76, %d" % (32*4096))
    for x in pair_epilogue(2, "hC"): put(k, x)
    for x in hl[nin:]: put(k, x)

def check_ops(idx, vt):
    b = HR + 16*(idx % NS)
    out = ["v_or3_b32 v%d, v%d, v%d, v%d" % (vt, b, b+1, b+2)]
    for r in range(3, 15, 2): out.append("v_or3_b32 v%d, v%d, v%d, v%d" % (vt, vt, b+r, b+r+1))
    out.append("v_or_b32 v%d, v%d, v%d" % (vt, vt, b+15))
    out.append("v_cmp_gt_i32 vcc, 0, v%d" % vt)
    return out

def check_branch(k, idx, vt):
    retry, back = k.label("retry"), k.label("back")
    k("s_cbranch_vccnz " + retry)
    k(back + ":")
    def tail():
        b_, n = step_base(idx)
        loop = k.label("loop")
        k.vmq = []; k.lgq = []; k.hist = []
        k(retry + ":")
        k("s_mov_b32 s%d, 0" % sSPIN)
        k("s_add_u32 s88, s%d, %d" % (sHB[b_], n*4096))
        k(loop + ":")
        for lam in range(4):
            k("buffer_load_dwordx4 %s, v%d, %s, s88 offen sc1" % (v(HR+16*(idx % NS)+4*lam, 4), vHL+lam, srd(WS)))
        k("s_add_u32 s%d, s%d, 1" % (sSPIN, sSPIN))
        if k.stamps_on: k("s_add_u32 s101, s101, 1")
        k("s_waitcnt vmcnt(0)")
        for l in check_ops(idx, vt): k(l)
        k("s_cmp_ge_u32 s%d, %d" % (sSPIN, SPIN_LIMIT))
        k("s_cbranch_scc1 " + back)
        k("s_nop 2")
        k("s_cbranch_vccnz " + loop)
        k("s_branch " + back)
    k.tails.append(tail)

def m80_dma(k):
    def one(j):
        if j == 0:
            k("v_add_u32 v6, s69, v%d" % vL)
            tab_addr(k, 6, 6, TAB["M80"])
            k("s_mov_b32 s96, 4096"); k("s_mov_b32 s97, 0")
        k("s_add_u32 m0, s69, %d" % (L_M80 + j*4096))
        if j: k("v_lshl_add_u64 v[6:7], v[6:7], 0, s[96:97]")
        k("global_load_lds_dwordx4 v[6:7], off", tag="m80")
    return [lambda j=j: one(j) for j in range(4)]

def g2(k, layer, tail_idx=()):
    k.comment("second GEMM")
    k("s_waitcnt lgkmcnt(0)")
    k.stamp("g1_end")
    k("s_barrier")
    vE = 248
    k("v_lshrrev_b32 v%d, 4, v0" % vE)
    k("s_mul_i32 s88, s73, 320")
    k("s_add_u32 s88, s88, 0x%x" % (B2P + layer*2560))
    k("s_add_u32 m0, s69, %d" % L_B2)
    k("s_mov_b64 exec, 0xfffff")
    k("buffer_load_dwordx4 v%d, %s, s88 offen lds" % (vL, srd(WS)), tag="b2")
    k("s_mov_b64 exec, -1")
    k("s_add_u32 s88, s69, %d" % L_B2)
    k("v_mul_u32_u24 v%d, 80, v%d" % (vE+1, vE))
    k("v_add_u32 v%d, s88, v%d" % (vE+1, vE+1))
    k("v_and_b32 v%d, 15, v0" % (vE+2))
    k("s_lshl_b32 s92, s70, 3")
    k("s_lshl_b32 s88, s72, 2")
    k("s_add_u32 s92, s92, s88")
    k("s_add_u32 s92, s92, s3")
    pre_ops = []
    if layer == 0:
        k("v_lshlrev_b32 v%d, 4, v%d" % (vE+3, vE+2))
        k("v_lshl_add_u32 v%d, v%d, 12, v%d" % (vE+4, vE, vE+3))
        k("v_lshrrev_b32 v%d, 5, v0" % (vE+5))
        k("v_lshl_add_u32 v%d, v%d, 12, v%d" % (vE+5, vE+5, vE+3))
        k("v_bfe_u32 v%d, v0, 4, 1" % (vE+3))
        k("v_lshl_add_u32 v%d, v%d, 3, v%d" % (vE+5, vE+3, vE+5))
        k("s_lshr_b32 s88, s92, 1")
        k("s_mul_i32 s93, s88, 40960")
        k("s_and_b32 s88, s92, 1")
        k("s_lshl_b32 s88, s88, 8")
        k("s_add_u32 s93, s93, s88")
        k("s_lshl_b32 s88, s73, 9")
        k("s_add_u32 s93, s93, s88")
        k("s_add_u32 s88, s93, 0x%x" % XG[1])
        k("buffer_load_dwordx4 %s, v%d, %s, s88 offen sc1" % (v(RT, 4), vE+4, srd(WS)))
        k("s_add_u32 s88, s93, 0x%x" % (XG[1] + 16384))
        k("buffer_load_dwordx4 %s, v%d, %s, s88 offen sc1" % (v(RT+4, 4), vE+4, srd(WS)))
        k("s_add_u32 s88, s93, 0x%x" % (XG[1] + 32768))
        k("buffer_load_dwordx2 %s, v%d, %s, s88 offen sc1" % (v(RT+8, 2), vE+5, srd(WS)))
        src = [(RT + (e >> 1), e & 1) for e in range(20)]
    else:
        k("v_mul_u32_u24 v%d, 160, v%d" % (vE+3, vE+2))
        k("s_mul_i32 s88, s3, 2560")
        k("s_add_u32 s88, s88, %d" % L_RES)
        k("v_add_u32 v%d, s88, v%d" % (vE+3, vE+3))
        k("v_lshl_add_u32 v%d, v%d, 4, v%d" % (vE+4, vE, vE+3))
        k("v_lshrrev_b32 v%d, 5, v0" % (vE+5))
        k("v_lshl_add_u32 v%d, v%d, 4, v%d" % (vE+5, vE+5, vE+3))
        k("ds_read_b128 %s, v%d" % (v(RT, 4), vE+4))
        k("ds_read_b128 %s, v%d offset:64" % (v(RT+4, 4), vE+4))
        k("ds_read_b128 %s, v%d offset:128" % (v(RT+8, 4), vE+5))
        k("v_and_b32 v%d, 16, v0" % (vE+4))
        k("v_xor_b32 v%d, 16, v%d" % (vE+4, vE+4))
        src = [(RT + 4*(e >> 3) + (e & 3), (e >> 2) & 1) for e in range(16)]
        for r in range(4):
            pre_ops.append("v_lshlrev_b32 v%d, v%d, v%d" % (RT+8+r, vE+4, RT+8+r))
            src.append((RT + 8 + r, 1))
    k("s_lshl_b32 s88, s72, 2")
    k("s_add_u32 s88, s88, s3")
    k("s_lshl_b32 s88, s88, 6")
    k("s_add_u32 s88, s88, %d" % L_RS2)
    k("v_lshl_add_u32 v%d, v%d, 2, s88" % (vE+3, vE+2))
    k("ds_read_b32 v%d, v%d" % (vE+6, vE+3))
    for e, (r, hi) in enumerate(src):
        pre_ops.append("v_and_b32 v%d, 0xffff0000, v%d" % (vE+7, r) if hi else "v_lshlrev_b32 v%d, 16, v%d" % (vE+7, r))
        pre_ops.append("v_add_f32 v%d, v%d, v%d" % (RB+e, RB+e, vE+7))
    red = []
    for lam in range(3):
        red.append(2+lam)
        k("s_add_u32 s88, s3, %d" % (lam+1))
        k("s_and_b32 s88, s88, 3")
        k("s_mul_i32 s88, s88, 15360")
        k("s_add_u32 s88, s88, %d" % (L_RED + lam*5120))
        k("v_add_u32 v%d, s88, v%d" % (2+lam, vL))
    k("s_mul_i32 s88, s3, 15360")
    k("s_add_u32 s88, s88, %d" % L_RED)
    k("v_add_u32 v5, s88, v%d" % vL)
    def mf(idx, lam, dt):
        d = v(G2ACC+20*lam+4*dt, 4)
        return "v_mfma_f32_16x16x32_bf16 %s, %s, %s, %s" % (d, w2_reg(idx, dt), v(HR+16*(idx % NS)+4*lam, 4), d if idx else "0")
    J = P["J"]; NK = 14 - J
    F_ = {(idx, n): [] for idx in range(NK) for n in range(20)}
    pb, pc = P["hB"], P["hC"]
    def checked(idx):
        return [lambda: k.wait(vm="h%d" % idx)] + check_ops(idx, 10)
    for idx in range(1, NK+1):
        for j, l in enumerate(checked(idx)): F_[idx-1, 7+j].append(l)
    slots = [(idx, n) for idx in range(NK) for n in (1, 5, 9, 13, 17)]
    used = set()
    def place(ops, after):
        for op in ops:
            sl = next(x for x in slots if x[0] > after and x not in used)
            used.add(sl); F_[sl].append(op)
    for idx in range(6, 14): place(h_loads(k, idx), max(pb if idx < 10 else pc, idx - NS))
    if layer == 0: place(m80_dma(k), -1)
    place(w2_loads(k, 11), -1); place(w2_loads(k, 12), 0); place(w2_loads(k, 13), 1)
    F_[6, 2].append(lambda: k.wait(vm="b2"))
    for dt in range(5): F_[6, 3+dt].append("ds_read_b128 %s, v%d offset:%d" % (v(RB+4*dt, 4), vE+1, dt*16))
    spots = [(idx, n) for idx in range(7, NK) for n in (0, 1, 2, 3, 4, 5, 6, 17, 18, 19)]
    for j, l in enumerate(pre_ops): F_[spots[j*len(spots)//len(pre_ops)]].append(l)
    if layer == 0:
        F_[NK-1, 0].append(lambda: (k.wait(vm="m80"), k("s_barrier"), k("v_add_u32 v6, %d, v%d" % (L_M80, vL))))
    for l in checked(0): put(k, l)
    k("s_nop 1")
    for idx in range(NK):
        check_branch(k, idx, 10)
        if idx in (0, 5): k.stamp("g2_step%d" % idx)
        for n, m in enumerate([mf(idx, lam, dt) for lam in range(4) for dt in range(5)]):
            k(m)
            for x in F_[idx, n]: put(k, x)
    late = []
    if layer == 0:
        late += ["ds_read_b128 %s, v6 offset:%d" % (a(M80R+4*j, 4), j*1024) for j in range(13)]
        if P["touch2"]: k.bg += touch_next(k)
    f = []
    for lam in range(4):
        m = [mf(idx, lam, dt) for idx in range(NK, 14) for dt in range(5)]
        if lam == 0:
            for j in range(J):
                check_branch(k, NK+j, 10)
                rest = interleave(k, m[5*j:5*j+5], checked(NK+1+j) if j < J-1 else [], 3)
                assert not rest
        else:
            for n, x in enumerate(m):
                k(x)
                if n >= 3 and f: put(k, f.pop(0))
                elif late: put(k, late.pop(0))
                k.drip()
            for x in f: put(k, x)
        f = [("ds_write_b128 v%d, %s offset:%d" % (red[lam], v(G2ACC+20*lam+4*dt, 4), dt*1024), "red") for dt in range(5)] if lam < 3 else []
    for x in late: put(k, x)
    k.wait(lg="red")
    k.stamp("g2_mfma")
    k("s_barrier")
    for sl in range(3):
        for dt in range(5):
            k("ds_read_b128 %s, v5 offset:%d" % (v(HR+20*sl+4*dt, 4), sl*5120 + dt*1024))
    O = G2ACC + 60
    if tail_idx:
        pre_w(k, layer+1)
        k.bg += [l for idx in tail_idx for l in w2_loads(k, idx)]
    for sl in range(3):
        for e in range(20):
            k("v_add_f32 v%d, v%d, v%d" % (O+e, O+e, HR+20*sl+e)); k.drip()
    for e in range(20):
        k("v_fma_f32 v%d, v%d, v%d, v%d" % (O+e, O+e, vE+6, RB+e)); k.drip()
    XP = 36
    for e in range(10):
        k("v_cvt_pk_bf16_f32 v%d, v%d, v%d" % (XP+e, O+2*e, O+2*e+1))
    if layer == 0:
        m = dft80_mfmas(XP, XP+4, XP+8, M80R, 16, "a")
        st = ["s_add_u32 s88, s93, 0x%x" % XG[2],
              ("buffer_store_dwordx4 %s, v%d, %s, s88 offen sc1" % (v(XP, 4), vE+4, srd(WS)), "fin"),
              "s_add_u32 s88, s93, 0x%x" % (XG[2] + 16384),
              ("buffer_store_dwordx4 %s, v%d, %s, s88 offen sc1" % (v(XP+4, 4), vE+4, srd(WS)), "fin"),
              "s_add_u32 s88, s93, 0x%x" % (XG[2] + 32768),
              ("buffer_store_dwordx2 %s, v%d, %s, s88 offen sc1" % (v(XP+8, 2), vE+5, srd(WS)), "fin"),
              "v_add_f32 v46, v%d, v%d" % (O, O+1), "v_mul_f32 v47, v%d, v%d" % (O, O),
              "v_fmac_f32 v47, v%d, v%d" % (O+1, O+1)]
        for e in range(2, 20):
            st += ["v_add_f32 v46, v46, v%d" % (O+e), "v_fmac_f32 v47, v%d, v%d" % (O+e, O+e)]
        rest = interleave(k, m, st, 2)
        for x in rest: k(x)
        u_addr(k, 50, 51)
        k("s_lshl_b32 s88, s73, 7")
        k("s_add_u32 s88, s88, s92")
        k("s_lshl_b32 s88, s88, 6")
        k("s_add_u32 s94, s88, 0x%x" % U[1])
        u_stores(k, 16, 50, 94, 88, tag="fin")
        xsum(k, [46, 47], 48, [4, 5])
        k("v_cmp_gt_u32 vcc, 16, v0")
        k("v_lshlrev_b32 v48, 3, v%d" % (vE+2))
        k("v_lshl_add_u32 v48, v%d, 2, v48" % vE)
        k("v_cndmask_b32 v46, v47, v46, vcc")
        k("s_lshl_b32 s88, s92, 7")
        k("s_add_u32 s88, s88, 0x%x" % ST[1])
        k("s_mov_b32 exec_hi, 0")
        k("buffer_atomic_add_f32 v46, v48, %s, s88 offen" % srd(WS), tag="fin")
        k("s_mov_b64 exec, -1")
        if k.bg: print("second GEMM: %d background items left for after the stores" % len(k.bg))
        while k.bg: k.bg.pop(0)()
    else:
        k.srd(AUX, pOUT, XB)
        k("v_and_b32 v46, 7, v0")
        k("v_bfe_u32 v47, v0, 3, 1")
        k("v_lshl_add_u32 v46, v46, 1, v47")
        k("v_mul_u32_u24 v46, 40960, v46")
        k("v_lshl_add_u32 v47, v%d, 4, v46" % vE)
        k("v_lshl_add_u32 v46, v%d, 3, v46" % vE)
        k("s_lshr_b32 s88, s92, 5")
        k("s_lshl_b32 s88, s88, 9")
        k("s_and_b32 s89, s92, 31")
        k("s_add_u32 s88, s88, s89")
        k("s_mul_i32 s88, s88, 1280")
        k("s_mul_i32 s89, s73, 160")
        k("s_add_u32 s88, s88, s89")
        pol = ("", " sc1", " nt", " sc0 sc1")[P["outpol"]]
        k("buffer_store_dwordx4 %s, v47, %s, s88 offen%s" % (v(XP, 4), srd(AUX), pol))
        k("buffer_store_dwordx4 %s, v47, %s, s88 offen offset:64%s" % (v(XP+4, 4), srd(AUX), pol))
        k("buffer_store_dwordx2 %s, v46, %s, s88 offen offset:128%s" % (v(XP+8, 2), srd(AUX), pol))
```

```python
from common import *

sG, sR = 50, 51
vO = [2, 3, 8, 9]
vXW = 4
vTR, vRSR, vRSW, vXR, vDMA, vST = 10, 11, 12, 13, 14, 15
VA, RES, F0R, FAR, TWR, FBR, RSB, AFB, DB = 16, 48, 64, 96, 104, 112, 128, 160, 192

def role(k, lskip):
    k("s_lshr_b32 s50, s5, 2")
    k("s_lshl_b32 s50, s50, 3")
    k("s_add_u32 s50, s50, s4")
    k("s_and_b32 s51, s5, 3")
    k("s_cmp_gt_u32 s50, 40")
    k("s_cbranch_scc1 " + lskip)

def role_flag(k):
    k("s_lshr_b32 s50, s5, 2")
    k("s_lshl_b32 s50, s50, 3")
    k("s_add_u32 s50, s50, s4")
    k("s_and_b32 s51, s5, 3")
    k("s_cmp_le_u32 s50, 40")
    k("s_cselect_b32 s68, 1, 0")

def row_off(k, vd, vk, t):
    k("v_lshrrev_b32 v%d, 9, v%d" % (t, vk))
    k("v_bfe_u32 v%d, v%d, 1, 4" % (vd, vk))
    k("v_lshl_add_u32 v%d, v%d, 4, v%d" % (vd, t, vd))
    k("v_mul_u32_u24 v%d, 40960, v%d" % (vd, vd))
    k("v_and_b32 v%d, 1, v%d" % (t, vk))
    k("v_lshl_add_u32 v%d, v%d, 8, v%d" % (vd, t, vd))
    k("v_bfe_u32 v%d, v%d, 5, 1" % (t, vk))
    k("v_lshl_add_u32 v%d, v%d, 7, v%d" % (vd, t, vd))
    k("v_bfe_u32 v%d, v%d, 6, 3" % (t, vk))
    k("v_lshl_add_u32 v%d, v%d, 4, v%d" % (vd, t, vd))

def pre(k):
    k.comment("column phase: constants and addresses")
    k("v_lshlrev_b32 v%d, 4, v0" % vST)
    k("s_lshl_b32 s52, s50, 10")
    k("s_add_u32 s52, s52, %d" % TAB["F0"])
    k("s_lshl_b32 s53, s51, 11")
    k("s_add_u32 s53, s53, %d" % (TAB["FA"] - 1024))
    k("s_mov_b32 s54, %d" % (TAB["FB"] - 3072))
    for j in range(2):
        k("s_lshl_b32 s55, s3, 1")
        k("s_add_u32 s55, s55, %d" % j)
        k("s_min_u32 s55, s55, 6")
        k("s_cmp_lt_u32 s55, 3")
        k("s_cselect_b32 s56, s53, s54")
        k("s_cmp_eq_u32 s55, 0")
        k("s_cselect_b32 s56, s52, s56")
        k("s_lshl_b32 s55, s55, 10")
        k("s_add_u32 s56, s56, s55")
        k("v_add_u32 v16, s56, v%d" % vST)
        k("v_mov_b32 v17, 0")
        k("v_lshl_add_u64 v[16:17], v[16:17], 0, s[6:7]")
        k("s_add_u32 m0, s55, %d" % L_TAB)
        k("global_load_lds_dwordx4 v[16:17], off", tag="tab")
    k("s_lshl_b32 s52, s51, 2")
    k("s_add_u32 s52, s52, s3")
    k("s_lshl_b32 s52, s52, 10")
    k("v_lshrrev_b32 v34, 5, v0")
    k("v_and_b32 v35, 15, v0")
    k("v_lshl_add_u32 v34, v34, 4, v35")
    k("v_lshl_add_u32 v34, v34, 3, s52")
    tab_addr(k, 38, 34, TAB["TW"])
    for p in range(4):
        k("global_load_dwordx2 %s, v[38:39], off offset:%d" % (v(TWR+2*p, 2), p*256))
    k("s_mul_i32 s58, s3, 18432")
    k("s_add_u32 s58, s58, %d" % L_CU)
    k("s_lshl_b32 s59, s3, 11")
    k("s_add_u32 s59, s59, %d" % L_CRS)
    k("v_lshrrev_b32 v42, 4, v0")
    k("v_lshrrev_b32 v43, 5, v0")
    k("v_bfe_u32 v44, v0, 4, 1")
    k("v_bfe_u32 v45, v0, 3, 1")
    k("v_bfe_u32 v46, v0, 2, 1")
    k("v_and_b32 v47, 3, v0")
    k("v_lshl_add_u32 v1, v43, 1, v45")
    k("v_mul_u32_u24 v1, 1152, v1")
    k("v_lshl_add_u32 v1, v44, 6, v1")
    k("v_lshl_add_u32 v1, v46, 5, v1")
    k("v_lshl_add_u32 v1, v47, 3, v1")
    k("v_add_u32 v%d, s58, v1" % vTR)
    k("v_lshlrev_b32 v1, 6, v45")
    k("v_lshl_add_u32 v1, v42, 4, v1")
    k("v_add_u32 v%d, s59, v1" % vRSR)
    k("v_lshl_add_u32 v%d, v0, 3, s59" % vRSW)
    k("v_and_b32 v1, 31, v0")
    k("v_lshlrev_b32 v1, 4, v1")
    k("v_lshl_add_u32 v%d, v43, 13, v1" % vDMA)
    k("v_lshlrev_b32 v1, 11, v44")
    k("v_bfe_u32 v34, v0, 2, 2")
    k("v_lshl_add_u32 v1, v34, 9, v1")
    k("v_lshl_add_u32 v1, v43, 8, v1")
    k("v_lshl_add_u32 v1, v47, 6, v1")
    k("v_add_u32 v1, s58, v1")
    k("v_bfe_u32 v35, v0, 1, 2")
    for r in range(4):
        k("v_xor_b32 v36, %d, v35" % r)
        k("v_lshl_add_u32 v%d, v36, 4, v1" % (vXW+r))
    k("v_mul_u32_u24 v1, 18432, v43")
    k("v_lshl_add_u32 v1, v44, 8, v1")
    k("v_lshl_add_u32 v1, v34, 6, v1")
    k("s_lshl_b32 s52, s3, 1")
    k("v_add_u32 v36, s52, v45")
    k("v_and_b32 v36, 3, v36")
    k("v_xor_b32 v36, v36, v47")
    k("v_lshl_add_u32 v1, v36, 4, v1")
    k("s_lshl_b32 s52, s3, 9")
    k("s_add_u32 s52, s52, %d" % L_CU)
    k("v_add_u32 v%d, s52, v1" % vXR)
    k("s_lshl_b32 s52, s3, 4")
    k("s_add_u32 s52, s52, s51")
    k("v_and_b32 v34, 15, v0")
    k("v_lshlrev_b32 v34, 6, v34")
    k("v_lshl_add_u32 v34, v42, 2, v34")
    k("v_add_u32 v34, s52, v34")
    row_off(k, vO[0], 34, 1)
    k("v_add_u32 v%d, %d, v%d" % (vO[1], 32*40960, vO[0]))
    k("v_sub_u32 v35, 2048, v34")
    k("v_and_b32 v35, 2047, v35")
    row_off(k, vO[2], 35, 1)
    k("v_sub_u32 v35, 1024, v34")
    k("v_and_b32 v35, 2047, v35")
    row_off(k, vO[3], 35, 1)

def tables(k):
    for r in range(32): k("v_mov_b32 v%d, 0" % (F0R+r))
    k("v_lshrrev_b32 v26, 5, v0")
    k("v_and_b32 v27, 7, v0")
    k("v_lshlrev_b32 v26, 7, v26")
    k("v_lshl_add_u32 v26, v27, 4, v26")
    for aa in range(4):
        for ri in range(2):
            k("s_mul_i32 s53, s51, %d" % aa)
            k("s_add_u32 s53, s53, %d" % ri)
            k("s_and_b32 s53, s53, 3")
            k("s_lshl_b32 s53, s53, 8")
            k("s_add_u32 s53, s53, %d" % L_TAB)
            k("v_add_u32 v%d, s53, v26" % (28+2*aa+ri))
    k("v_add_u32 v27, %d, v%d" % (L_TAB + 1024, vST))
    k("s_mov_b32 exec_lo, 0xff0000ff")
    k("s_mov_b32 exec_hi, 0xff0000ff")
    for n in range(8):
        k("ds_read_b128 %s, v%d" % (v(F0R+4*n, 4), 28+n))
    k("s_mov_b64 exec, -1")
    for n in range(2): k("ds_read_b128 %s, v27 offset:%d" % (v(FAR+4*n, 4), n*1024))
    for n in range(4): k("ds_read_b128 %s, v27 offset:%d" % (v(FBR+4*n, 4), 2048 + n*1024))

def poison_out(k, vz):
    for r in range(4): k("v_mov_b32 v%d, -1" % (vz+r))
    for n in range(4):
        k("buffer_store_dwordx4 %s, v%d, %s, s%d offen sc1" % (v(vz, 4), vO[n], srd(WS), 66 + (n >> 1)), tag="px")

def offsets(k, layer):
    k("s_lshl_b32 s60, s3, 10")
    k("s_add_u32 s60, s60, 0x%x" % ST[layer])
    k("s_cmp_eq_u32 s50, 40")
    k("s_cselect_b32 s61, 0, s50")
    k("s_lshl_b32 s62, s61, 16")
    k("s_lshl_b32 s63, s3, 9")
    k("s_add_u32 s62, s62, s63")
    k("s_add_u32 s62, s62, 0x%x" % U[layer])
    k("s_lshl_b32 s63, s50, 9")
    k("s_add_u32 s64, s63, 0x%x" % XG[2*layer])
    k("s_add_u32 s66, s63, 0x%x" % XG[2*layer+1])
    k("s_sub_u32 s65, 0x%x, s63" % (XG[2*layer] + 80*512))
    k("s_sub_u32 s67, 0x%x, s63" % (XG[2*layer+1] + 80*512))
    k("s_cmp_eq_u32 s61, 0")
    k("s_cselect_b32 s65, 0x%x, s65" % OOB)
    k("s_cselect_b32 s67, 0x%x, s67" % OOB)

def main(k, late=(), gate=None, hint=None):
    late = list(late)
    for aa in range(4):
        if aa: k("s_add_u32 s60, s60, 4096")
        k("buffer_load_dwordx4 %s, v%d, %s, s60 offen sc1" % (v(RSB+4*aa, 4), vST, srd(WS)))
    for aa in range(4):
        for dp in range(4):
            k("s_add_u32 m0, s58, %d" % ((4*aa + dp)*1152))
            k("s_add_u32 s63, s62, %d" % (dp*16384 + aa*2048))
            k("buffer_load_dwordx4 v%d, %s, s63 offen sc1 lds" % (vDMA, srd(WS)), tag="u%d" % aa)
    res = ["buffer_load_dwordx4 %s, v%d, %s, s%d offen sc1" % (v(RES+4*n, 4), vO[n], srd(WS), 64 + (n >> 1)) for n in range(4)]
    c = f2u(1.0/D)
    for aa in range(4):
        b = RSB + 4*aa
        for e in range(2):
            k("v_mul_f32 v%d, 0x%x, v%d" % (b+2*e, c, b+2*e))
            k("v_mul_f32 v%d, 0x%x, v%d" % (b+2*e+1, c, b+2*e+1))
        for e in range(2):
            k("v_fma_f32 v%d, -v%d, v%d, v%d" % (b+2*e+1, b+2*e, b+2*e, b+2*e+1))
        for e in range(2):
            k("v_max_f32 v%d, 0, v%d" % (b+2*e+1, b+2*e+1))
        for e in range(2):
            k("v_add_f32 v%d, 0x%x, v%d" % (b+2*e+1, f2u(1e-5), b+2*e+1))
        for e in range(2):
            k("v_rsq_f32 v%d, v%d" % (b+e, b+2*e+1))
        k("ds_write_b64 v%d, %s offset:%d" % (vRSW, v(b, 2), aa*512))
    def reads(aa):
        out = []
        for p in range(4):
            for h in range(2):
                out.append("ds_read_b64_tr_b16 %s, v%d offset:%d" % (v(AFB+16*(aa & 1)+4*p+2*h, 2), vTR, aa*4608 + h*512 + p*128))
        for p in range(4):
            out.append("ds_read_b128 %s, v%d offset:%d" % (v(RSB+16*(aa & 1)+4*p, 4), vRSR, aa*512 + p*128))
        return out
    def mfmas(aa):
        return ["v_mfma_f32_16x16x32_bf16 %s, %s, %s, 0" % (v(DB+32*(aa & 1)+8*p+4*ri, 4), v(AFB+16*(aa & 1)+4*p, 4), v(F0R+8*aa+4*ri, 4))
                for p in range(4) for ri in range(2)]
    def fmas(aa):
        out = []
        for p in range(4):
            for e in range(0, 8, 2):
                d, x, r = v(VA+8*p+e, 2), v(DB+32*(aa & 1)+8*p+e, 2), v(RSB+16*(aa & 1)+4*p+(e & 3), 2)
                out.append("v_pk_mul_f32 %s, %s, %s" % (d, x, r) if aa == 0 else "v_pk_fma_f32 %s, %s, %s, %s" % (d, x, r, d))
        return out
    raw = k
    class Dripper:
        def __call__(self, text, tag=None):
            raw(text, tag=tag); raw.drip()
        def __getattr__(self, n): return getattr(raw, n)
    k = Dripper()
    k.wait(vm="u0")
    k.stamp("c_u0")
    for l in reads(0): k(l)
    for aa in range(4):
        fill = fmas(aa-1) if aa else []
        m = mfmas(aa)
        if aa == 0:
            for l in m: k(l)
        else:
            rest = interleave(k, m, fill, 2)
            for l in rest: k(l)
        if aa < 2:
            k(res[2*aa]); k(res[2*aa+1])
        if aa == 1:
            if gate: gate[0]()
            else: raw.bg = late
        if aa < 3:
            k.wait(vm="u%d" % (aa+1))
            for l in reads(aa+1): k(l)
    if gate:
        gate[1](); raw.bg = late
    if hint and hint[2] == 0: hint[0]()
    fm = fmas(3)
    for p in range(4):
        for l in fm[4*p:4*p+4]: k(l)
        for r in range(4):
            k("v_cvt_pk_bf16_f32 v%d, v%d, v%d" % (AFB+4*p+r, VA+8*p+r, VA+8*p+4+r))
        for ri in range(2):
            k("v_mfma_f32_16x16x32_bf16 %s, %s, %s, 0" % (v(DB+8*p+4*ri, 4), v(AFB+4*p, 4), v(FAR+4*ri, 4)))
    if hint and hint[2] == 1: hint[0]()
    for p in range(4):
        tw = v(TWR+2*p, 2)
        for r in range(4):
            o = r & 1
            k("v_pk_mul_f32 %s, %s, %s op_sel:[%d,0] op_sel_hi:[%d,1]" % (v(RSB+8*p+2*r, 2), v(DB+8*p+(r & 2), 2), tw, o, o))
        for r in range(4):
            o = r & 1; d = v(RSB+8*p+2*r, 2)
            k("v_pk_fma_f32 %s, %s, %s, %s op_sel:[%d,1,0] op_sel_hi:[%d,0,1] neg_lo:[1,0,0]" % (d, v(DB+8*p+4+(r & 2), 2), tw, d, o, o))
        for r in range(4):
            k("v_cvt_pk_bf16_f32 v%d, v%d, v%d" % (VA+4*r+p, RSB+8*p+2*r, RSB+8*p+2*r+1))
    for r in range(4):
        k("ds_write_b128 v%d, %s" % (vXW+r, v(VA+4*r, 4)), tag="xw")
    for n in range(4):
        for jj in range(4):
            lo, hi = (2*jj, 2*jj+1) if n < 2 else (7-2*jj, 6-2*jj)
            k("v_lshlrev_b32 v%d, 16, v%d" % (F0R+8*n+lo, RES+4*n+jj))
            k("v_and_b32 v%d, 0xffff0000, v%d" % (F0R+8*n+hi, RES+4*n+jj))
    if hint and hint[2] == 2: hint[0]()
    k.wait(lg="xw")
    k("s_barrier")
    for ch in range(2):
        for ks in range(2):
            k("ds_read_b128 %s, v%d offset:%d" % (v(AFB+8*ch+4*ks, 4), vXR, ks*36864 + ch*2048), tag="xr")
    for ks in range(2):
        for n in range(4):
            for ch in range(2):
                d = v(DB+8*n+4*ch, 4)
                k("v_mfma_f32_16x16x32_bf16 %s, %s, %s, %s" % (d, v(AFB+8*ch+4*ks, 4), v(FBR+8*ks+4*(n & 1), 4), v(F0R+8*n+4*ch, 4) if ks == 0 else d))
    left, raw.bg = raw.bg, []
    k("s_barrier")
    if hint and hint[2] < 2: hint[1]()
    for n in range(4):
        for jj in range(4):
            lo, hi = (2*jj, 2*jj+1) if n < 2 else (7-2*jj, 6-2*jj)
            k("v_cvt_pk_bf16_f32 v%d, v%d, v%d" % (DB+32+4*n+jj, DB+8*n+lo, DB+8*n+hi))
        k("buffer_store_dwordx4 %s, v%d, %s, s%d offen sc1" % (v(DB+32+4*n, 4), vO[n], srd(WS), 66 + (n >> 1)), tag="cst")
    if hint and hint[2] == 2: hint[1]()
    for l in left: l()
    if left: print('column phase: %d background loads left for after the stores' % len(left))
```

```python
import re, struct

def f2u(x):
    return struct.unpack("<I", struct.pack("<f", x))[0]

_REG = re.compile(r"^(-?)\|?(v|a|s)(?:(\d+)|\[(\d+):(\d+)\])\|?$")

def regs_of(op):
    op = op.strip()
    if op.startswith("abs(") or op.startswith("-abs("):
        op = op[op.index("(")+1:-1]
    if op in ("vcc", "exec", "m0", "scc"):
        return [(op, 0)]
    if op in ("vcc_lo", "vcc_hi"):
        return [("vcc", 0)]
    if op in ("exec_lo", "exec_hi"):
        return [("exec", 0)]
    m = _REG.match(op)
    if not m:
        return []
    kind = m.group(2)
    if m.group(3) is not None:
        return [(kind, int(m.group(3)))]
    return [(kind, i) for i in range(int(m.group(4)), int(m.group(5))+1)]

TRANS = ("v_exp_f32", "v_log_f32", "v_rcp_f32", "v_rsq_f32", "v_sqrt_f32", "v_sin_f32", "v_cos_f32")
RMW = ("v_fmac_f32", "v_dot2c_f32_bf16", "v_writelane_b32", "v_pk_fmac_f16")

class Ins:
    def __init__(self, text):
        self.text = text
        parts = text.split(None, 1)
        self.op = parts[0]
        rest = parts[1] if len(parts) > 1 else ""
        head = re.split(r"\s(?=(?:quad_perm|op_sel|op_sel_hi|neg_lo|neg_hi):)", rest, 1)
        toks = [t.strip() for t in head[0].split(",")]
        ops = []
        self.mods = ""
        for n, t in enumerate(toks):
            if n == len(toks)-1 and " " in t:
                a, b = t.split(None, 1); ops.append(a); self.mods = b
            elif t:
                ops.append(t)
        if len(head) > 1: self.mods += " " + head[1]
        self.ops = ops
        op = self.op
        R = lambda xs: [r for o in xs for r in regs_of(o)]
        self.w, self.r, self.srcc, self.data = [], [], [], []
        self.passes = 0
        if op.startswith("v_mfma"):
            self.cls = "mfma"
            self.w = R(ops[:1]); self.r = R(ops[1:3]); self.srcc = R(ops[3:4])
            self.passes = 8 if "32x32" in op else (2 if "4x4x4" in op else 4)
        elif op.startswith("buffer_") or op.startswith("global_"):
            self.cls = "vmem"
            lds = "lds" in self.mods.split() or "_lds_" in op
            isbuf = op.startswith("buffer_")
            if "_load" in op:
                if lds: self.r = R(ops)
                else: self.w = R(ops[:1]); self.r = R(ops[1:])
            elif "_store" in op or "_atomic" in op:
                self.data = R(ops[:1]) if isbuf else R(ops[1:2])
                self.r = R(ops)
                if "_atomic" in op and "sc0" in self.mods.split():
                    self.w = R(ops[:1])
            if lds: self.r.append(("m0", 0))
        elif op.startswith("ds_"):
            self.cls = "ds"
            if "read" in op or "permute" in op or "swizzle" in op:
                self.w = R(ops[:1]); self.r = R(ops[1:])
            else:
                self.r = R(ops)
        elif op.startswith("s_load") or op in ("s_memtime", "s_memrealtime"):
            self.cls = "smem"; self.w = R(ops[:1]); self.r = R(ops[1:])
        elif op.startswith("v_"):
            self.cls = "valu"
            if op.startswith("v_permlane") and "swap" in op:
                self.w = R(ops[:2]); self.r = R(ops[:2])
            elif op.startswith("v_cmp"):
                self.w = R(ops[:1]); self.r = R(ops[1:])
            elif "_co_" in op:
                self.w = R(ops[:2]); self.r = R(ops[2:])
            else:
                self.w = R(ops[:1]); self.r = R(ops[1:])
                base = op.replace("_e32", "").replace("_e64", "")
                if base in RMW or "dpp" in op or "quad_perm" in self.mods or "row_" in self.mods:
                    self.r += self.w
        elif op == "s_set_gpr_idx_on":
            self.cls = "salu"; self.r = R(ops[:1]); self.w = [("m0", 0)]
        elif op.startswith("s_"):
            self.cls = "salu"
            if op.startswith("s_cmp") or op.startswith("s_bitcmp") or op.startswith("s_cbranch") or op in ("s_branch", "s_barrier", "s_nop", "s_waitcnt", "s_endpgm", "s_sleep", "s_setprio", "s_set_gpr_idx_off"):
                self.r = R(ops)
            else:
                self.w = R(ops[:1]); self.r = R(ops[1:])
                if "saveexec" in op: self.w.append(("exec", 0))
        else:
            raise ValueError("unknown instruction: " + text)
        self.dpp = self.cls == "valu" and ("dpp" in op or "quad_perm" in self.mods or "row_" in self.mods)
        self.trans = op.replace("_e32", "").replace("_e64", "") in TRANS
        self.wide_store = self.cls == "vmem" and "_store" in op and ("x3" in op or "x4" in op)
        self.states = 1
        if op == "s_nop": self.states = int(ops[0], 0) + 1

def need_states(p, c):
    n = 0
    pw = set(p.w)
    isv = lambda rs: set(r for r in rs if r[0] in "va" and len(r[0]) == 1)
    iss = lambda rs: set(r for r in rs if r[0] in ("s", "vcc"))
    if p.cls == "valu":
        v = isv(pw); s = iss(pw)
        if c.cls == "mfma" and v & set(c.r + c.srcc): n = max(n, 2)
        if c.cls == "valu":
            if c.op.startswith("v_permlane") and v & set(c.r): n = max(n, 2)
            if c.dpp and v & set(c.r): n = max(n, 2)
            if c.op.startswith("v_readlane") or c.op.startswith("v_readfirstlane"):
                if v & set(c.r): n = max(n, 1)
                if s & set(c.r): n = max(n, 4)
            if p.trans and not c.trans and v & set(c.r): n = max(n, 1)
            if s & set(c.r): n = max(n, 2)
            if p.op.startswith("v_dot") and v & set(c.r + c.w):
                if p.op != c.op or v & set(regs_of(c.ops[1]) + regs_of(c.ops[2])): n = max(n, 3)
        if c.cls == "vmem" and s & set(c.r): n = max(n, 5)
        if c.cls == "salu" and s & set(c.r): n = max(n, 4)
        if c.cls in ("vmem", "ds", "mfma") and p.op.startswith("v_dot") and v & set(c.r + c.srcc): n = max(n, 3)
    if p.cls == "salu":
        if ("m0", 0) in pw and ("m0", 0) in c.r and c.cls == "vmem": n = max(n, 1)
    if p.cls == "mfma":
        far = {2: 5, 4: 8, 8: 12}[p.passes]
        if c.cls == "mfma":
            if pw & set(c.r): n = max(n, far)
            if pw & set(c.srcc):
                if not (c.passes == p.passes and c.srcc == p.w): n = max(n, max(far - 2, 4))
                elif p.passes == 2: n = max(n, 2)
            elif pw & set(c.w): n = max(n, far - 2)
        elif c.cls in ("valu", "vmem", "ds") and pw & set(c.r + c.w): n = max(n, far)
        if c.cls in ("valu", "vmem", "ds") and set(p.srcc) & set(c.w): n = max(n, p.passes - 1)
    if p.wide_store and set(p.data) & set(c.w): n = max(n, 2)
    return n

class Kern:
    def __init__(self, name, grid, block=256, lds=0, vgpr=256, agpr=0, sgpr=100):
        self.name, self.grid, self.block, self.lds = name, grid, block, lds
        self.vgpr, self.agpr, self.sgpr = vgpr, agpr, sgpr
        self.lines = []
        self.hist = []
        self.vmq, self.lgq = [], []
        self.nlab = 0
        self.nops = 0
        self.tails = []
        self.writer = {}
        self.tagcount = {}
        self.protected = set()
        self.bg, self.bg_gap, self.since_vm = [], 14, 0
        self.count = {}
    def raw(self, s):
        self.lines.append(s)
    def comment(self, s):
        self.lines.append("    ; " + s)
    def _put(self, ins):
        self.lines.append("    " + ins.text)
        self.hist.append(ins)
        if len(self.hist) > 24: self.hist.pop(0)
        self.count[ins.cls] = self.count.get(ins.cls, 0) + 1
    def _waitcnt(self, vm, lg):
        parts = []
        if vm is not None:
            vm = min(vm, 63); parts.append("vmcnt(%d)" % vm)
            self.vmq = self.vmq[len(self.vmq)-vm:] if vm else []
        if lg is not None:
            lg = min(lg, 15); parts.append("lgkmcnt(%d)" % lg)
            self.lgq = self.lgq[len(self.lgq)-lg:] if lg else []
        if parts:
            self._put(Ins("s_waitcnt " + " ".join(parts)))
    def _after(self, q, pred):
        for n in range(len(q)-1, -1, -1):
            if pred(q[n]): return len(q)-1-n
        return None
    def wait(self, vm=None, lg=None):
        a = b = None
        if vm == "all": a = 0 if self.vmq else None
        elif vm is not None: a = self._after(self.vmq, lambda e: e[0] == vm)
        if lg == "all": b = 0 if self.lgq else None
        elif lg is not None: b = self._after(self.lgq, lambda e: e[0] == lg)
        if b is not None and any(e[2] for e in self.lgq): b = 0
        self._waitcnt(a, b)
    def __call__(self, text, tag=None):
        for l in text.strip("\n").split("\n"):
            l = l.strip()
            if not l: continue
            if l.endswith(":"):
                self.lines.append(l); continue
            ins = Ins(l)
            touched = set(ins.r + ins.w + ins.srcc)
            a = self._after(self.vmq, lambda e: e[1] & touched)
            b = self._after(self.lgq, lambda e: e[1] & touched)
            if b is not None and any(e[2] for e in self.lgq): b = 0
            self._waitcnt(a, b)
            dist = 0; need = 0
            for p in reversed(self.hist):
                need = max(need, need_states(p, ins) - dist)
                dist += p.states
                if dist >= 20: break
            while need > 0:
                n = min(need, 16)
                self._put(Ins("s_nop %d" % (n-1))); self.nops += 1
                need -= n
            if ins.op.startswith("global_"):
                pair = regs_of(ins.ops[0] if "_lds_" in ins.op else ins.ops[1])
                assert len(pair) == 2 and all(self.writer.get(r) == "v_lshl_add_u64" for r in pair), "unsafe address: " + l
            assert not any(r[0] == "s" and r[1] in self.protected for r in ins.w), "write to a protected register: " + l
            for r in ins.w: self.writer[r] = ins.op
            self._put(ins)
            self.since_vm = 0 if ins.cls == "vmem" else self.since_vm + (4 if ins.cls == "mfma" else 1)
            if tag: self.tagcount[tag] = self.tagcount.get(tag, 0) + 1
            if ins.cls == "vmem": self.vmq.append((tag, set(ins.w), False))
            elif ins.cls == "ds": self.lgq.append((tag, set(ins.w), False))
            elif ins.cls == "smem": self.lgq.append((tag, set(ins.w), True))
            if ins.op == "s_waitcnt":
                m = re.search(r"vmcnt\((\d+)\)", l)
                if m: n = int(m.group(1)); self.vmq = self.vmq[len(self.vmq)-n:] if n and n < len(self.vmq) else (self.vmq if n else [])
                m = re.search(r"lgkmcnt\((\d+)\)", l)
                if m: n = int(m.group(1)); self.lgq = self.lgq[len(self.lgq)-n:] if n and n < len(self.lgq) else (self.lgq if n else [])
    stamps_on = False
    only = None
    few = False
    dbg_mode = None
    dbg_list = []
    dbg_regs = [100] + list(range(39, 47)) + [49] + list(range(24, 32))
    def stamp(self, name):
        if self.dbg_mode:
            if name in self.dbg_mode:
                self("s_memrealtime s[98:99]"); self("s_waitcnt lgkmcnt(0)")
                key = (name, getattr(self, "dbg_layer", 0))
                if key not in self.dbg_list: self.dbg_list.append(key)
                self("s_mov_b32 s%d, s98" % self.dbg_regs[self.dbg_list.index(key)])
            return
        if not self.stamps_on or (self.only and name not in self.only): return
        if self.few and name not in ("entry", "last"): name += str(getattr(self, "dbg_layer", 0))
        if not hasattr(self, "stamp_names"): self.stamp_names = []
        n = len(self.stamp_names) if name not in self.stamp_names else self.stamp_names.index(name)
        if name not in self.stamp_names: self.stamp_names.append(name)
        self("s_memrealtime s[98:99]")
        self("s_waitcnt lgkmcnt(0)")
        self("s_mov_b32 s%d, s98" % self.stamp_regs[n])
    def stamp_val(self, name, sreg):
        if not self.stamps_on or (self.only and name not in self.only): return
        if name not in self.stamp_names: self.stamp_names.append(name)
        self("s_mov_b32 s%d, s%d" % (self.stamp_regs[self.stamp_names.index(name)], sreg))
    def flush_stamps(self, base, slot):
        if not self.stamps_on or not self.stamp_names: return
        self("s_lshl_b32 s98, s2, 2")
        self("s_add_u32 s98, s98, s3")
        self("s_lshl_b32 s98, s98, 7")
        self("s_add_u32 s98, s98, 0x%x" % (base + slot*131072))
        for n in range(len(self.stamp_names)):
            self("v_mov_b32 v1, s%d" % self.stamp_regs[n])
            self("buffer_store_dword v1, off, s[8:11], s98 offset:%d" % (4*n))
            self("s_nop 1")
        self.stamp_log = getattr(self, "stamp_log", []) + [(slot, list(self.stamp_names))]
        self.stamp_names = []
    def drip(self):
        if self.bg and self.since_vm >= self.bg_gap:
            self.bg.pop(0)()
    def label(self, base):
        self.nlab += 1
        return "L_%s_%s_%d" % (self.name[:4], base, self.nlab)
    def settle(self, vm=True):
        a = self._after(self.vmq, lambda e: e[1]) if vm else None
        b = self._after(self.lgq, lambda e: e[1])
        if b is not None and any(e[2] for e in self.lgq): b = 0
        self._waitcnt(a, b)
        dist = 0; need = 0
        for p in reversed(self.hist):
            far = {"mfma": 12 if p.passes == 8 else 8, "valu": 5}.get(p.cls, 2 if p.wide_store else 0)
            need = max(need, far - dist); dist += p.states
        if need > 0: self._put(Ins("s_nop %d" % (need-1)))
    def fork(self):
        return (list(self.vmq), list(self.lgq), list(self.hist))
    def restore(self, st):
        self.vmq, self.lgq, self.hist = list(st[0]), list(st[1]), list(st[2])
    def srd(self, s, base, nbytes):
        self("s_mov_b32 s%d, s%d" % (s, base))
        self("s_mov_b32 s%d, s%d" % (s+1, base+1))
        self("s_mov_b32 s%d, 0x%x" % (s+2, nbytes))
        self("s_mov_b32 s%d, 0x00020000" % (s+3))
    def text(self):
        acc = (self.vgpr + 3)//4*4
        nfv = acc + self.agpr if self.agpr else self.vgpr
        code = ".text\n.globl %s\n.p2align 8\n.type %s,@function\n%s:\n%s\n" % (self.name, self.name, self.name, "\n".join(self.lines))
        desc = (".amdhsa_kernel %s\n  .amdhsa_next_free_vgpr %d\n  .amdhsa_next_free_sgpr %d\n  .amdhsa_accum_offset %d\n"
                "  .amdhsa_group_segment_fixed_size 0\n  .amdhsa_kernarg_size 104\n  .amdhsa_user_sgpr_count 2\n"
                "  .amdhsa_user_sgpr_kernarg_segment_ptr 1\n  .amdhsa_system_sgpr_workgroup_id_x 1\n"
                "  .amdhsa_float_denorm_mode_32 3\n.end_amdhsa_kernel\n") % (self.name, nfv, self.sgpr, acc)
        return code, desc

NAME = "interleave_layers__spectral_fnet__dense_activation_squared_relu__prompt"
KA = dict(x=0, seq_re=8, seq_im=16, hid_re=24, hid_im=32, bx=40, w1=48, b1=56, w2=64, b2=72, out=80, dbg=88, ws=96)

def assemble(header, kerns, order, tables=""):
    out = [header]
    if len(order) == 1 and order[0].name == NAME + "_kernel":
        k = order[0]
        out.append("; @launch grid=(%d,1,1) block=(%d,1,1) lds=%d\n" % (k.grid, k.block, k.lds))
    else:
        for k in order:
            out.append("; @launch kernel=%s grid=(%d,1,1) block=(%d,1,1) lds=%d\n" % (k.name, k.grid, k.block, k.lds))
    out.append('.amdgcn_target "amdgcn-amd-amdhsa--gfx950"\n')
    descs = []
    for k in kerns:
        c, d = k.text(); out.append(c); descs.append(d)
    out.append(tables)
    out.append('.section .rodata,"a"\n')
    for d in descs:
        out.append(".p2align 6\n" + d)
    return "".join(out)

def interleave(k, main, fill, per_gap, start=0):
    def put(x):
        if callable(x): x()
        elif isinstance(x, tuple): k(x[0], tag=x[1])
        else: k(x)
    fill = list(fill)
    for n, m in enumerate(main):
        put(m)
        if n >= start:
            for _ in range(per_gap):
                if fill: put(fill.pop(0))
    return fill
```

```python
from common import *

sKP, sC, sRH, sCB = 70, 71, 72, 73
sXO, sW1O, sHS, sHS3 = 74, 75, 76, 77
sCNT, sCNTP = 78, 79
sHB = [80, 81, 82, 83]
sWB = [84, 85, 86, 87]
sT0, sT1, sT2 = 88, 89, 90
sSPIN = 91
vL, vA0, vA1, vA2, vX, vH3, vBQ, vSIG, vONE, vBS, vRW = 1, 2, 3, 4, 5, 6, 7, 8, 9, 10, 11
vHL = 12
SB, TMP = 16, 24
ACCP, ACCS, GR = 32, 80, 88
XBR = 96
RING, NRING = 220, 9
G2ACC, HR, RB, RT = 16, 96, 216, 236
SPIN_LIMIT = 100000
NS = 7
M80R = 40

P = dict(flip=1, xs=3, outpol=1, J=3, touch2=1, slp=0, map42=1, la=14, nx=3, epi=3, gap=5, wgap=4, hgap=4, hpre=2, slots=(1, 5, 9, 13, 17), h0=32, hB=-1, hC=3, thr=60)

def roles(k):
    if P["map42"]:
        k("s_lshr_b32 s70, s4, 1")
        k("s_lshl_b32 s70, s70, 2")
        k("s_lshr_b32 s88, s5, 3")
        k("s_add_u32 s70, s70, s88")
        k("s_and_b32 s88, s4, 1")
        k("s_and_b32 s89, s5, 7")
        k("s_lshl_b32 s71, s88, 3")
        k("s_add_u32 s71, s71, s89")
        k("s_lshr_b32 s72, s89, 2")
        k("s_and_b32 s73, s89, 3")
        k("s_lshl_b32 s88, s88, 2")
        k("s_add_u32 s73, s73, s88")
    else:
        k("s_lshr_b32 s70, s5, 4")
        k("s_lshl_b32 s88, s4, 1")
        k("s_add_u32 s70, s70, s88")
        k("s_and_b32 s71, s5, 15")
        k("s_lshr_b32 s72, s71, 3")
        k("s_and_b32 s73, s71, 7")
    k("s_mul_i32 s75, s71, %d" % LW1)
    k("s_lshl_b32 s69, s3, 10")
    k("s_add_u32 s75, s75, s69")
    k("s_add_u32 s75, s75, 0x%x" % W1P)

def w1_dma3(k, lo, hi, tag, nw=3):
    k("s_add_u32 s89, s75, %d" % ((lo-4+nw)*1024))
    k("s_add_u32 s88, s69, %d" % ((lo-4+nw)*1024))
    for j in range((hi - lo)//nw):
        k("s_add_u32 m0, s88, %d" % (j*nw*1024))
        if j: k("s_add_u32 s89, s89, %d" % (nw*1024))
        else: k("s_nop 0")
        k("buffer_load_dwordx4 v%d, %s, s89 offen lds" % (vL, srd(WS)), tag=tag)
        if j >= P["thr"]: k("s_waitcnt vmcnt(%d)" % P["thr"])

def w1_dma(k, lo, hi, tag):
    out = []
    for j in range(lo, hi):
        def one(j=j):
            k("s_add_u32 m0, s69, %d" % (j*4096))
            k("s_add_u32 s88, s75, %d" % (j*4096))
            k("buffer_load_dwordx4 v%d, %s, s88 offen lds" % (vL, srd(WS)), tag=tag)
        out.append(one)
    return out

def pre_v(k):
    k.comment("feed-forward: addresses")
    k("v_lshlrev_b32 v%d, 4, v0" % vL)
    k("v_add_u32 v%d, %d, v%d" % (vA0, PT_OFF[0], vL))
    k("v_add_u32 v%d, %d, v%d" % (vA1, PT_OFF[2], vL))
    k("v_add_u32 v%d, %d, v%d" % (vA2, PT_OFF[4], vL))
    k("v_and_b32 v16, 15, v0")
    k("v_lshrrev_b32 v17, 4, v0")
    k("v_lshlrev_b32 v18, 4, v16")
    k("v_lshl_add_u32 v%d, v17, 9, v18" % vX)
    k("s_mul_i32 s88, s71, 3")
    k("v_add_u32 v19, s88, v17")
    k("v_and_b32 v20, 1, v19")
    k("v_lshl_add_u32 v18, v20, 3, v18")
    k("v_bfe_u32 v20, v19, 1, 2")
    k("v_lshl_add_u32 v18, v20, 8, v18")
    k("v_lshrrev_b32 v20, 3, v19")
    k("v_add_u32 v20, 48, v20")
    k("v_lshl_add_u32 v18, v20, 12, v18")
    k("v_add_u32 v19, 1, v17")
    k("v_lshrrev_b32 v19, 2, v19")
    k("v_lshl_add_u32 v%d, v19, 30, v18" % vH3)
    k("v_lshrrev_b32 v19, 2, v16")
    k("v_lshl_add_u32 v19, v19, 4, v16")
    k("v_lshlrev_b32 v%d, 2, v19" % vBQ)
    k("v_add_lshl_u32 v%d, v16, 48, 2" % vBS)
    k("s_lshl_b32 s88, s3, 7")
    k("s_add_u32 s88, s88, %d" % L_RS2)
    k("v_lshl_add_u32 v%d, v16, 2, s88" % vRW)
    k("v_min_u32 v16, 1, v0")
    k("v_lshlrev_b32 v%d, 30, v16" % vSIG)
    k("v_mov_b32 v%d, 1" % vONE)
    for r, m in ((1, 0x22222222), (2, 0x44444444), (3, 0x88888888)):
        k("s_mov_b32 s%d, 0x%x" % (90+2*r, m)); k("s_mov_b32 s%d, 0x%x" % (91+2*r, m))
    for lam in range(4):
        k("s_add_u32 s88, s3, %d" % (lam+1))
        k("s_and_b32 s88, s88, 3")
        k("s_lshl_b32 s88, s88, 10")
        k("v_add_u32 v%d, s88, v%d" % (vHL+lam, vL))

def pre_s(k, layer):
    k("s_lshl_b32 s88, s70, 2")
    k("s_add_u32 s88, s88, s3")
    k("s_mul_i32 s74, s88, 40960")
    k("s_add_u32 s74, s74, 0x%x" % XG[2*layer+1])
    k("s_lshr_b32 s89, s88, 1")
    k("s_mul_i32 s77, s89, %d" % HBLK)
    k("s_and_b32 s90, s3, 1")
    k("s_lshl_b32 s90, s90, 11")
    k("s_add_u32 s77, s77, s90")
    k("s_add_u32 s77, s77, 0x%x" % H[layer])
    k("s_lshl_b32 s90, s71, 13")
    k("s_add_u32 s76, s77, s90")
    k("s_lshl_b32 s89, s70, 1")
    k("s_add_u32 s89, s89, s72")
    k("s_mul_i32 s89, s89, %d" % HBLK)
    k("s_add_u32 s89, s89, 0x%x" % H[layer])
    step_bases(k, 89, 4096, sHB)

def step_bases(k, base, unit, regs):
    k("s_mul_i32 s88, s3, %d" % (8*unit)); k("s_add_u32 s%d, s%d, s88" % (regs[0], base))
    k("s_mul_i32 s88, s3, %d" % unit); k("s_add_u32 s88, s88, %d" % (48*unit)); k("s_add_u32 s%d, s%d, s88" % (regs[1], base))
    k("s_add_u32 s%d, s%d, %d" % (regs[2], regs[1], 4*unit))
    k("s_cmp_lt_u32 s3, 2"); k("s_cselect_b32 s%d, s%d, 0x%x" % (regs[2], regs[2], OOB))
    k("s_mul_i32 s88, s3, %d" % (4*unit)); k("s_add_u32 s88, s88, %d" % (32*unit)); k("s_add_u32 s%d, s%d, s88" % (regs[3], base))

def pre_w(k, layer):
    k("s_mul_i32 s89, s73, %d" % LW2)
    k("s_add_u32 s89, s89, 0x%x" % W2P[layer])
    step_bases(k, 89, 5120, sWB)

def pre(k, layer):
    pre_s(k, layer); pre_v(k)

def step_base(idx):
    if idx < 4: return 0, 2*idx
    if idx == 4: return 1, 0
    if idx == 5: return 2, 0
    if idx < 10: return 0, 2*(idx-6) + 1
    return 3, idx-10

def w2_reg(idx, dt):
    return a(20*(idx % 12)+4*dt, 4)

def w2_loads(k, idx):
    b, n = step_base(idx)
    out = []
    for dt in range(5):
        def one(dt=dt):
            if dt == 0: k("s_add_u32 s89, s%d, %d" % (sWB[b], n*5120))
            if dt == 4: k("s_add_u32 s89, s%d, %d" % (sWB[b], n*5120 + 4096))
            k("buffer_load_dwordx4 %s, v%d, %s, s89 offen offset:%d" % (w2_reg(idx, dt), vL, srd(WS), (dt & 3)*1024))
        out.append(one)
    return out

def poison(k, off, nbytes, vz=64):
    n = -(-nbytes // (368*1024))
    for r in range(4): k("v_mov_b32 v%d, -1" % (vz+r))
    k("s_add_u32 s%d, s%d, 0x%x" % (AUX, pWS, off))
    k("s_addc_u32 s%d, s%d, 0" % (AUX+1, pWS+1))
    k("s_mov_b32 s%d, %d" % (AUX+2, nbytes))
    k("s_mov_b32 s%d, 0x00020000" % (AUX+3))
    k("s_lshl_b32 s90, s22, 2")
    k("s_add_u32 s90, s90, s3")
    k("s_mul_i32 s90, s90, %d" % (n*1024))
    out = []
    for j in range(n):
        def one(j=j):
            if j and j % 4 == 0: k("s_add_u32 s90, s90, 4096")
            k("buffer_store_dwordx4 %s, v%d, %s, s90 offen offset:%d sc1" % (v(vz, 4), vL, srd(AUX), (j & 3)*1024), tag="pz")
        out.append(one)
    return out

def poison_h(k, layer, vz):
    for r in range(4): k("v_mov_b32 v%d, -1" % (vz+r))
    k("s_mul_i32 s90, s2, 3")
    k("s_add_u32 s90, s90, s3")
    k("s_mul_i32 s90, s90, 9216")
    k("s_add_u32 s90, s90, 0x%x" % (H[layer] - 9216))
    for j in range(9):
        if j and j % 4 == 0: k("s_add_u32 s90, s90, 4096")
        k("buffer_store_dwordx4 %s, v%d, %s, s90 offen offset:%d sc1" % (v(vz, 4), vL, srd(WS), (j & 3)*1024), tag="ph")

def w1_block(k, sblk):
    k("s_lshl_b32 s88, s%d, 10" % sblk)
    k("s_mov_b32 m0, s88")
    k("s_sub_u32 s88, s88, s69")
    k("s_add_u32 s88, s88, s75")
    k("buffer_load_dwordx4 v%d, %s, s88 offen lds" % (vL, srd(WS)), tag="w1")

def x_check(s):
    b = XBR + 8*s
    return ["v_max3_u32 v31, v%d, v%d, v%d" % (b, b+1, b+2), "v_max3_u32 v31, v31, v%d, v%d" % (b+3, b+4),
            "v_max3_u32 v31, v31, v%d, v%d" % (b+5, b+6), "v_max_u32 v31, v31, v%d" % (b+7), "v_cmp_eq_u32 vcc, -1, v31"]

def x_branch(k, s, last):
    retry, back = k.label("xretry"), k.label("xback")
    k("s_cbranch_vccnz " + retry)
    k(back + ":")
    def tail():
        loop = k.label("xloop")
        k.vmq = []; k.lgq = []; k.hist = []
        k(retry + ":")
        k("s_mov_b32 s54, 0")
        k(loop + ":")
        for n in range(2*s, 2*last + 2):
            if n == 2*s or n % 4 == 0: k("s_add_u32 s53, s52, %d" % ((n >> 2)*4096))
            k("buffer_load_dwordx4 %s, v%d, %s, s53 offen offset:%d sc1" % (v(XBR+4*n, 4), vX, srd(WS), ((n >> 1) & 1)*2048 + (n & 1)*256))
        k("s_add_u32 s54, s54, 1")
        if k.stamps_on: k("s_add_u32 s101, s101, 0x100")
        k("s_waitcnt vmcnt(0)")
        for l in x_check(s): k(l)
        k("s_cmp_ge_u32 s54, %d" % SPIN_LIMIT)
        k("s_cbranch_scc1 " + back)
        k("s_nop 2")
        k("s_cbranch_vccnz " + loop)
        k("s_branch " + back)
    k.tails.append(tail)

def poison_next(k, vz):
    out = ["v_mov_b32 v%d, -1" % (vz+r) for r in range(4)]
    out += ["s_lshl_b32 s95, s2, 2", "s_add_u32 s95, s95, s3", "s_mul_i32 s95, s95, 6912", "s_add_u32 s95, s95, 0x%x" % H[1]]
    for j in range(7):
        if j == 4: out.append("s_add_u32 s95, s95, 4096")
        if j == 6: out.append("s_mov_b32 exec_hi, 0xffff")
        out.append("buffer_store_dwordx4 %s, v%d, %s, s95 offen offset:%d sc1" % (v(vz, 4), vL, srd(WS), (j & 3)*1024))
    return out

def touch_next(k):
    def setup():
        k("s_and_b32 s97, s70, 3")
        k("s_lshl_b32 s97, s97, 1")
        k("s_add_u32 s97, s97, s72")
        k("s_lshl_b32 s97, s97, 2")
        k("s_add_u32 s97, s97, s3")
        k("s_mul_i32 s97, s97, 8640")
        k("s_mul_i32 s96, s73, %d" % LW2)
        k("s_add_u32 s96, s96, s97")
        k("s_add_u32 s96, s96, 0x%x" % W2P[1])
        k("v_lshlrev_b32 v11, 6, v0")
    def one(j):
        if j: k("s_add_u32 s96, s96, %d" % (4096 if j == 1 else 448))
        k("buffer_load_dword v%d, v11, %s, s96 offen" % (208+j, srd(WS)))
    return [setup] + [lambda j=j: one(j) for j in range(3)]

def w2_stage(k):
    out = []
    for idx in (11, 12, 13):
        b, n = step_base(idx)
        for dt in range(5):
            def one(idx=idx, dt=dt, b=b, n=n):
                if idx == 11 and dt == 0:
                    k("s_mul_i32 s91, s3, 15360"); k("s_add_u32 s91, s91, %d" % S_OFF)
                j = (idx-11)*5 + dt
                if j % 4 == 0:
                    k("s_add_u32 m0, s91, %d" % (j*1024))
                    k("s_add_u32 s89, s%d, %d" % (sWB[b], n*5120 + dt*1024))
                k("buffer_load_dwordx4 v%d, %s, s89 offen offset:%d lds" % (vL, srd(WS), (j % 4)*1024), tag="w2s")
            out.append(one)
    return out

def h_loads(k, idx):
    b, n = step_base(idx)
    out = []
    for lam in range(4):
        def one(lam=lam):
            if lam == 0: k("s_add_u32 s90, s%d, %d" % (sHB[b], n*4096))
            k("buffer_load_dwordx4 %s, v%d, %s, s90 offen sc1" % (v(HR+16*(idx % NS)+4*lam, 4), vHL+lam, srd(WS)), tag="h%d" % idx)
        out.append(one)
    return out

def x_load(k, n):
    s, tt = n >> 1, n & 1
    if n and n % 4 == 0: k("s_add_u32 s74, s74, 4096")
    k("buffer_load_dwordx4 %s, v%d, %s, s74 offen offset:%d sc1" % (v(XBR+4*n, 4), vX, srd(WS), (s & 1)*2048 + tt*256), tag="x%d" % n)

def signal(k, stage, tag):
    def f():
        if stage == 0: k.stamp("sigA_pre")
        k.wait(vm=tag)
        k("buffer_atomic_add v%d, v%d, %s, s%d offen offset:%d sc1" % (vONE, vSIG, srd(WS), sCNT, stage*256))
        k.stamp("sig%d" % stage)
    return f

def poll_issue(k, stage, vp):
    return lambda: k("buffer_load_dword v%d, off, %s, s%d offset:%d sc1" % (vp, srd(WS), sCNTP, stage*256))

def poll_check(k, vp, soff, off, want):
    ok, again = k.label("ok"), k.label("again")
    k("v_readfirstlane_b32 s88, v%d" % vp)
    k("s_mov_b32 s%d, 0" % sSPIN)
    k("s_cmp_ge_u32 s88, %d" % want)
    k("s_cbranch_scc1 " + ok)
    st = k.fork()
    k(again + ":")
    k("buffer_load_dword v%d, off, %s, s%d offset:%d sc1" % (vp, srd(WS), soff, off))
    k("s_add_u32 s%d, s%d, 1" % (sSPIN, sSPIN))
    k("s_waitcnt vmcnt(0)")
    if P["slp"]: k("s_sleep %d" % P["slp"])
    k("v_readfirstlane_b32 s88, v%d" % vp)
    k("s_cmp_ge_u32 s%d, %d" % (sSPIN, SPIN_LIMIT))
    k("s_cbranch_scc1 " + ok)
    k("s_cmp_ge_u32 s88, %d" % want)
    k("s_cbranch_scc0 " + again)
    k.restore(st)
    k(ok + ":")
    k.stamp_val("#spin%d" % (off // 256), sSPIN)

def relu_ops(flip):
    return ("v_mul_f32 v%d, -v%d, |v%d|", "v_pk_max_u16 v%d, v%d, s79") if flip else ("v_mul_f32 v%d, v%d, |v%d|", "v_pk_max_i16 v%d, v%d, 0")

def pair_epilogue(p, tag, flip):
    out = []; mul, mx = relu_ops(flip)
    for tt in range(2):
        b = ACCP + 16*p + 8*tt
        for r in range(8): out.append(mul % (b+r, b+r, b+r))
        for r in range(4): out.append("v_cvt_pk_bf16_f32 v%d, v%d, v%d" % (b+r, b+2*r, b+2*r+1))
        for r in range(4): out.append(mx % (b+r, b+r))
        out.append(("buffer_store_dwordx4 %s, v%d, %s, s%d offen offset:%d sc1" % (v(b, 4), vL, srd(WS), sHS, tt*1024), tag))
    return out

def short_epilogue(tag, flip):
    out = []; mul, mx = relu_ops(flip)
    for tt in range(2):
        b = ACCS + 4*tt
        for r in range(4): out.append(mul % (b+r, b+r, b+r))
        for r in range(2): out.append("v_cvt_pk_bf16_f32 v%d, v%d, v%d" % (b+r, b+2*r, b+2*r+1))
        for r in range(2): out.append(mx % (b+r, b+r))
        out.append(("buffer_store_dwordx2 %s, v%d, %s, s%d offen offset:%d sc1" % (v(b, 2), vH3, srd(WS), sHS3, tt*1024), tag))
    return out

def stats_ops():
    c = f2u(1.0/D)
    out = []
    both = lambda f: [f(GR+4*tt, SB+4*tt, TMP+4*tt, tt) for tt in range(2)]
    out += both(lambda G, S_, T, tt: "ds_bpermute_b32 v%d, v%d, v%d" % (T, vBS, ACCS+4*tt))
    for r in range(1, 4):
        out += both(lambda G, S_, T, tt: "v_cndmask_b32 v%d, v%d, v%d, s[%d:%d]" % (G, G, G+r, 90+2*r, 91+2*r))
    out += both(lambda G, S_, T, tt: "ds_bpermute_b32 v%d, v%d, v%d" % (G+1, vBQ, G))
    for f in (
        lambda G, S_, T, tt: "v_mov_b32 v%d, 0" % (S_+3),
        lambda G, S_, T, tt: "v_mul_f32 v%d, 0x%x, v%d" % (T, f2u(-1.0/D), T),
        lambda G, S_, T, tt: "v_cvt_pk_bf16_f32 v%d, v%d, v%d" % (S_, T, T),
        lambda G, S_, T, tt: "v_lshlrev_b32 v%d, 16, v%d" % (T+1, S_),
        lambda G, S_, T, tt: "v_sub_f32 v%d, v%d, v%d" % (T+1, T, T+1),
        lambda G, S_, T, tt: "v_mul_f32 v%d, 0x%x, v%d" % (G, c, G+1),
        lambda G, S_, T, tt: "v_fma_f32 v%d, -v%d, v%d, v%d" % (G, T, T, G),
        lambda G, S_, T, tt: "v_max_f32 v%d, 0, v%d" % (G, G),
        lambda G, S_, T, tt: "v_add_f32 v%d, 0x%x, v%d" % (G, f2u(1e-5), G),
        lambda G, S_, T, tt: "v_sqrt_f32 v%d, v%d" % (T+2, G),
        lambda G, S_, T, tt: "v_rcp_f32 v%d, v%d" % (G, G),
        lambda G, S_, T, tt: "v_cvt_pk_bf16_f32 v%d, v%d, v%d" % (S_+1, T+1, T+2),
        lambda G, S_, T, tt: "v_and_b32 v%d, 0xffff0000, v%d" % (T+3, S_+1),
        lambda G, S_, T, tt: "v_sub_f32 v%d, v%d, v%d" % (T+3, T+2, T+3),
        lambda G, S_, T, tt: "v_cvt_pk_bf16_f32 v%d, v%d, 0" % (S_+2, T+3),
        lambda G, S_, T, tt: "ds_write_b32 v%d, v%d offset:%d" % (vRW, G, tt*64)):
        out += both(f)
    return out

def extract_setup(k):
    return ["s_lshr_b32 s78, s73, 1", "s_mov_b32 s79, 0x05040100", "s_bitcmp0_b32 s73, 0", "s_cselect_b32 s79, s79, 0x07060302",
            "v_and_b32 v24, 15, v0", "v_mul_u32_u24 v24, 160, v24", "v_lshrrev_b32 v25, 4, v0", "v_lshl_add_u32 v24, v25, 2, v24",
            "s_and_b32 s88, s3, 1", "s_mul_i32 s88, s88, 5120", "s_add_u32 s88, s88, %d" % L_RES,
            "s_lshr_b32 s91, s3, 1", "s_cmp_eq_u32 s91, s72", "s_cselect_b32 s88, s88, 0x30000",
            "v_add_u32 v24, s88, v24", "v_add_u32 v25, 2560, v24"]

def extract_block(k, u, tt):
    def f():
        k("s_set_gpr_idx_on s78, gpr_idx(SRC0,SRC1)")
        for e in range(2):
            x = XBR + 16*(u+e) + 4*tt
            k("v_perm_b32 v%d, v%d, v%d, s79" % (26+2*tt+e, x+8, x))
        k("s_set_gpr_idx_off")
        k("ds_write2_b32 v%d, v%d, v%d offset0:%d offset1:%d" % (24+tt, 26+2*tt, 27+2*tt, 4*u, 4*u+4))
    return f

def put(k, x):
    if callable(x): x()
    elif isinstance(x, tuple): k(x[0], tag=x[1])
    else: k(x)

def g1(k, layer, w2_idx, late_image):
    k.comment("first GEMM")
    flip = layer and P["flip"]; xs = P["xs"] >> layer & 1
    LA = P["la"]
    groups = [[(6, s), (0, s), (1, s)] for s in range(20)]
    G2_ = len(groups)
    nx = P["nx"]
    half = lambda p, a_, b_: [[(t, s) for s in (2*u, 2*u+1) for t in (2*p, 2*p+1)] for u in range(a_, b_)]
    groups += half(1, 0, nx) + [[("x", 0), ("x", 1), ("x", 6)]] + half(1, nx, 10)
    G3_ = len(groups)
    groups += [[("x", 2), ("x", 3)]] + half(2, 0, 10) + [[("x", 4), ("x", 5)]]
    frags = [(g, f) for g, fs in enumerate(groups) for f in fs]
    slot = lambda n: a(RING + 4*(n % NRING), 4)
    def read(n):
        g, (t, s) = frags[n]
        if t == "x": txt = "v%d offset:%d" % (vL, EX_OFF + ((s+1) % 7)*1024)
        elif t == 6: txt = "v%d offset:%d" % (vL, S_OFF + s*1024)
        else: txt = "v%d offset:%d" % ((vA0, vA1, vA2)[t >> 1], (t & 1)*20480 + s*1024)
        return ("ds_read_b128 %s, %s" % (slot(n), txt), "g%d" % g)
    def acc(t, tt): return v(ACCS+4*tt, 4) if t == 6 else v(ACCP+16*(t >> 1)+8*tt+4*(t & 1), 4)
    mm = []
    for n, (g, (t, s)) in enumerate(frags):
        for tt in range(2):
            if t == "x": mm.append((g, n, "v_mfma_f32_16x16x32_bf16 %s, %s, %s, %s" % (acc(s, tt), slot(n), v(SB+4*tt, 4), acc(s, tt))))
            else: mm.append((g, n, "v_mfma_f32_16x16x32_bf16 %s, %s, %s, %s" % (acc(t, tt), slot(n), v(XBR+8*s+4*tt, 4), acc(t, tt) if s else "0")))
        if g < G2_ and t == 1:
            for tt in range(2):
                x = v(XBR+8*s+4*tt, 4)
                mm.append((g, None, "v_mfma_f32_16x16x32_bf16 %s, %s, %s, %s" % (v(GR+4*tt, 4), x, x, v(GR+4*tt, 4) if s else "0")))
    first = {}
    for i, (g, n, _) in enumerate(mm): first.setdefault(g, i)
    M2, M3, END = first[G2_], first[G3_], len(mm)
    MX = first[G2_ + nx]
    fill = {i: [] for i in range(END)}
    def spread(ops, i0, num, den=1):
        for j, op in enumerate(ops): fill[min(i0 + j*den//num, END-1)].append(op)
        return i0 + len(ops)*den//num + 1
    for n in range(LA, 40):
        fill[8*((n-LA) >> 1) + 1 + 4*(n & 1)].append(lambda n=n: x_load(k, n))
    if layer == 1:
        spread(extract_setup(k), 2, 1, 1)
        for j in range(5):
            for tt in range(2): fill[32*j + 32 + (3*tt + 2 if j < 4 else tt)].append(extract_block(k, 2*j, tt))
    st = stats_ops()
    spread(st, M2 + 3, len(st), MX - M2 - 5)
    nex = spread((["s_mov_b32 s79, 0x80008000"] if flip else []) + pair_epilogue(0, "hA", flip) + short_epilogue("hA", flip), MX + 8, P["epi"], 2)
    spread(["s_add_u32 s76, s76, 4096"] + pair_epilogue(1, "hB", flip), M3 + 9, P["epi"], 2)
    w2l = [l for idx in w2_idx for l in w2_loads(k, idx)]
    gap = P["gap"]
    i = 8*((40-LA) >> 1) + 4
    for l in w2l:
        fill[min(i, END-1)].append(l); i += P["wgap"]
    i = max(i, M2 + 2)
    for l in w2_stage(k):
        fill[min(i, END-1)].append(l); i += gap
    hl = [l for idx in range(6) for l in h_loads(k, idx)]
    nin = 0
    i = max(i, M3 + P["h0"])
    for j, l in enumerate(hl):
        i = max(i, M3 + 4 + 8*((j >> 2) + 1))
        if i >= END: break
        fill[i].append(l); nin += 1; i += P["hgap"]
    k("s_mov_b32 s52, s74")
    for n in range(LA): x_load(k, n)
    for s_ in range(1, 20):
        fill[8*s_ - (8 if xs else 1)].append(lambda s_=s_: k.wait(vm="x%d" % (2*s_+1)))
        if xs: spread(x_check(s_), 8*s_ - 7, 1, 1)
    k.wait(vm="x1")
    k("s_barrier")
    nread = 0
    while nread < NRING - 3: put(k, read(nread)); nread += 1
    last_use = {n: i for i, (g, n, _) in enumerate(mm) if n is not None}
    for i, (g, n, txt) in enumerate(mm):
        if i == 0: k.stamp("g1_start")
        if i == 8: k.stamp("g1_x0")
        if i == M2: k.stamp("g1_p1")
        if i == M3: k.stamp("g1_p2")
        if i == first[g]:
            if g == 0 and xs:
                for l in x_check(0): k(l)
                k("s_nop 1")
            if g < G2_ and xs: x_branch(k, g, min(19, g - 1 + LA//2) if g else LA//2 - 1)
            k.wait(lg="g%d" % g)
            if g == G2_: k("s_barrier")
        k(txt)
        if (i & 1) == 0 and nread < len(frags) and (nread < NRING or last_use[nread - NRING] <= i):
            put(k, read(nread)); nread += 1
        for x in fill[i]: put(k, x)
    assert nread == len(frags)
    k("s_lshl_b32 s88, s71, 12")
    k("s_add_u32 s76, s77, s88")
    k("s_add_u32 s76, s76, %d" % (32*4096))
    for x in pair_epilogue(2, "hC", flip): put(k, x)
    first_step = max(0, min(len(hl), 4*P["hpre"]) - nin)
    for x in hl[nin:nin+first_step]: put(k, x)
    return hl[nin+first_step:]

def check_ops(idx, vt, flip):
    b = HR + 16*(idx % NS)
    op3, op2 = ("v_min3_u32", "v_min_u32") if flip else ("v_or3_b32", "v_or_b32")
    out = ["%s v%d, v%d, v%d, v%d" % (op3, vt, b, b+1, b+2)]
    for r in range(3, 15, 2): out.append("%s v%d, v%d, v%d, v%d" % (op3, vt, vt, b+r, b+r+1))
    out.append("%s v%d, v%d, v%d" % (op2, vt, vt, b+15))
    if not flip: out.append("v_cmp_gt_i32 vcc, 0, v%d" % vt)
    elif idx == 5: out.append("v_cmp_gt_u32 vcc, s78, v%d" % vt)
    else: out.append("v_cmp_le_i32 vcc, 0, v%d" % vt)
    return out

def check_branch(k, idx, vt, flip):
    retry, back = k.label("retry"), k.label("back")
    k("s_cbranch_vccnz " + retry)
    k(back + ":")
    def tail():
        b_, n = step_base(idx)
        loop = k.label("loop")
        k.vmq = []; k.lgq = []; k.hist = []
        k(retry + ":")
        k("s_mov_b32 s%d, 0" % sSPIN)
        k("s_add_u32 s88, s%d, %d" % (sHB[b_], n*4096))
        k(loop + ":")
        for lam in range(4):
            k("buffer_load_dwordx4 %s, v%d, %s, s88 offen sc1" % (v(HR+16*(idx % NS)+4*lam, 4), vHL+lam, srd(WS)))
        k("s_add_u32 s%d, s%d, 1" % (sSPIN, sSPIN))
        if k.stamps_on: k("s_add_u32 s101, s101, 1")
        k("s_waitcnt vmcnt(0)")
        for l in check_ops(idx, vt, flip): k(l)
        k("s_cmp_ge_u32 s%d, %d" % (sSPIN, SPIN_LIMIT))
        k("s_cbranch_scc1 " + back)
        k("s_nop 2")
        k("s_cbranch_vccnz " + loop)
        k("s_branch " + back)
    k.tails.append(tail)

def m80_dma(k):
    def one(j):
        if j == 0:
            k("v_add_u32 v6, s69, v%d" % vL)
            tab_addr(k, 6, 6, TAB["M80"])
            k("s_mov_b32 s96, 4096"); k("s_mov_b32 s97, 0")
        k("s_add_u32 m0, s69, %d" % (L_M80 + j*4096))
        if j: k("v_lshl_add_u64 v[6:7], v[6:7], 0, s[96:97]")
        k("global_load_lds_dwordx4 v[6:7], off", tag="m80")
    return [lambda j=j: one(j) for j in range(4)]

def g2(k, layer, pending, tail_idx=()):
    k.comment("second GEMM")
    k.stamp("g1_end")
    flip = layer and P["flip"]
    if flip:
        k("s_cmp_lt_u32 s3, 2"); k("s_cselect_b32 s78, 0x80000000, 0")
    real = k
    setup = []
    def k(text, tag=None): setup.append((text, tag) if tag else text)
    vE = 248
    k("v_lshrrev_b32 v%d, 4, v0" % vE)
    def b2_dma():
        real("s_mul_i32 s74, s73, 320")
        real("s_add_u32 s74, s74, 0x%x" % (B2P + layer*2560))
        real("s_add_u32 m0, s69, %d" % L_B2)
        real("s_mov_b64 exec, 0xfffff")
        real("buffer_load_dwordx4 v%d, %s, s74 offen lds" % (vL, srd(WS)), tag="b2")
        real("s_mov_b64 exec, -1")
    setup.append(b2_dma)
    k("s_add_u32 s74, s69, %d" % L_B2)
    k("v_mul_u32_u24 v%d, 80, v%d" % (vE+1, vE))
    k("v_add_u32 v%d, s74, v%d" % (vE+1, vE+1))
    k("v_and_b32 v%d, 15, v0" % (vE+2))
    k("s_lshl_b32 s92, s70, 3")
    k("s_lshl_b32 s74, s72, 2")
    k("s_add_u32 s92, s92, s74")
    k("s_add_u32 s92, s92, s3")
    pre_ops = []
    if layer == 0:
        k("v_lshlrev_b32 v%d, 4, v%d" % (vE+3, vE+2))
        k("v_lshl_add_u32 v%d, v%d, 12, v%d" % (vE+4, vE, vE+3))
        k("v_lshrrev_b32 v%d, 5, v0" % (vE+5))
        k("v_lshl_add_u32 v%d, v%d, 12, v%d" % (vE+5, vE+5, vE+3))
        k("v_bfe_u32 v%d, v0, 4, 1" % (vE+3))
        k("v_lshl_add_u32 v%d, v%d, 3, v%d" % (vE+5, vE+3, vE+5))
        k("s_lshr_b32 s74, s92, 1")
        k("s_mul_i32 s93, s74, 40960")
        k("s_and_b32 s74, s92, 1")
        k("s_lshl_b32 s74, s74, 8")
        k("s_add_u32 s93, s93, s74")
        k("s_lshl_b32 s74, s73, 9")
        k("s_add_u32 s93, s93, s74")
        k("s_add_u32 s74, s93, 0x%x" % XG[1])
        k("buffer_load_dwordx4 %s, v%d, %s, s74 offen sc1" % (v(RT, 4), vE+4, srd(WS)))
        k("s_add_u32 s74, s93, 0x%x" % (XG[1] + 16384))
        k("buffer_load_dwordx4 %s, v%d, %s, s74 offen sc1" % (v(RT+4, 4), vE+4, srd(WS)))
        k("s_add_u32 s74, s93, 0x%x" % (XG[1] + 32768))
        k("buffer_load_dwordx2 %s, v%d, %s, s74 offen sc1" % (v(RT+8, 2), vE+5, srd(WS)))
        src = [(RT + (e >> 1), e & 1) for e in range(20)]
    else:
        k("v_mul_u32_u24 v%d, 160, v%d" % (vE+3, vE+2))
        k("s_mul_i32 s74, s3, 2560")
        k("s_add_u32 s74, s74, %d" % L_RES)
        k("v_add_u32 v%d, s74, v%d" % (vE+3, vE+3))
        k("v_lshl_add_u32 v%d, v%d, 4, v%d" % (vE+4, vE, vE+3))
        k("v_lshrrev_b32 v%d, 5, v0" % (vE+5))
        k("v_lshl_add_u32 v%d, v%d, 4, v%d" % (vE+5, vE+5, vE+3))
        k("ds_read_b128 %s, v%d" % (v(RT, 4), vE+4))
        k("ds_read_b128 %s, v%d offset:64" % (v(RT+4, 4), vE+4))
        k("ds_read_b128 %s, v%d offset:128" % (v(RT+8, 4), vE+5))
        k("v_and_b32 v%d, 16, v0" % (vE+4))
        k("v_xor_b32 v%d, 16, v%d" % (vE+4, vE+4))
        src = [(RT + 4*(e >> 3) + (e & 3), (e >> 2) & 1) for e in range(16)]
        for r in range(4):
            pre_ops.append("v_lshlrev_b32 v%d, v%d, v%d" % (RT+8+r, vE+4, RT+8+r))
            src.append((RT + 8 + r, 1))
    k("s_lshl_b32 s74, s72, 2")
    k("s_add_u32 s74, s74, s3")
    k("s_lshl_b32 s74, s74, 6")
    k("s_add_u32 s74, s74, %d" % L_RS2)
    k("v_lshl_add_u32 v%d, v%d, 2, s74" % (vE+3, vE+2))
    k("ds_read_b32 v%d, v%d" % (vE+6, vE+3))
    for e, (r, hi) in enumerate(src):
        pre_ops.append("v_and_b32 v%d, 0xffff0000, v%d" % (vE+7, r) if hi else "v_lshlrev_b32 v%d, 16, v%d" % (vE+7, r))
        pre_ops.append("v_add_f32 v%d, v%d, v%d" % (RB+e, RB+e, vE+7))
    red = []
    for lam in range(3):
        red.append(2+lam)
        k("s_add_u32 s74, s3, %d" % (lam+1))
        k("s_and_b32 s74, s74, 3")
        k("s_mul_i32 s74, s74, 15360")
        k("s_add_u32 s74, s74, %d" % (L_RED + lam*5120))
        k("v_add_u32 v%d, s74, v%d" % (2+lam, vL))
    k("s_mul_i32 s74, s3, 15360")
    k("s_add_u32 s74, s74, %d" % L_RED)
    k("v_add_u32 v5, s74, v%d" % vL)
    if layer == 0:
        u_addr(k, 212, 213)
        k("s_lshl_b32 s74, s73, 7")
        k("s_add_u32 s74, s74, s92")
        k("s_lshl_b32 s74, s74, 6")
        k("s_add_u32 s94, s74, 0x%x" % U[1])
        k("v_lshlrev_b32 v214, 3, v%d" % (vE+2))
        k("v_lshl_add_u32 v214, v%d, 2, v214" % vE)
        k("s_lshl_b32 s95, s92, 7")
        k("s_add_u32 s95, s95, 0x%x" % ST[1])
    else:
        for j, src_ in enumerate(("s%d" % pOUT, "s%d" % (pOUT+1), "0x%x" % XB, "0x00020000")): k("s_mov_b32 s%d, %s" % (AUX+j, src_))
        k("v_and_b32 v212, 7, v0")
        k("v_bfe_u32 v213, v0, 3, 1")
        k("v_lshl_add_u32 v212, v212, 1, v213")
        k("v_mul_u32_u24 v212, 40960, v212")
        k("v_lshl_add_u32 v213, v%d, 4, v212" % vE)
        k("v_lshl_add_u32 v212, v%d, 3, v212" % vE)
        k("s_lshr_b32 s74, s92, 5")
        k("s_lshl_b32 s74, s74, 9")
        k("s_and_b32 s94, s92, 31")
        k("s_add_u32 s74, s74, s94")
        k("s_mul_i32 s74, s74, 1280")
        k("s_mul_i32 s94, s73, 160")
        k("s_add_u32 s94, s94, s74")
    k = real
    def mf(idx, lam, dt):
        d = v(G2ACC+20*lam+4*dt, 4)
        return "v_mfma_f32_16x16x32_bf16 %s, %s, %s, %s" % (d, w2_reg(idx, dt), v(HR+16*(idx % NS)+4*lam, 4), d if idx else "0")
    J = P["J"]; NK = 14 - J
    F_ = {(idx, n): [] for idx in range(NK) for n in range(20)}
    pb, pc = P["hB"], P["hC"]
    def checked(idx):
        def ready():
            assert k.tagcount.pop("h%d" % idx) == 4
            k.wait(vm="h%d" % idx)
        return [ready] + check_ops(idx, 10, flip)
    for idx in range(1, NK+1):
        for j, l in enumerate(checked(idx)): F_[idx-1, 7+j].append(l)
    slots = [(idx, n) for idx in range(NK) for n in P["slots"]]
    used = set()
    def place(ops, after):
        for op in ops:
            sl = next(x for x in slots if x[0] > after and x not in used)
            used.add(sl); F_[sl].append(op)
    place(pending, -1)
    for idx in range(6, 14): place(h_loads(k, idx), max(pb if idx < 10 else pc, idx - NS))
    if layer == 0: place(m80_dma(k), 0)
    F_[0, 19].append(lambda: (k("s_waitcnt lgkmcnt(0)"), k("s_barrier")))
    quiet = (0, 2, 3, 4, 6, 17, 18, 19)
    spots = [(idx, n) for idx in range(1, 6) for n in quiet]
    for j, l in enumerate(setup): F_[spots[j*len(spots)//len(setup)]].append(l)
    F_[1, 0].append(lambda: (k.wait(vm="w2s"), k("s_mul_i32 s88, s3, 15360"), k("s_add_u32 s88, s88, %d" % S_OFF), k("v_add_u32 v11, s88, v%d" % vL)))
    for j in range(15): F_[2 + j // 5, 2 + j % 5].append("ds_read_b128 %s, v11 offset:%d" % (w2_reg(11 + j // 5, j % 5), j*1024))
    F_[6, 2].append(lambda: k.wait(vm="b2"))
    for dt in range(5): F_[6, 3+dt].append("ds_read_b128 %s, v%d offset:%d" % (v(RB+4*dt, 4), vE+1, dt*16))
    spots = [(idx, n) for idx in range(7, NK) for n in (0, 2, 3, 4, 5, 6, 17, 18, 19)]
    for j, l in enumerate(pre_ops): F_[spots[j*len(spots)//len(pre_ops)]].append(l)
    if layer == 0:
        F_[NK-1, 19].append(lambda: (k.wait(vm="m80"), k("s_barrier"), k("v_add_u32 v6, %d, v%d" % (L_M80, vL))))
    else:
        F_[NK-1, 19].append("s_barrier")
    for l in checked(0): put(k, l)
    k("s_nop 1")
    for idx in range(NK):
        check_branch(k, idx, 10, flip)
        if idx in (0, 5): k.stamp("g2_step%d" % idx)
        for n, m in enumerate([mf(idx, lam, dt) for lam in range(4) for dt in range(5)]):
            k(m)
            for x in F_[idx, n]: put(k, x)
    late = []
    if layer == 0:
        late += ["ds_read_b128 %s, v6 offset:%d" % (a(M80R+4*j, 4), j*1024) for j in range(13)]
        if P["touch2"]: k.bg += touch_next(k)
    f = []
    for lam in range(4):
        m = [mf(idx, lam, dt) for idx in range(NK, 14) for dt in range(5)]
        if lam == 0:
            for j in range(J):
                check_branch(k, NK+j, 10, flip)
                rest = interleave(k, m[5*j:5*j+5], checked(NK+1+j) if j < J-1 else [], 3)
                assert not rest
        else:
            for n, x in enumerate(m):
                k(x)
                if n >= 3 and f: put(k, f.pop(0))
                elif late: put(k, late.pop(0))
                k.drip()
            for x in f: put(k, x)
        f = [("ds_write_b128 v%d, %s offset:%d" % (red[lam], v(G2ACC+20*lam+4*dt, 4), dt*1024), "red") for dt in range(5)] if lam < 3 else []
    for x in late: put(k, x)
    k.wait(lg="red")
    k.stamp("g2_mfma")
    k("s_barrier")
    for sl in range(3):
        for dt in range(5):
            k("ds_read_b128 %s, v5 offset:%d" % (v(HR+20*sl+4*dt, 4), sl*5120 + dt*1024))
    O = G2ACC + 60
    if tail_idx:
        pre_w(k, layer+1)
        k.bg += [l for idx in tail_idx for l in w2_loads(k, idx)]
    for sl in range(3):
        for e in range(0, 20, 2):
            k("v_pk_add_f32 %s, %s, %s" % (v(O+e, 2), v(O+e, 2), v(HR+20*sl+e, 2))); k.drip()
    for e in range(0, 20, 2):
        k("v_pk_fma_f32 %s, %s, %s, %s op_sel_hi:[1,0,1]%s" % (v(O+e, 2), v(O+e, 2), v(vE+6, 2), v(RB+e, 2), " neg_lo:[1,0,0] neg_hi:[1,0,0]" if flip else "")); k.drip()
    XP = 36
    for e in range(10):
        k("v_cvt_pk_bf16_f32 v%d, v%d, v%d" % (XP+e, O+2*e, O+2*e+1))
    if layer == 0:
        m = dft80_mfmas(XP, XP+4, XP+8, M80R, 16, "a")
        st = ["s_add_u32 s88, s93, 0x%x" % XG[2],
              ("buffer_store_dwordx4 %s, v%d, %s, s88 offen sc1" % (v(XP, 4), vE+4, srd(WS)), "fin"),
              "s_add_u32 s88, s93, 0x%x" % (XG[2] + 16384),
              ("buffer_store_dwordx4 %s, v%d, %s, s88 offen sc1" % (v(XP+4, 4), vE+4, srd(WS)), "fin"),
              "s_add_u32 s88, s93, 0x%x" % (XG[2] + 32768),
              ("buffer_store_dwordx2 %s, v%d, %s, s88 offen sc1" % (v(XP+8, 2), vE+5, srd(WS)), "fin"),
              ]
        k("v_pk_add_f32 v[46:47], %s, %s" % (v(O, 2), v(O+2, 2)))
        k("v_pk_mul_f32 v[48:49], %s, %s" % (v(O, 2), v(O, 2)))
        k("v_pk_fma_f32 v[48:49], %s, %s, v[48:49]" % (v(O+2, 2), v(O+2, 2)))
        for e in range(4, 20, 2):
            k("v_pk_add_f32 v[46:47], v[46:47], %s" % v(O+e, 2))
            k("v_pk_fma_f32 v[48:49], %s, %s, v[48:49]" % (v(O+e, 2), v(O+e, 2)))
        k("v_add_f32 v46, v46, v47"); k("v_add_f32 v47, v48, v49")
        for x in m[:5]: k(x)
        xsum(k, [46], 48, [4]); k(m[5]); xsum(k, [47], 49, [4]); k(m[6])
        xsum(k, [46], 48, [5]); k(m[7]); xsum(k, [47], 49, [5]); k(m[8])
        k("v_cmp_gt_u32 vcc, 16, v0")
        k(m[9])
        k("v_cndmask_b32 v46, v47, v46, vcc")
        k("s_mov_b32 exec_hi, 0")
        k("buffer_atomic_add_f32 v46, v214, %s, s95 offen" % srd(WS), tag="fin")
        k("s_mov_b64 exec, -1")
        rest = interleave(k, m[10:], st, 2)
        for x in rest: put(k, x)
        u_stores(k, 16, 212, 94, 88, tag="fin")
        if k.bg: print("second GEMM: %d background items left for after the stores" % len(k.bg))
        while k.bg: k.bg.pop(0)()
    else:
        pol = ("", " sc1", " nt", " sc0 sc1")[P["outpol"]]
        k("buffer_store_dwordx4 %s, v213, %s, s94 offen%s" % (v(XP, 4), srd(AUX), pol))
        k("buffer_store_dwordx4 %s, v213, %s, s94 offen offset:64%s" % (v(XP+4, 4), srd(AUX), pol))
        k("buffer_store_dwordx2 %s, v212, %s, s94 offen offset:128%s" % (v(XP+8, 2), srd(AUX), pol))
```

```python
from common import *
PP = dict(m80=1)

def px(k, sT):
    k.comment("input row tile: granule copy, row sums, 80-point partial transform")
    k.srd(AUX, pX, XB)
    k("s_lshr_b32 s40, s%d, 5" % sT)
    k("s_lshl_b32 s40, s40, 9")
    k("s_and_b32 s41, s%d, 31" % sT)
    k("s_add_u32 s40, s40, s41")
    k("s_lshl_b32 s41, s3, 2")
    k("s_mul_i32 s42, s3, 5120")
    k("s_mov_b32 s43, 1280")
    for n in range(5):
        k("v_add_u32 v1, %d, v0" % (64*n))
        k("v_mul_u32_u24 v2, 205, v1")
        k("v_lshrrev_b32 v2, 14, v2")
        k("v_mul_u32_u24 v3, 80, v2")
        k("v_sub_u32 v1, v1, v3")
        k("v_add_u32 v2, s41, v2")
        k("v_and_b32 v3, 7, v2")
        k("v_lshrrev_b32 v2, 3, v2")
        k("v_lshl_add_u32 v2, v3, 1, v2")
        k("v_lshl_add_u32 v2, v2, 5, s40")
        k("v_lshlrev_b32 v1, 4, v1")
        k("v_mad_u32_u24 v1, v2, s43, v1")
        k("s_add_u32 m0, s42, %d" % (n*1024))
        k("buffer_load_dwordx4 v1, %s, 0 offen lds" % srd(AUX), tag="raw")
    M = 80
    k("v_lshlrev_b32 v4, 4, v0")
    mode = PP["m80"]
    if mode == 0:
        for l in m80_loads(k, M, 6, 4): k(l)
    else:
        k("s_lshl_b32 s50, s3, 10")
        k("v_add_u32 v6, s50, v4")
        tab_addr(k, 6, 6, TAB["M80"])
        k("s_mov_b32 s52, 4096"); k("s_mov_b32 s53, 0")
        for j in range(4):
            k("s_add_u32 m0, s50, %d" % (49152 + j*4096))
            if j: k("v_lshl_add_u64 v[6:7], v[6:7], 0, s[52:53]")
            k("global_load_lds_dwordx4 v[6:7], off", tag="m80")
    m80r = ["ds_read_b128 %s, v4 offset:%d" % (v(M+4*j, 4), 49152 + j*1024) for j in range(13)]
    k("v_and_b32 v1, 3, v0")
    k("v_mul_u32_u24 v10, 1280, v1")
    k("v_add_u32 v10, s42, v10")
    k("v_lshrrev_b32 v2, 4, v0")
    k("v_lshl_add_u32 v10, v2, 3, v10")
    k("v_bfe_u32 v3, v0, 2, 2")
    k("v_mul_u32_u24 v11, 160, v3")
    k("v_add_u32 v10, v10, v11")
    k("v_lshl_add_u32 v12, v2, 2, v1")
    k("v_add_u32 v13, s41, v3")
    k("v_mul_u32_u24 v14, 288, v12")
    k("v_lshl_add_u32 v14, v13, 4, v14")
    k("v_add_u32 v14, 20480, v14")
    k("v_lshlrev_b32 v15, 9, v12")
    k("v_lshl_add_u32 v15, v13, 4, v15")
    k("s_lshr_b32 s44, s%d, 1" % sT)
    k("s_mul_i32 s44, s44, 40960")
    k("s_and_b32 s45, s%d, 1" % sT)
    k("s_lshl_b32 s45, s45, 8")
    k("s_add_u32 s44, s44, s45")
    k("s_add_u32 s44, s44, 0x%x" % XG[0])
    k("v_and_b32 v1, 15, v0")
    k("v_lshlrev_b32 v1, 4, v1")
    k("s_mul_i32 s47, s3, 576")
    k("s_add_u32 s47, s47, 20480")
    k("v_mul_u32_u24 v5, 2304, v2")
    k("v_add3_u32 v5, v5, v1, s47")
    k("v_lshrrev_b32 v3, 5, v0")
    k("v_mul_u32_u24 v6, 2304, v3")
    k("v_bfe_u32 v3, v0, 4, 1")
    k("v_lshl_add_u32 v6, v3, 3, v6")
    k("v_add3_u32 v6, v6, v1, s47")
    u_addr(k, 7, 8)
    k("s_lshl_b32 s48, s3, 8")
    k("s_add_u32 s48, s48, s%d" % sT)
    k("s_lshl_b32 s48, s48, 6")
    k("s_add_u32 s48, s48, 0x%x" % U[0])
    G = 20
    k.stamp("p_issued")
    k.wait(vm="raw")
    k.stamp("p_raw")
    for n in range(5):
        for h in range(2):
            k("ds_read_b64_tr_b16 %s, v10 offset:%d" % (v(G+4*n+2*h, 2), n*32 + h*640))
    k("v_mov_b32 v16, 0"); k("v_mov_b32 v17, 0")
    k("s_mov_b32 s46, 0x%x" % ONES)
    for n in range(5):
        k("ds_write_b128 v14, %s offset:%d" % (v(G+4*n, 4), n*16*288), tag="g")
        if n: k("s_add_u32 s44, s44, 8192")
        k("buffer_store_dwordx4 %s, v15, %s, s44 offen sc1" % (v(G+4*n, 4), srd(WS)))
    k.wait(vm="m80" if mode else None, lg="g")
    k("s_barrier")
    A = 40
    for dd in range(2):
        k("ds_read_b128 %s, v5 offset:%d" % (v(A+10*dd, 4), dd*288))
        k("ds_read_b128 %s, v5 offset:%d" % (v(A+10*dd+4, 4), dd*288 + 9216))
        k("ds_read_b64 %s, v6 offset:%d" % (v(A+10*dd+8, 2), dd*288 + 18432))
    if mode:
        for j in (0, 2, 4, 6, 8, 1, 3, 5, 7, 9, 10, 11, 12): k(m80r[j])
    for dd in range(2):
        for m in dft80_mfmas(A+10*dd, A+10*dd+4, A+10*dd+8, M, 140+20*dd): k(m)
    for dd in range(2):
        if dd: k("s_add_u32 s48, s48, 8192")
        u_stores(k, 140+20*dd, 7, 48, 49)
    for n in range(20):
        k("v_dot2c_f32_bf16 v16, s46, v%d" % (G+n))
        k("v_dot2c_f32_bf16 v17, v%d, v%d" % (G+n, G+n))
    xsum(k, [16, 17], 18, [0, 1, 4, 5])
    k("v_lshlrev_b32 v13, 3, v13")
    k("s_lshl_b32 s45, s%d, 7" % sT)
    k("s_add_u32 s45, s45, 0x%x" % ST[0])
    k("s_mov_b64 exec, 0x1111")
    k("buffer_store_dwordx2 v[16:17], v13, %s, s45 offen sc1" % srd(WS))
    k("s_mov_b64 exec, -1")

def pw1(k, sT):
    k.comment("w1 block -> fragment image")
    k.srd(AUX, pW1, D*F*2)
    k.srd(AUX2, pB1, F*2)
    k("s_lshr_b32 s39, s%d, 1" % sT)
    k("s_and_b32 s47, s%d, 1" % sT)
    k("v_lshrrev_b32 v1, 3, v0")
    k("s_mov_b32 s40, %d" % (80*3456))
    k("v_mul_lo_u32 v1, v1, s40")
    k("v_and_b32 v3, 7, v0")
    k("v_lshl_add_u32 v1, v3, 4, v1")
    k("s_lshl_b32 s40, s47, 2")
    k("s_add_u32 s48, s40, s3")
    k("s_mul_i32 s40, s48, 34560")
    k("s_lshl_b32 s41, s39, 7")
    k("s_add_u32 s40, s40, s41")
    k("s_mul_i32 s42, s3, 10240")
    for n in range(10):
        k("s_add_u32 m0, s42, %d" % (n*1024))
        if n: k("s_add_u32 s40, s40, 3456")
        else: k("s_nop 0")
        k("buffer_load_dwordx4 v1, %s, s40 offen lds" % srd(AUX), tag="raw")
    k("v_lshrrev_b32 v2, 4, v0")
    k("v_and_b32 v3, 3, v0")
    k("v_bfe_u32 v4, v0, 2, 2")
    k("s_lshr_b32 s43, s3, 1")
    k("s_and_b32 s44, s3, 1")
    k("s_lshl_b32 s45, s43, 5")
    k("s_lshl_b32 s46, s44, 2")
    k("s_add_u32 s45, s45, s46")
    k("s_mov_b32 s46, 8")
    k("v_lshlrev_b32 v11, 4, v0")
    k("s_sub_u32 s52, s39, 16")
    k("s_lshl_b32 s52, s52, 1")
    k("s_add_u32 s52, s52, s43")
    k("s_lshl_b32 s53, s43, 1")
    k("s_cmp_lt_u32 s39, 16")
    k("s_cselect_b32 s52, s39, s52")
    k("s_cselect_b32 s53, s53, 4")
    k("s_add_u32 s53, s53, s44")
    k("s_mul_i32 s52, s52, %d" % LW1)
    k("s_add_u32 s52, s52, 0x%x" % W1P)
    k("s_mul_i32 s54, s53, 20480")
    k("s_add_u32 s54, s54, s52")
    k("s_add_u32 s54, s54, %d" % PT_OFF[0])
    k("s_lshl_b32 s55, s53, 10")
    k("s_add_u32 s55, s55, s52")
    k("s_add_u32 s55, s55, %d" % (EX_OFF + 1024))
    ready = k.label("ready")
    k.settle()
    k("s_cmp_lt_u32 s39, 24")
    k("s_cbranch_scc1 " + ready)
    k("s_lshl_b32 s45, s3, 4")
    k("s_mov_b32 s46, 4")
    k("s_sub_u32 s53, s39, 24")
    k("s_lshl_b32 s53, s53, 2")
    k("s_add_u32 s53, s53, s3")
    k("s_lshl_b32 s53, s53, 2")
    k("v_add_u32 v5, s53, v4")
    k("v_mul_u32_u24 v6, 43, v5")
    k("v_lshrrev_b32 v6, 7, v6")
    k("v_mul_u32_u24 v7, 3, v6")
    k("v_sub_u32 v5, v5, v7")
    k("s_mov_b32 s53, %d" % LW1)
    k("v_mul_lo_u32 v6, v6, s53")
    k("v_lshl_add_u32 v5, v5, 2, v3")
    k("v_lshl_add_u32 v5, v2, 4, v5")
    k("v_lshl_add_u32 v11, v5, 4, v6")
    k("s_mov_b32 s54, 0x%x" % (W1P + S_OFF))
    k("s_mov_b32 s55, 0x%x" % (W1P + EX_OFF))
    k.settle()
    k(ready + ":")
    k("s_mul_i32 s53, s47, 10240")
    k("s_add_u32 s54, s54, s53")
    k("v_mul_lo_u32 v5, v3, s46")
    k("v_add_lshl_u32 v5, v5, s45, 1")
    k("v_lshl_add_u32 v10, v2, 10, v5")
    k("v_lshl_add_u32 v10, v4, 7, v10")
    k("v_mul_lo_u32 v5, v4, s46")
    k("v_add_u32 v5, s45, v5")
    k("v_add_lshl_u32 v5, v5, v3, 1")
    k("buffer_load_ushort v18, v5, %s, s41 offen" % srd(AUX2))
    k("s_lshl_b32 s53, s3, 2")
    k("v_add_u32 v5, s53, v2")
    k("v_lshlrev_b32 v6, 10, v5")
    k("v_lshl_add_u32 v6, v4, 8, v6")
    k("v_lshl_add_u32 v6, v3, 4, v6")
    k("v_cmp_gt_u32 vcc, 10, v5")
    k("v_mov_b32 v7, 0x%x" % OOB)
    k("v_cndmask_b32 v6, v7, v6, vcc")
    k("s_mul_i32 s53, s47, 10240")
    k("s_add_u32 s53, s53, s52")
    k("s_add_u32 s53, s53, %d" % (S_OFF + 192))
    k("s_cmp_lt_u32 s39, 16")
    k("s_cselect_b32 s53, s53, 0x%x" % OOB)
    for r in range(4): k("v_mov_b32 v%d, 0x%x" % (64+r, ONES))
    k("buffer_store_dwordx4 v[64:67], v6, %s, s53 offen sc1" % srd(WS))
    k("v_mov_b32 v16, 0"); k("v_mov_b32 v17, 0")
    k("s_mov_b32 s53, 0x%x" % ONES)
    G = 20
    k.stamp("p_issued")
    k.wait(vm="raw")
    k("s_barrier")
    k.stamp("p_raw")
    for n in range(10):
        for h in range(2):
            k("ds_read_b64_tr_b16 %s, v10 offset:%d" % (v(G+4*n+2*h, 2), n*4096 + h*512))
    for n in range(10):
        if n and n % 4 == 0: k("s_add_u32 s54, s54, 4096")
        k("buffer_store_dwordx4 %s, v11, %s, s54 offen offset:%d sc1" % (v(G+4*n, 4), srd(WS), (n & 3)*1024))
        for jj in range(4):
            k("v_dot2c_f32_bf16 v%d, s53, v%d" % (16 + (jj & 1), G+4*n+jj))
    k("v_add_f32 v60, v16, v17")
    xsum(k, [60], 62, [4, 5])
    k("s_cmp_eq_u32 s47, 0")
    k("s_cselect_b32 s52, -1, 0")
    k("v_cvt_pk_bf16_f32 v61, v60, v60")
    k("v_lshlrev_b32 v62, 16, v61")
    k("v_sub_f32 v62, v60, v62")
    k("v_and_b32 v70, s52, v18")
    k("v_lshlrev_b32 v63, 16, v70")
    k("v_cvt_pk_bf16_f32 v68, v60, v62")
    k("v_cvt_pk_bf16_f32 v69, v60, v63")
    k("v_mov_b32 v71, 0")
    k("v_cmp_gt_u32 vcc, 32, v0")
    for r in range(3):
        k("v_cndmask_b32 v%d, 0, v%d, vcc" % (68+r, 68+r))
    k("s_xor_b32 s52, s52, 0xffff0000")
    k("s_mov_b32 exec_lo, s52")
    k("s_mov_b32 exec_hi, s52")
    k("buffer_store_dwordx4 v[68:71], v11, %s, s55 offen sc1" % srd(WS))
    k("s_mov_b64 exec, -1")

def pw2(k, sT):
    k.comment("w2 row block -> fragment images for both layers")
    k.srd(AUX, pW2, D*F*2)
    k("v_lshlrev_b32 v1, 4, v0")
    k("s_mul_i32 s40, s%d, 40960" % sT)
    k("s_mul_i32 s42, s3, 10240")
    k("s_add_u32 s40, s40, s42")
    for n in range(10):
        k("s_add_u32 m0, s42, %d" % (n*1024))
        if n: k("s_add_u32 s40, s40, 1024")
        else: k("s_nop 0")
        k("buffer_load_dwordx4 v1, %s, s40 offen lds" % srd(AUX), tag="raw")
    k("v_lshrrev_b32 v2, 4, v0")
    k("v_and_b32 v3, 3, v0")
    k("v_bfe_u32 v4, v0, 2, 2")
    k("v_mul_u32_u24 v10, 1280, v4")
    k("v_mul_u32_u24 v5, 160, v2")
    k("v_add3_u32 v10, v10, v5, s42")
    k("v_lshl_add_u32 v10, v3, 3, v10")
    k("s_mov_b32 s43, %d" % LW2)
    k("s_lshl_b32 s44, s3, 8")
    k("v_bfe_u32 v6, v0, 3, 1")
    k("v_and_b32 v7, 7, v0")
    k("v_mul_lo_u32 v7, v7, s43")
    k("v_add_u32 v7, s44, v7")
    k("v_lshl_add_u32 v7, v2, 4, v7")
    k("v_lshl_add_u32 v11, v6, 6, v7")
    k("v_lshl_add_u32 v12, v6, 7, v7")
    k("v_add_u32 v12, 4096, v12")
    k("v_mul_lo_u32 v8, v2, s43")
    k("v_add_u32 v8, s44, v8")
    k("v_bfe_u32 v5, v0, 2, 1")
    k("v_lshl_add_u32 v68, v5, 10, v8")
    k("v_lshl_add_u32 v68, v6, 6, v68")
    k("v_lshl_add_u32 v68, v3, 4, v68")
    k("v_and_b32 v5, 15, v0")
    k("v_lshl_add_u32 v69, v5, 4, v8")
    k("v_add_u32 v69, 4096, v69")
    k("s_mul_i32 s45, s%d, 5120" % sT)
    k("s_add_u32 s46, s45, 0x%x" % W2P[0])
    k("s_add_u32 s47, s45, 0x%x" % W2P[1])
    k("s_add_u32 s48, s45, 0x%x" % (W2P[1] + 4*LW2))
    G = 24
    k.stamp("p_issued")
    k.wait(vm="raw")
    k.stamp("p_raw")
    for jh in range(2):
        for n in range(5):
            for h in range(2):
                k("ds_read_b64_tr_b16 %s, v10 offset:%d" % (v(G+20*jh+4*n+2*h, 2), h*5120 + jh*640 + n*32))
    for jh in range(2):
        for n in range(5):
            r = v(G+20*jh+4*n, 4)
            if n < 4: k("buffer_store_dwordx4 %s, v11, %s, s46 offen offset:%d sc1" % (r, srd(WS), (2*(n >> 1) + jh)*1024 + (n & 1)*128))
            else: k("buffer_store_dwordx4 %s, v12, %s, s46 offen offset:%d sc1" % (r, srd(WS), jh*64))

def pw2_second(k):
    G = 24
    for jh in range(2):
        for n in range(5):
            r = v(G+20*jh+4*n, 4)
            if n < 4: k("buffer_store_dwordx4 %s, v68, %s, s%d offen offset:%d sc1" % (r, srd(WS), 47+jh, (n >> 1)*2048 + (n & 1)*128))
            else: k("buffer_store_dwordx4 %s, v69, %s, s%d offen sc1" % (r, srd(WS), 47+jh))

def pw2_half(k, sT, sJ):
    k.comment("half of a w2 row block -> fragment images for both layers")
    k.srd(AUX, pW2, D*F*2)
    k("s_mul_i32 s40, s%d, 40960" % sT)
    k("s_mul_i32 s42, s3, 10240")
    k("s_add_u32 s40, s40, s42")
    k("s_mul_i32 s41, s%d, 640" % sJ)
    k("s_add_u32 s40, s40, s41")
    k("s_mul_i32 s42, s3, 5120")
    for n in range(5):
        k("v_add_u32 v1, %d, v0" % (64*n))
        k("v_mul_u32_u24 v2, 205, v1")
        k("v_lshrrev_b32 v2, 13, v2")
        k("v_mul_u32_u24 v3, 640, v2")
        k("v_lshl_add_u32 v1, v1, 4, v3")
        k("s_add_u32 m0, s42, %d" % (n*1024))
        k("buffer_load_dwordx4 v1, %s, s40 offen lds" % srd(AUX), tag="raw")
    k("v_lshrrev_b32 v2, 4, v0")
    k("v_and_b32 v3, 3, v0")
    k("v_bfe_u32 v4, v0, 2, 2")
    k("v_mul_u32_u24 v10, 640, v4")
    k("v_mul_u32_u24 v5, 160, v2")
    k("v_add3_u32 v10, v10, v5, s42")
    k("v_lshl_add_u32 v10, v3, 3, v10")
    k("s_mov_b32 s43, %d" % LW2)
    k("s_lshl_b32 s44, s3, 8")
    k("v_bfe_u32 v6, v0, 3, 1")
    k("v_and_b32 v7, 7, v0")
    k("v_mul_lo_u32 v7, v7, s43")
    k("v_add_u32 v7, s44, v7")
    k("v_lshl_add_u32 v7, v2, 4, v7")
    k("v_lshl_add_u32 v11, v6, 6, v7")
    k("v_lshl_add_u32 v12, v6, 7, v7")
    k("v_add_u32 v12, 4096, v12")
    k("v_mul_lo_u32 v8, v2, s43")
    k("v_add_u32 v8, s44, v8")
    k("v_bfe_u32 v5, v0, 2, 1")
    k("v_lshl_add_u32 v68, v5, 10, v8")
    k("v_lshl_add_u32 v68, v6, 6, v68")
    k("v_lshl_add_u32 v68, v3, 4, v68")
    k("v_and_b32 v5, 15, v0")
    k("v_lshl_add_u32 v69, v5, 4, v8")
    k("v_add_u32 v69, 4096, v69")
    k("s_mul_i32 s45, s%d, 5120" % sT)
    k("s_add_u32 s46, s45, 0x%x" % W2P[0])
    k("s_mul_i32 s47, s%d, %d" % (sJ, 4*LW2))
    k("s_add_u32 s47, s47, s45")
    k("s_add_u32 s47, s47, 0x%x" % W2P[1])
    k("s_lshl_b32 s48, s%d, 6" % sJ)
    k("s_add_u32 s48, s48, s46")
    k("s_lshl_b32 s43, s%d, 10" % sJ)
    k("s_add_u32 s46, s46, s43")
    G = 24
    k.wait(vm="raw")
    for n in range(5):
        for h in range(2):
            k("ds_read_b64_tr_b16 %s, v10 offset:%d" % (v(G+4*n+2*h, 2), h*2560 + n*32))
    for n in range(5):
        r = v(G+4*n, 4)
        if n < 4: k("buffer_store_dwordx4 %s, v11, %s, s46 offen offset:%d sc1" % (r, srd(WS), (n >> 1)*2048 + (n & 1)*128))
        else: k("buffer_store_dwordx4 %s, v12, %s, s48 offen sc1" % (r, srd(WS)))
    for n in range(5):
        r = v(G+4*n, 4)
        if n < 4: k("buffer_store_dwordx4 %s, v68, %s, s47 offen offset:%d sc1" % (r, srd(WS), (n >> 1)*2048 + (n & 1)*128))
        else: k("buffer_store_dwordx4 %s, v69, %s, s47 offen sc1" % (r, srd(WS)))

def pmisc(k, sT):
    k.comment("clear counters and accumulators, lay out b2")
    k("s_lshl_b32 s40, s3, 6")
    k("v_add_u32 v1, s40, v0")
    k("v_lshlrev_b32 v2, 4, v1")
    for r in range(4): k("v_mov_b32 v%d, 0" % (4+r))
    k("s_lshl_b32 s41, s%d, 12" % sT)
    k("s_add_u32 s42, s41, 0x%x" % CNT)
    k("buffer_store_dwordx4 v[4:7], v2, %s, s42 offen sc1" % srd(WS))
    k("s_add_u32 s42, s41, 0x%x" % ST[1])
    k("s_cmp_lt_u32 s%d, 4" % sT)
    k("s_cselect_b32 s42, s42, 0x%x" % OOB)
    k("buffer_store_dwordx4 v[4:7], v2, %s, s42 offen sc1" % srd(WS))
    done = k.label("done")
    k("s_cmp_eq_u32 s%d, 4" % sT)
    k.settle()
    k("s_cbranch_scc0 " + done)
    k.srd(AUX, pB2, D*2)
    k("s_mov_b32 s43, 0x%x" % B2P)
    for n in range(5):
        k("v_add_u32 v8, %d, v1" % (256*n))
        k("v_mul_u32_u24 v9, 3277, v8")
        k("v_lshrrev_b32 v9, 16, v9")
        k("v_mul_u32_u24 v10, 20, v9")
        k("v_sub_u32 v10, v8, v10")
        k("v_and_b32 v11, 3, v9")
        k("v_bfe_u32 v12, v9, 2, 3")
        k("v_lshrrev_b32 v13, 3, v10")
        k("v_lshl_add_u32 v13, v13, 2, v11")
        k("v_and_b32 v14, 7, v10")
        k("v_lshrrev_b32 v15, 1, v11")
        k("v_add_u32 v15, 8, v15")
        k("v_and_b32 v16, 1, v11")
        k("v_and_b32 v17, 3, v10")
        k("v_lshl_add_u32 v16, v16, 2, v17")
        k("v_cmp_gt_u32 vcc, 16, v10")
        k("v_cndmask_b32 v13, v15, v13, vcc")
        k("v_cndmask_b32 v14, v16, v14, vcc")
        k("v_cmp_gt_u32 vcc, 32, v9")
        k("v_cndmask_b32 v15, v14, v12, vcc")
        k("v_cndmask_b32 v16, v12, v14, vcc")
        k("v_mul_u32_u24 v16, 80, v16")
        k("v_lshl_add_u32 v16, v13, 3, v16")
        k("v_add_lshl_u32 v16, v16, v15, 1")
        k("buffer_load_ushort v18, v16, %s, 0 offen" % srd(AUX))
        k("v_lshlrev_b32 v8, 2, v8")
        k("v_lshlrev_b32 v18, 16, v18")
        k("buffer_store_dword v18, v8, %s, s43 offen sc1" % srd(WS))
    k.settle()
    k(done + ":")

def p0_dispatch(k, lend):
    l1, l2, l3 = k.label("w1"), k.label("w2"), k.label("misc")
    k.settle()
    st = k.fork()
    k("s_cmp_lt_u32 s2, 128"); k("s_cbranch_scc0 " + l1)
    px(k, 2); k.settle(); k("s_branch " + lend)
    k.restore(st); k(l1 + ":")
    k("s_sub_u32 s38, s2, 128"); k("s_cmp_lt_u32 s38, 54"); k("s_cbranch_scc0 " + l2)
    pw1(k, 38); k.settle(); k("s_branch " + lend)
    k.restore(st); k(l2 + ":")
    k("s_sub_u32 s38, s2, 182"); k("s_cmp_lt_u32 s38, 54"); k("s_cbranch_scc0 " + l3)
    pw2(k, 38); k.settle(); k("s_branch " + lend)
    k.restore(st); k(l3 + ":")
    k("s_sub_u32 s38, s2, 236")
    pmisc(k, 38); k.settle()

def pmisc2(k, sT):
    k.comment("clear counters and accumulators, lay out b2")
    done, j1 = k.label("done"), k.label("j1")
    k("s_lshl_b32 s40, s3, 6")
    k("v_add_u32 v1, s40, v0")
    k.settle()
    st = k.fork()
    k("s_cmp_eq_u32 s%d, 0" % sT)
    k("s_cbranch_scc0 " + j1)
    for r in range(4): k("v_mov_b32 v%d, 0" % (4+r))
    k("v_lshlrev_b32 v2, 8, v1")
    k("s_mov_b32 s42, 0x%x" % CNT)
    k("buffer_store_dword v4, v2, %s, s42 offen sc1" % srd(WS))
    k("v_lshlrev_b32 v2, 4, v1")
    for n in range(4):
        k("s_mov_b32 s42, 0x%x" % (ST[1] + n*4096))
        k("buffer_store_dwordx4 v[4:7], v2, %s, s42 offen sc1" % srd(WS))
    k.srd(AUX2, pDBG, 256)
    k("v_mov_b32 v8, 1")
    k("s_waitcnt vmcnt(0)")
    k("s_barrier")
    k("s_mov_b64 exec, 1")
    k("buffer_store_dword v8, off, %s, 0 sc1" % srd(AUX2))
    k("s_mov_b64 exec, -1")
    k.settle()
    k("s_branch " + done)
    k.restore(st)
    k(j1 + ":")
    k("s_cmp_eq_u32 s%d, 3" % sT)
    k("s_cbranch_scc0 " + done)
    k.srd(AUX, pB2, D*2)
    k("s_mov_b32 s43, 0x%x" % B2P)
    for n in range(5):
        k("v_add_u32 v8, %d, v1" % (256*n))
        k("v_mul_u32_u24 v9, 3277, v8")
        k("v_lshrrev_b32 v9, 16, v9")
        k("v_mul_u32_u24 v10, 20, v9")
        k("v_sub_u32 v10, v8, v10")
        k("v_and_b32 v11, 3, v9")
        k("v_bfe_u32 v12, v9, 2, 3")
        k("v_lshrrev_b32 v13, 3, v10")
        k("v_lshl_add_u32 v13, v13, 2, v11")
        k("v_and_b32 v14, 7, v10")
        k("v_lshrrev_b32 v15, 1, v11")
        k("v_add_u32 v15, 8, v15")
        k("v_and_b32 v16, 1, v11")
        k("v_and_b32 v17, 3, v10")
        k("v_lshl_add_u32 v16, v16, 2, v17")
        k("v_cmp_gt_u32 vcc, 16, v10")
        k("v_cndmask_b32 v13, v15, v13, vcc")
        k("v_cndmask_b32 v14, v16, v14, vcc")
        k("v_cmp_gt_u32 vcc, 32, v9")
        k("v_cndmask_b32 v15, v14, v12, vcc")
        k("v_cndmask_b32 v16, v12, v14, vcc")
        k("v_mul_u32_u24 v16, 80, v16")
        k("v_lshl_add_u32 v16, v13, 3, v16")
        k("v_add_lshl_u32 v16, v16, v15, 1")
        k("buffer_load_ushort v%d, v16, %s, 0 offen" % (70+n, srd(AUX)))
    k("v_lshlrev_b32 v8, 2, v1")
    for n in range(5):
        k("v_lshlrev_b32 v%d, 16, v%d" % (70+n, 70+n))
        if n == 4: k("s_add_u32 s43, s43, 4096")
        k("buffer_store_dword v%d, v8, %s, s43 offen offset:%d sc1" % (70+n, srd(WS), (n & 3)*1024))
    k.settle()
    k(done + ":")
```

```python
import sys, json
from common import *
import p0, cph, ff

HEADER = open(__file__.replace("fused.py", "header.txt")).read()
SPIN = 100000
P = ff.P
P.update(p0.PP); p0.PP = P
P.update(amp=0, ampA=0, ampB=0, pwait=0, ntail=0, hint=1, nwin=6, nmid=4, nmid0=2, bgap=20, prefirst=1, touch=1, twait=2, ithr=24)

def flag_load(k, bar, vt):
    k("v_and_b32 v%d, 15, v0" % vt)
    k("v_lshlrev_b32 v%d, 8, v%d" % (vt, vt))
    k("v_add_u32 v%d, 0x%x, v%d" % (vt, GBAR + bar*8192 + 4096, vt))
    k("buffer_load_dword v%d, v%d, %s, 0 offen sc1" % (vt+1, vt, srd(WS)))

def flag_wait(k, vt):
    again, ok = k.label("again"), k.label("ok")
    k("s_mov_b32 s91, 0")
    k("v_cmp_eq_u32 vcc, 0, v%d" % (vt+1))
    k("s_cmp_eq_u64 vcc, 0")
    k("s_cbranch_scc1 " + ok)
    st = k.fork()
    k(again + ":")
    k("buffer_load_dword v%d, v%d, %s, 0 offen sc1" % (vt+1, vt, srd(WS)))
    k("s_add_u32 s91, s91, 1")
    k("s_waitcnt vmcnt(0)")
    k("v_cmp_eq_u32 vcc, 0, v%d" % (vt+1))
    k("s_cmp_ge_u32 s91, %d" % SPIN)
    k("s_cbranch_scc1 " + ok)
    k("s_cmp_eq_u64 vcc, 0")
    k("s_cbranch_scc0 " + again)
    k.restore(st)
    k(ok + ":")

def poll(k, bar, vt=18):
    flag_load(k, bar, vt); flag_wait(k, vt)

def arrive(k, sline, swant, vt=16):
    done = k.label("notlast")
    k("s_lshl_b32 s88, s%d, 8" % sline)
    k("s_add_u32 s88, s88, 0x%x" % GBAR)
    k("v_mov_b32 v%d, 1" % vt)
    k("v_mov_b32 v%d, 1" % (vt+1))
    k("s_mov_b64 exec, 1")
    k("buffer_atomic_add v%d, off, %s, s88 sc0 sc1" % (vt, srd(WS)))
    k("v_readfirstlane_b32 s91, v%d" % vt)
    k("s_add_u32 s88, s88, 4096")
    k("s_add_u32 s91, s91, 1")
    k("s_cmp_eq_u32 s91, s%d" % swant)
    k("s_cbranch_scc0 " + done)
    st = k.fork()
    k("buffer_store_dword v%d, off, %s, s88 sc1" % (vt+1, srd(WS)))
    k.restore(st)
    k(done + ":")
    k("s_mov_b64 exec, -1")

def hint_issue(k, bar):
    k("s_and_b32 s55, s2, 15")
    k("s_add_u32 s55, s55, %d" % (32*bar))
    k("s_lshl_b32 s55, s55, 8")
    k("s_add_u32 s55, s55, 0x%x" % GBAR)
    k("s_cmp_eq_u32 s3, 0")
    k("s_cselect_b32 s55, s55, 0x%x" % OOB)
    k("s_cselect_b32 s56, 15, -1")
    k("v_mov_b32 v14, 1"); k("v_mov_b32 v15, 1")
    k("s_mov_b64 exec, 1")
    k("buffer_atomic_add v14, off, %s, s55 sc0 sc1" % srd(WS))
    k("s_mov_b64 exec, -1")

def hint_check(k):
    done = k.label("notlast")
    k("v_readfirstlane_b32 s57, v14")
    k("s_add_u32 s55, s55, 4096")
    k("s_cmp_eq_u32 s57, s56")
    k("s_cbranch_scc0 " + done)
    st = k.fork()
    k("s_mov_b64 exec, 1")
    k("buffer_store_dword v15, off, %s, s55 sc1" % srd(WS))
    k("s_mov_b64 exec, -1")
    k.restore(st)
    k(done + ":")

def arrive_on(k, bar, sidx, counts):
    base = min(counts); extra = sum(c > base for c in counts)
    assert counts == [base + (n < extra) for n in range(16)]
    k("s_and_b32 s89, s%d, 15" % sidx)
    k("s_cmp_lt_u32 s89, %d" % extra)
    k("s_cselect_b32 s90, %d, %d" % (base+1, base))
    k("s_add_u32 s89, s89, %d" % (32*bar))
    arrive(k, 89, 90)

def split_waves(k, wave0, others):
    lo, join = k.label("others"), k.label("join")
    k.settle(vm=False)
    st = k.fork()
    k("s_cmp_eq_u32 s3, 0")
    k("s_cbranch_scc0 " + lo)
    wave0(); k.settle()
    k("s_branch " + join)
    k.restore(st)
    k(lo + ":")
    others(); k.settle(vm=False)
    k(join + ":")
    k("s_barrier")
    k.vmq = []; k.lgq = []

def touch_code(k):
    skip, here = k.label("notouch"), k.label("here")
    k("s_sub_u32 s40, s5, 16")
    k("s_lshl_b32 s40, s40, 2")
    k("s_add_u32 s40, s40, s3")
    k("s_lshl_b32 s40, s40, 12")
    k("s_cmp_lt_u32 s40, dft_end-%s-4096" % k.name)
    k("s_cbranch_scc0 " + skip)
    k("s_sub_u32 s42, s6, dft_tables-%s" % k.name)
    k("s_subb_u32 s43, s7, 0")
    k("v_lshl_add_u32 v2, v0, 6, s40")
    k("v_mov_b32 v3, 0")
    k("v_lshl_add_u64 v[2:3], v[2:3], 0, s[42:43]")
    k("global_load_dword v255, v[2:3], off")
    k.vmq.pop()
    k(skip + ":")

B_IN, B_OUT, B_W, B_Z = (0, 2), (1, 3), 4, 5

def setup(k):
    l1, lw2, lmisc, join = k.label("w"), k.label("w2"), k.label("misc"), k.label("p0join")
    lspare, lhalf = k.label("spare"), k.label("half")
    k("v_mov_b32 v68, 0x%x" % OOB); k("v_mov_b32 v69, 0x%x" % OOB)
    k("s_mov_b32 s23, 0")
    k("s_mov_b32 s22, 0"); k("s_mov_b32 s38, 0")
    k.settle()
    st = k.fork()
    k("s_cmp_lt_u32 s2, 128"); k("s_cbranch_scc0 " + l1)
    p0.px(k, 2); k.settle(); k("s_branch " + join)
    k.restore(st); k(l1 + ":")
    k("s_mov_b32 s23, 2")
    if P["touch"]: touch_code(k)
    if P["twait"] == 2:
        nw = k.label("nowait")
        k("s_cmp_eq_u32 s2, 128"); k("s_cbranch_scc1 " + nw)
        k("s_waitcnt vmcnt(0)")
        k(nw + ":")
    k("s_cmp_eq_u32 s68, 0"); k("s_cbranch_scc0 " + lmisc)
    if P["twait"] == 1: k("s_waitcnt vmcnt(0)")
    k("s_sub_u32 s60, s5, 20"); k("s_mul_i32 s60, s60, 7"); k("s_add_u32 s60, s60, s4"); k("s_sub_u32 s60, s60, 1")
    k("s_sub_u32 s62, s2, 164")
    k("s_cmp_lt_u32 s2, 192"); k("s_cselect_b32 s60, s60, s62")
    k("s_cmp_lt_u32 s60, 54"); k("s_cbranch_scc0 " + lw2)
    k("s_mov_b32 s23, 1")
    k("s_mov_b32 s22, s60"); k("s_mov_b32 s38, s60")
    p0.pw1(k, 60); k.settle(); k("s_branch " + join)
    k.restore(st); k(lw2 + ":")
    k("s_mov_b32 s22, s60"); k("s_mov_b32 s38, s60")
    k("s_sub_u32 s60, s60, 54")
    k("s_mov_b32 s23, 1")
    k("s_cmp_lt_u32 s60, 36"); k("s_cbranch_scc0 " + lspare)
    p0.pw2(k, 60); k.settle(); k("s_branch " + join)
    k.restore(st); k(lspare + ":")
    k("s_sub_u32 s60, s60, 36"); k("s_mul_i32 s60, s60, 3")
    k("s_add_u32 s38, s60, 90")
    k("s_branch " + lhalf)
    k.restore(st); k(lmisc + ":")
    k("s_sub_u32 s39, s2, 128")
    k("s_mov_b32 s38, 126")
    k("s_cmp_eq_u32 s39, 3")
    k("s_cselect_b32 s23, 1, 2")
    p0.pmisc2(k, 39); k.settle()
    k("s_cmp_eq_u32 s39, 0"); k("s_cbranch_scc1 " + join)
    k("s_cmp_eq_u32 s39, 3"); k("s_cbranch_scc1 " + join)
    k("s_mov_b32 s23, 1")
    k("s_sub_u32 s60, s5, 20"); k("s_add_u32 s60, s60, 32")
    k("s_cmp_lt_u32 s2, 160"); k("s_cselect_b32 s60, s39, s60")
    k("s_add_u32 s38, s60, 90")
    k(lhalf + ":")
    k("s_and_b32 s61, s60, 1"); k("s_lshr_b32 s60, s60, 1"); k("s_add_u32 s60, s60, 36")
    p0.pw2_half(k, 60, 61); k.settle()
    k(join + ":")
    k.vmq = [("st", set(), False)]; k.lgq = []

def arrive_setup(k):
    other, skip = k.label("wjob"), k.label("nojob")
    init_check(k)
    st = k.fork()
    k("s_cmp_eq_u32 s23, 0")
    k("s_cbranch_scc0 " + other)
    arrive_on(k, 0, 2, [8]*16)
    k("s_branch " + skip)
    k.restore(st)
    k(other + ":")
    k("s_cmp_eq_u32 s23, 2")
    k("s_cbranch_scc1 " + skip)
    arrive_on(k, B_W, 38, CNT_W)
    k(skip + ":")

def by_wave(k, fns):
    join = k.label("join")
    k.settle(vm=False)
    st = k.fork()
    groups = {}
    for w, f in enumerate(fns): groups.setdefault(id(f), (f, []))[1].append(w)
    items = list(groups.values())
    for n, (f, ws) in enumerate(items):
        nxt = k.label("next")
        k.restore(st)
        last = n == len(items) - 1
        if not last:
            assert len(ws) == 1
            k("s_cmp_eq_u32 s3, %d" % ws[0]); k("s_cbranch_scc0 " + nxt)
        f(); k.settle(vm=False)
        if not last:
            k("s_branch " + join); k(nxt + ":")
    k(join + ":")
    k("s_barrier")
    k.vmq = []; k.lgq = []

CNT_W = [sum(1 for j in range(127) if j & 15 == n) for n in range(16)]
CNT_Z = [sum(1 for j in range(92) if j & 15 == n) for n in range(16)]
CNT_OUT = [sum(1 for j in range(164) if j & 15 == n) + 4 for n in range(16)]

def build():
    k = Kern(NAME + "_kernel", 256, 256, lds=LDS_BYTES, vgpr=256, agpr=256, sgpr=102)
    k.stamp_regs = list(range(70, 90))
    prologue(k)
    k.protected = {6, 7, 8, 9, 10, 11, 20, 21} | set(range(24, 38))
    k.stamp_regs = list(range(70, 90))
    k.stamp("start")
    cph.role_flag(k)
    setup(k)
    k.stamp("p_end")
    if k.only: k("s_mov_b32 s100, s70"); k.stamp_names = []
    k.flush_stamps(STAMP, 0)
    k.protected = {6, 7, 8, 9, 10, 11, 22, 23, 32, 33, 34, 35, 36, 37}
    k.stamp_regs = list(range(39, 47)) + [49] + list(range(24, 32)) + [20, 21, 100]
    ff.roles(k)
    cph.role_flag(k)
    if P["flip"]: H[1] = H[0]
    nothing = lambda: None
    k.bg_gap = P["bgap"]
    for layer in range(2):
        k.dbg_layer = layer
        bin_, bout = B_IN[layer], B_OUT[layer]
        idle, go = k.label("idle"), k.label("go")
        tail_idx = list(range(11 - P["ntail"], 11))
        xs = P["xs"] >> layer & 1
        win_idx = list(range(P["nwin"])) if layer else []
        mid_idx = list(range(len(win_idx), len(win_idx) + (P["nmid"] if layer else P["nmid0"])))
        g1_idx = [i for i in range(11) if i not in mid_idx + win_idx and (layer == 0 or i not in tail_idx)]
        w2mid = lambda: [l for idx in mid_idx for l in ff.w2_loads(k, idx)]
        w2win = lambda: [l for idx in win_idx for l in ff.w2_loads(k, idx)]
        add_own = lambda bar: arrive_on(k, bar, 2, [16]*16)
        add_out = lambda: add_own(bout)
        poll_out = lambda: poll(k, bout)
        poll_w = lambda: poll(k, B_W)
        if k.stamps_on and not (k.only and layer): k("s_mov_b32 s101, 0")
        ff.pre_s(k, layer)
        if layer == 0 or not tail_idx: ff.pre_w(k, layer)
        k.settle(vm=False)
        entry = k.fork()
        k("s_cmp_eq_u32 s68, 0")
        k("s_cbranch_scc1 " + idle)
        cph.offsets(k, layer); cph.pre(k)
        k("v_lshlrev_b32 v1, 4, v0")
        k.wait(vm="tab")
        k.stamp("drained")
        k("s_barrier")
        def w0():
            if layer == 0: arrive_setup(k)
            else: add_own(bin_)
            if xs: cph.poison_out(k, 20)
            for l in w2win(): l()
            flag_load(k, bin_, 18)
            cph.tables(k)
            flag_wait(k, 18)
        def w123():
            if xs: cph.poison_out(k, 20)
            for l in w2win(): l()
            if layer:
                ff.w1_dma3(k, 0, 66, "w1")
                k("s_mov_b32 s89, 66"); ff.w1_block(k, 89)
            cph.tables(k)
            k.wait(vm="px")
        split_waves(k, w0, w123)
        k.stamp("c_go")
        def tail_blocks():
            k("s_add_u32 s89, s3, 63"); ff.w1_block(k, 89)
        late = w2mid() if layer else ff.w1_dma(k, 0, 16, "w1") + [tail_blocks] + w2mid()
        cph.main(k, late, None if layer else (lambda: flag_load(k, B_W, 14), lambda: flag_wait(k, 14)),
                 (lambda: hint_issue(k, bout), lambda: hint_check(k), P["hint"]) if xs else None)
        k.stamp("c_stored")
        ff.pre_v(k)
        if not xs:
            k.wait(vm="cst"); k.stamp("c_drained"); k("s_barrier")
        split_waves(k, poll_out if xs else (lambda: (add_out(), poll_out())), lambda: ff.w1_dma3(k, 67, 148, "w1"))
        k("s_branch " + go)
        k.restore(entry)
        k(idle + ":")
        k.wait(vm="st" if layer == 0 else "fin"); k("s_barrier")
        split_waves(k, (lambda: arrive_setup(k)) if layer == 0 else (lambda: add_own(bin_)), nothing)
        ff.pre_v(k)
        def second():
            sk = k.label("nosecond")
            k("s_sub_u32 s88, s22, 54"); k("s_cmp_lt_u32 s88, 36"); k("s_cbranch_scc0 " + sk)
            p0.pw2_second(k); k.settle()
            k(sk + ":")
        early = P["nwin"] or P["touch2"] or P["ntail"]
        if layer == 0 and early: second()
        if not (layer and P["flip"]):
            for l in ff.poison(k, H[layer], 32*HBLK): l()
            k.wait(vm="pz"); k("s_barrier")
        k.stamp("i_poison")
        if layer == 0:
            if early: split_waves(k, lambda: (add_out(), poll_w()), nothing)
            else: split_waves(k, lambda: (add_out(), poll_w(), second()), second)
            k.stamp("i_wready")
            for l in ff.w1_dma(k, 0, 37, "w1") + w2mid(): l()
        else:
            split_waves(k, lambda: (add_out(), poll(k, bin_)), lambda: (ff.w1_dma3(k, 66, 147, "w1"), ff.w1_dma3(k, 0, 66, "w1")))
            for l in w2win() + w2mid(): l()
        k.stamp("i_fetched")
        split_waves(k, poll_out, nothing)
        k(go + ":")
        k.stamp("g_go")
        pending = ff.g1(k, layer, g1_idx, True)
        ff.g2(k, layer, pending, tail_idx if layer == 0 else [])
        k.stamp("issued_end")
        if layer == 1 and k.stamps_on: k("s_waitcnt vmcnt(0)")
        k.stamp("end")
        k.stamp_val("#retry", 101)
        if k.only and layer == 1:
            k.stamp("last"); k.stamp_val("entry", 100); k.stamp_val("#lastretry", 101)
        k.flush_stamps(STAMP, 1 + layer)
        if k.stamps_on and layer == 0 and not k.only: k.vmq.append(("fin", set(), False)); k("s_nop 0")
    if k.dbg_mode:
        lab = k.label("nodbg")
        k("s_waitcnt vmcnt(0)")
        k.dbg_layer = 2; k.dbg_mode = ("end",); k.dbg_regs = k.dbg_regs[:len(k.dbg_list)] + [20]; k.stamp("end")
        k("s_or_b32 s98, s2, s3"); k("s_cmp_eq_u32 s98, 0"); k("s_cbranch_scc0 " + lab)
        A, B, mult = P["ampA"], P["ampB"], P["amp"]
        k("s_sub_u32 s90, s%d, s%d" % (k.dbg_regs[B], k.dbg_regs[A]))
        k("s_mul_i32 s90, s90, %d" % mult)
        k("s_min_u32 s90, s90, 50000")
        sp = k.label("amp")
        k(sp + ":")
        k("s_memrealtime s[98:99]"); k("s_waitcnt lgkmcnt(0)")
        k("s_sub_u32 s98, s98, s%d" % k.dbg_regs[len(k.dbg_list)-1])
        k("s_cmp_lt_u32 s98, s90"); k("s_cbranch_scc1 " + sp)
        k(lab + ":")
        print(k.dbg_list)
    finish(k)
    return k

def init_check(k):
    again, ok = k.label("again"), k.label("ok")
    k.srd(AUX2, pDBG, 256)
    k("s_mov_b32 s91, 0")
    k(again + ":")
    k("buffer_load_dword v16, off, %s, 0 sc1" % srd(AUX2))
    k("s_add_u32 s91, s91, 1")
    k("s_waitcnt vmcnt(0)")
    k("v_readfirstlane_b32 s88, v16")
    k("s_cmp_ge_u32 s91, %d" % SPIN)
    k("s_cbranch_scc1 " + ok)
    k("s_cmp_eq_u32 s88, 1")
    k("s_cbranch_scc0 " + again)
    k(ok + ":")

if __name__ == "__main__":
    out = sys.argv[1]
    for a_ in sys.argv[2:]:
        if a_ == "stamps": Kern.stamps_on = True
        elif a_.startswith("wsoff="): WSOFF[0] = int(a_[6:]) << 20
        elif a_ == "reuse": U[1] = U[0]; XG[2] = XG[0]; XG[3] = XG[1]
        elif a_ == "ends": Kern.stamps_on = True; Kern.only = ("entry", "last", "#lastretry")
        elif a_ == "dbg2": Kern.dbg_mode = ("entry", "start"); Kern.dbg_regs = [100, 101]
        elif a_ == "dbg": Kern.dbg_mode = ("start", "drained", "c_go", "c_drained", "g_go", "g1_end", "g2_mfma", "end")
        else:
            n, val = a_.split("="); assert n in P, n; P[n] = eval(val)
    k = build()
    open(out, "w").write(assemble(HEADER, [k], [k], TABTXT + "dft_end:\n"))
    print(k.count, "nops", k.nops)
    if Kern.stamps_on: json.dump(k.stamp_log, open(out + ".stamps.json", "w"))
```

```python
from common import *

sG, sR = 50, 51
vO = [2, 3, 8, 9]
vXW = 4
vTR, vRSR, vRSW, vXR, vDMA, vST = 10, 11, 12, 13, 14, 15
VA, RES, F0R, FAR, TWR, FBR, RSB, AFB, DB = 16, 48, 64, 96, 104, 112, 128, 160, 192

def role(k, lskip):
    k("s_lshr_b32 s50, s5, 2")
    k("s_lshl_b32 s50, s50, 3")
    k("s_add_u32 s50, s50, s4")
    k("s_and_b32 s51, s5, 3")
    k("s_cmp_gt_u32 s50, 40")
    k("s_cbranch_scc1 " + lskip)

def role_flag(k):
    k("s_lshr_b32 s50, s5, 2")
    k("s_lshl_b32 s50, s50, 3")
    k("s_add_u32 s50, s50, s4")
    k("s_and_b32 s51, s5, 3")
    k("s_cmp_le_u32 s50, 40")
    k("s_cselect_b32 s68, 1, 0")

def row_off(k, vd, vk, t):
    k("v_lshrrev_b32 v%d, 9, v%d" % (t, vk))
    k("v_bfe_u32 v%d, v%d, 1, 4" % (vd, vk))
    k("v_lshl_add_u32 v%d, v%d, 4, v%d" % (vd, t, vd))
    k("v_mul_u32_u24 v%d, 40960, v%d" % (vd, vd))
    k("v_and_b32 v%d, 1, v%d" % (t, vk))
    k("v_lshl_add_u32 v%d, v%d, 8, v%d" % (vd, t, vd))
    k("v_bfe_u32 v%d, v%d, 5, 1" % (t, vk))
    k("v_lshl_add_u32 v%d, v%d, 7, v%d" % (vd, t, vd))
    k("v_bfe_u32 v%d, v%d, 6, 3" % (t, vk))
    k("v_lshl_add_u32 v%d, v%d, 4, v%d" % (vd, t, vd))

def pre(k):
    k.comment("column phase: constants and addresses")
    k("v_lshlrev_b32 v%d, 4, v0" % vST)
    k("s_lshl_b32 s52, s50, 10")
    k("s_add_u32 s52, s52, %d" % TAB["F0"])
    k("s_lshl_b32 s53, s51, 11")
    k("s_add_u32 s53, s53, %d" % (TAB["FA"] - 1024))
    k("s_mov_b32 s54, %d" % (TAB["FB"] - 3072))
    for j in range(2):
        k("s_lshl_b32 s55, s3, 1")
        k("s_add_u32 s55, s55, %d" % j)
        k("s_min_u32 s55, s55, 6")
        k("s_cmp_lt_u32 s55, 3")
        k("s_cselect_b32 s56, s53, s54")
        k("s_cmp_eq_u32 s55, 0")
        k("s_cselect_b32 s56, s52, s56")
        k("s_lshl_b32 s55, s55, 10")
        k("s_add_u32 s56, s56, s55")
        k("v_add_u32 v16, s56, v%d" % vST)
        k("v_mov_b32 v17, 0")
        k("v_lshl_add_u64 v[16:17], v[16:17], 0, s[6:7]")
        k("s_add_u32 m0, s55, %d" % L_TAB)
        k("global_load_lds_dwordx4 v[16:17], off", tag="tab")

def pre2(k):
    k("s_lshl_b32 s52, s51, 2")
    k("s_add_u32 s52, s52, s3")
    k("s_lshl_b32 s52, s52, 10")
    k("v_lshrrev_b32 v34, 5, v0")
    k("v_and_b32 v35, 15, v0")
    k("v_lshl_add_u32 v34, v34, 4, v35")
    k("v_lshl_add_u32 v34, v34, 3, s52")
    tab_addr(k, 38, 34, TAB["TW"])
    for p in range(4):
        k("global_load_dwordx2 %s, v[38:39], off offset:%d" % (v(TWR+2*p, 2), p*256))
    k("s_mul_i32 s58, s3, 18432")
    k("s_add_u32 s58, s58, %d" % L_CU)
    k("s_lshl_b32 s59, s3, 11")
    k("s_add_u32 s59, s59, %d" % L_CRS)
    k("v_lshrrev_b32 v42, 4, v0")
    k("v_lshrrev_b32 v43, 5, v0")
    k("v_bfe_u32 v44, v0, 4, 1")
    k("v_bfe_u32 v45, v0, 3, 1")
    k("v_bfe_u32 v46, v0, 2, 1")
    k("v_and_b32 v47, 3, v0")
    k("v_lshl_add_u32 v1, v43, 1, v45")
    k("v_mul_u32_u24 v1, 1152, v1")
    k("v_lshl_add_u32 v1, v44, 6, v1")
    k("v_lshl_add_u32 v1, v46, 5, v1")
    k("v_lshl_add_u32 v1, v47, 3, v1")
    k("v_add_u32 v%d, s58, v1" % vTR)
    k("v_lshlrev_b32 v1, 6, v45")
    k("v_lshl_add_u32 v1, v42, 4, v1")
    k("v_add_u32 v%d, s59, v1" % vRSR)
    k("v_lshl_add_u32 v%d, v0, 3, s59" % vRSW)
    k("v_and_b32 v1, 31, v0")
    k("v_lshlrev_b32 v1, 4, v1")
    k("v_lshl_add_u32 v%d, v43, 13, v1" % vDMA)
    k("v_lshlrev_b32 v1, 11, v44")
    k("v_bfe_u32 v34, v0, 2, 2")
    k("v_lshl_add_u32 v1, v34, 9, v1")
    k("v_lshl_add_u32 v1, v43, 8, v1")
    k("v_lshl_add_u32 v1, v47, 6, v1")
    k("v_add_u32 v1, s58, v1")
    k("v_bfe_u32 v35, v0, 1, 2")
    for r in range(4):
        k("v_xor_b32 v36, %d, v35" % r)
        k("v_lshl_add_u32 v%d, v36, 4, v1" % (vXW+r))
    k("v_mul_u32_u24 v1, 18432, v43")
    k("v_lshl_add_u32 v1, v44, 8, v1")
    k("v_lshl_add_u32 v1, v34, 6, v1")
    k("s_lshl_b32 s52, s3, 1")
    k("v_add_u32 v36, s52, v45")
    k("v_and_b32 v36, 3, v36")
    k("v_xor_b32 v36, v36, v47")
    k("v_lshl_add_u32 v1, v36, 4, v1")
    k("s_lshl_b32 s52, s3, 9")
    k("s_add_u32 s52, s52, %d" % L_CU)
    k("v_add_u32 v%d, s52, v1" % vXR)
    k("s_lshl_b32 s52, s3, 4")
    k("s_add_u32 s52, s52, s51")
    k("v_and_b32 v34, 15, v0")
    k("v_lshlrev_b32 v34, 6, v34")
    k("v_lshl_add_u32 v34, v42, 2, v34")
    k("v_add_u32 v34, s52, v34")
    row_off(k, vO[0], 34, 1)
    k("v_add_u32 v%d, %d, v%d" % (vO[1], 32*40960, vO[0]))
    k("v_sub_u32 v35, 2048, v34")
    k("v_and_b32 v35, 2047, v35")
    row_off(k, vO[2], 35, 1)
    k("v_sub_u32 v35, 1024, v34")
    k("v_and_b32 v35, 2047, v35")
    row_off(k, vO[3], 35, 1)

def tables(k):
    for r in range(32): k("v_mov_b32 v%d, 0" % (F0R+r))
    k("v_lshrrev_b32 v26, 5, v0")
    k("v_and_b32 v27, 7, v0")
    k("v_lshlrev_b32 v26, 7, v26")
    k("v_lshl_add_u32 v26, v27, 4, v26")
    for aa in range(4):
        for ri in range(2):
            k("s_mul_i32 s53, s51, %d" % aa)
            k("s_add_u32 s53, s53, %d" % ri)
            k("s_and_b32 s53, s53, 3")
            k("s_lshl_b32 s53, s53, 8")
            k("s_add_u32 s53, s53, %d" % L_TAB)
            k("v_add_u32 v%d, s53, v26" % (28+2*aa+ri))
    k("v_add_u32 v27, %d, v%d" % (L_TAB + 1024, vST))
    k("s_mov_b32 exec_lo, 0xff0000ff")
    k("s_mov_b32 exec_hi, 0xff0000ff")
    for n in range(8):
        k("ds_read_b128 %s, v%d" % (v(F0R+4*n, 4), 28+n))
    k("s_mov_b64 exec, -1")
    for n in range(2): k("ds_read_b128 %s, v27 offset:%d" % (v(FAR+4*n, 4), n*1024))
    for n in range(4): k("ds_read_b128 %s, v27 offset:%d" % (v(FBR+4*n, 4), 2048 + n*1024))

def poison_out(k, vz):
    for r in range(4): k("v_mov_b32 v%d, -1" % (vz+r))
    for n in range(4):
        k("buffer_store_dwordx4 %s, v%d, %s, s%d offen sc1" % (v(vz, 4), vO[n], srd(WS), 66 + (n >> 1)), tag="px")

def offsets(k, layer):
    k("s_lshl_b32 s60, s3, 10")
    k("s_add_u32 s60, s60, 0x%x" % ST[layer])
    k("s_cmp_eq_u32 s50, 40")
    k("s_cselect_b32 s61, 0, s50")
    k("s_lshl_b32 s62, s61, 16")
    k("s_lshl_b32 s63, s3, 9")
    k("s_add_u32 s62, s62, s63")
    k("s_add_u32 s62, s62, 0x%x" % U[layer])
    k("s_lshl_b32 s63, s50, 9")
    k("s_add_u32 s64, s63, 0x%x" % XG[2*layer])
    k("s_add_u32 s66, s63, 0x%x" % XG[2*layer+1])
    k("s_sub_u32 s65, 0x%x, s63" % (XG[2*layer] + 80*512))
    k("s_sub_u32 s67, 0x%x, s63" % (XG[2*layer+1] + 80*512))
    k("s_cmp_eq_u32 s61, 0")
    k("s_cselect_b32 s65, 0x%x, s65" % OOB)
    k("s_cselect_b32 s67, 0x%x, s67" % OOB)

def main(k, late=(), gate=None, hint=None, scaled=False):
    late = list(late)
    for aa in range(0 if scaled else 4):
        if aa: k("s_add_u32 s60, s60, 4096")
        k("buffer_load_dwordx4 %s, v%d, %s, s60 offen sc1" % (v(RSB+4*aa, 4), vST, srd(WS)))
    for aa in range(4):
        for dp in range(4):
            k("s_add_u32 m0, s58, %d" % ((4*aa + dp)*1152))
            k("s_add_u32 s63, s62, %d" % (dp*16384 + aa*2048))
            k("buffer_load_dwordx4 v%d, %s, s63 offen sc1 lds" % (vDMA, srd(WS)), tag="u%d" % aa)
    res = ["buffer_load_dwordx4 %s, v%d, %s, s%d offen sc1" % (v(RES+4*n, 4), vO[n], srd(WS), 64 + (n >> 1)) for n in range(4)]
    c = f2u(1.0/D)
    for aa in range(0 if scaled else 4):
        b = RSB + 4*aa
        for e in range(2):
            k("v_mul_f32 v%d, 0x%x, v%d" % (b+2*e, c, b+2*e))
            k("v_mul_f32 v%d, 0x%x, v%d" % (b+2*e+1, c, b+2*e+1))
        for e in range(2):
            k("v_fma_f32 v%d, -v%d, v%d, v%d" % (b+2*e+1, b+2*e, b+2*e, b+2*e+1))
        for e in range(2):
            k("v_max_f32 v%d, 0, v%d" % (b+2*e+1, b+2*e+1))
        for e in range(2):
            k("v_add_f32 v%d, 0x%x, v%d" % (b+2*e+1, f2u(1e-5), b+2*e+1))
        for e in range(2):
            k("v_rsq_f32 v%d, v%d" % (b+e, b+2*e+1))
        k("ds_write_b64 v%d, %s offset:%d" % (vRSW, v(b, 2), aa*512))
    def reads(aa):
        out = []
        for p in range(4):
            for h in range(2):
                out.append("ds_read_b64_tr_b16 %s, v%d offset:%d" % (v(AFB+16*(aa & 1)+4*p+2*h, 2), vTR, aa*4608 + h*512 + p*128))
        for p in range(0 if scaled else 4):
            out.append("ds_read_b128 %s, v%d offset:%d" % (v(RSB+16*(aa & 1)+4*p, 4), vRSR, aa*512 + p*128))
        return out
    def mfmas(aa):
        if scaled:
            return ["v_mfma_f32_16x16x32_bf16 %s, %s, %s, %s" % (v(VA+8*p+4*ri, 4), v(AFB+16*(aa & 1)+4*p, 4), v(F0R+8*aa+4*ri, 4), v(VA+8*p+4*ri, 4) if aa else "0")
                    for p in range(4) for ri in range(2)]
        return ["v_mfma_f32_16x16x32_bf16 %s, %s, %s, 0" % (v(DB+32*(aa & 1)+8*p+4*ri, 4), v(AFB+16*(aa & 1)+4*p, 4), v(F0R+8*aa+4*ri, 4))
                for p in range(4) for ri in range(2)]
    def fmas(aa):
        out = []
        if scaled: return out
        for p in range(4):
            for e in range(0, 8, 2):
                d, x, r = v(VA+8*p+e, 2), v(DB+32*(aa & 1)+8*p+e, 2), v(RSB+16*(aa & 1)+4*p+(e & 3), 2)
                out.append("v_pk_mul_f32 %s, %s, %s" % (d, x, r) if aa == 0 else "v_pk_fma_f32 %s, %s, %s, %s" % (d, x, r, d))
        return out
    raw = k
    class Dripper:
        def __call__(self, text, tag=None):
            raw(text, tag=tag); raw.drip()
        def __getattr__(self, n): return getattr(raw, n)
    k = Dripper()
    k.wait(vm="u0")
    k.stamp("c_u0")
    for l in reads(0): k(l)
    for aa in range(4):
        fill = fmas(aa-1) if aa else []
        m = mfmas(aa)
        if aa == 0:
            for l in m: k(l)
        else:
            rest = interleave(k, m, fill, 2)
            for l in rest: k(l)
        if aa < 2:
            k(res[2*aa]); k(res[2*aa+1])
        if aa == 1:
            if gate: gate[0]()
            if not (gate and gate[2]): raw.bg = late
        if aa < 3:
            k.wait(vm="u%d" % (aa+1))
            for l in reads(aa+1): k(l)
    if gate:
        gate[1]()
        if gate[2]: raw.bg = late
    if hint and hint[2] == 0: hint[0]()
    fm = fmas(3)
    for p in range(4):
        for l in fm[4*p:4*p+4]: k(l)
        for r in range(4):
            k("v_cvt_pk_bf16_f32 v%d, v%d, v%d" % (AFB+4*p+r, VA+8*p+r, VA+8*p+4+r))
        for ri in range(2):
            k("v_mfma_f32_16x16x32_bf16 %s, %s, %s, 0" % (v(DB+8*p+4*ri, 4), v(AFB+4*p, 4), v(FAR+4*ri, 4)))
    if hint and hint[2] == 1: hint[0]()
    for p in range(4):
        tw = v(TWR+2*p, 2)
        for r in range(4):
            o = r & 1
            k("v_pk_mul_f32 %s, %s, %s op_sel:[%d,0] op_sel_hi:[%d,1]" % (v(RSB+8*p+2*r, 2), v(DB+8*p+(r & 2), 2), tw, o, o))
        for r in range(4):
            o = r & 1; d = v(RSB+8*p+2*r, 2)
            k("v_pk_fma_f32 %s, %s, %s, %s op_sel:[%d,1,0] op_sel_hi:[%d,0,1] neg_lo:[1,0,0]" % (d, v(DB+8*p+4+(r & 2), 2), tw, d, o, o))
        for r in range(4):
            k("v_cvt_pk_bf16_f32 v%d, v%d, v%d" % (VA+4*r+p, RSB+8*p+2*r, RSB+8*p+2*r+1))
    for r in range(4):
        k("ds_write_b128 v%d, %s" % (vXW+r, v(VA+4*r, 4)), tag="xw")
    for n in range(4):
        for jj in range(4):
            lo, hi = (2*jj, 2*jj+1) if n < 2 else (7-2*jj, 6-2*jj)
            k("v_lshlrev_b32 v%d, 16, v%d" % (F0R+8*n+lo, RES+4*n+jj))
            k("v_and_b32 v%d, 0xffff0000, v%d" % (F0R+8*n+hi, RES+4*n+jj))
    if hint and hint[2] == 2: hint[0]()
    k.wait(lg="xw")
    k("s_barrier")
    if hint and hint[2] == 3: hint[0]()
    for ch in range(2):
        for ks in range(2):
            k("ds_read_b128 %s, v%d offset:%d" % (v(AFB+8*ch+4*ks, 4), vXR, ks*36864 + ch*2048), tag="xr")
    for ks in range(2):
        for n in range(4):
            for ch in range(2):
                d = v(DB+8*n+4*ch, 4)
                k("v_mfma_f32_16x16x32_bf16 %s, %s, %s, %s" % (d, v(AFB+8*ch+4*ks, 4), v(FBR+8*ks+4*(n & 1), 4), v(F0R+8*n+4*ch, 4) if ks == 0 else d))
    left, raw.bg = raw.bg, []
    k("s_barrier")
    if hint and hint[2] < 2: hint[1]()
    for n in range(4):
        for jj in range(4):
            lo, hi = (2*jj, 2*jj+1) if n < 2 else (7-2*jj, 6-2*jj)
            k("v_cvt_pk_bf16_f32 v%d, v%d, v%d" % (DB+32+4*n+jj, DB+8*n+lo, DB+8*n+hi))
        k("buffer_store_dwordx4 %s, v%d, %s, s%d offen sc1" % (v(DB+32+4*n, 4), vO[n], srd(WS), 66 + (n >> 1)), tag="cst")
    if hint and hint[2] >= 2: hint[1]()
    for l in left: l()
    if left: print('column phase: %d background loads left for after the stores' % len(left))
```

```python
from common import *

sKP, sC, sRH, sCB = 70, 71, 72, 73
sXO, sW1O, sHS, sHS3 = 74, 75, 76, 77
sCNT, sCNTP = 78, 79
sHB = [80, 81, 82, 83]
sWB = [84, 85, 86, 87]
sT0, sT1, sT2 = 88, 89, 90
sSPIN = 91
vL, vA0, vA1, vA2, vX, vH3, vBQ, vSIG, vONE, vBS, vRW = 1, 2, 3, 4, 5, 6, 7, 8, 9, 10, 11
vHL = 12
SB, TMP = 16, 24
ACCP, ACCS, GR = 32, 80, 88
XBR = 96
RING, NRING = 220, 9
G2ACC, HR, RB, RT = 16, 96, 216, 236
SPIN_LIMIT = 100000
NS = 7
M80R = 40

P = dict(exp=0, flip=1, xs=2, outpol=0, J=3, touch2=1, slp=0, map42=1, la=14, nx=3, epi=3, gap=5, wgap=4, hgap=4, hpre=2, slots=(1, 5, 9, 13, 17), h0=32, hB=-1, hC=3, thr=60)

def roles(k):
    if P["map42"]:
        k("s_lshr_b32 s70, s4, 1")
        k("s_lshl_b32 s70, s70, 2")
        k("s_lshr_b32 s88, s5, 3")
        k("s_add_u32 s70, s70, s88")
        k("s_and_b32 s88, s4, 1")
        k("s_and_b32 s89, s5, 7")
        k("s_lshl_b32 s71, s88, 3")
        k("s_add_u32 s71, s71, s89")
        k("s_lshr_b32 s72, s89, 2")
        k("s_and_b32 s73, s89, 3")
        k("s_lshl_b32 s88, s88, 2")
        k("s_add_u32 s73, s73, s88")
    else:
        k("s_lshr_b32 s70, s5, 4")
        k("s_lshl_b32 s88, s4, 1")
        k("s_add_u32 s70, s70, s88")
        k("s_and_b32 s71, s5, 15")
        k("s_lshr_b32 s72, s71, 3")
        k("s_and_b32 s73, s71, 7")
    k("s_mul_i32 s75, s71, %d" % LW1)
    k("s_lshl_b32 s69, s3, 10")
    k("s_add_u32 s75, s75, s69")
    k("s_add_u32 s75, s75, 0x%x" % W1P)

def w1_dma3(k, lo, hi, tag, nw=3):
    k("s_add_u32 s89, s75, %d" % ((lo-4+nw)*1024))
    k("s_add_u32 s88, s69, %d" % ((lo-4+nw)*1024))
    for j in range((hi - lo)//nw):
        k("s_add_u32 m0, s88, %d" % (j*nw*1024))
        if j: k("s_add_u32 s89, s89, %d" % (nw*1024))
        else: k("s_nop 0")
        k("buffer_load_dwordx4 v%d, %s, s89 offen lds" % (vL, srd(WS)), tag=tag)
        if j >= P["thr"]: k("s_waitcnt vmcnt(%d)" % P["thr"])

def w1_dma(k, lo, hi, tag):
    out = []
    for j in range(lo, hi):
        def one(j=j):
            k("s_add_u32 m0, s69, %d" % (j*4096))
            k("s_add_u32 s88, s75, %d" % (j*4096))
            k("buffer_load_dwordx4 v%d, %s, s88 offen lds" % (vL, srd(WS)), tag=tag)
        out.append(one)
    return out

def pre_v(k):
    k.comment("feed-forward: addresses")
    k("v_lshlrev_b32 v%d, 4, v0" % vL)
    k("v_add_u32 v%d, %d, v%d" % (vA0, PT_OFF[0], vL))
    k("v_add_u32 v%d, %d, v%d" % (vA1, PT_OFF[2], vL))
    k("v_add_u32 v%d, %d, v%d" % (vA2, PT_OFF[4], vL))
    k("v_and_b32 v16, 15, v0")
    k("v_lshrrev_b32 v17, 4, v0")
    k("v_lshlrev_b32 v18, 4, v16")
    k("v_lshl_add_u32 v%d, v17, 9, v18" % vX)
    k("s_mul_i32 s88, s71, 3")
    k("v_add_u32 v19, s88, v17")
    k("v_and_b32 v20, 1, v19")
    k("v_lshl_add_u32 v18, v20, 3, v18")
    k("v_bfe_u32 v20, v19, 1, 2")
    k("v_lshl_add_u32 v18, v20, 8, v18")
    k("v_lshrrev_b32 v20, 3, v19")
    k("v_add_u32 v20, 48, v20")
    k("v_lshl_add_u32 v18, v20, 12, v18")
    k("v_add_u32 v19, 1, v17")
    k("v_lshrrev_b32 v19, 2, v19")
    k("v_lshl_add_u32 v%d, v19, 30, v18" % vH3)
    k("v_lshrrev_b32 v19, 2, v16")
    k("v_lshl_add_u32 v19, v19, 4, v16")
    k("v_lshlrev_b32 v%d, 2, v19" % vBQ)
    k("v_add_lshl_u32 v%d, v16, 48, 2" % vBS)
    k("s_lshl_b32 s88, s3, 7")
    k("s_add_u32 s88, s88, %d" % L_RS2)
    k("v_lshl_add_u32 v%d, v16, 2, s88" % vRW)
    k("v_min_u32 v16, 1, v0")
    k("v_lshlrev_b32 v%d, 30, v16" % vSIG)
    k("v_mov_b32 v%d, 1" % vONE)
    for r, m in ((1, 0x22222222), (2, 0x44444444), (3, 0x88888888)):
        k("s_mov_b32 s%d, 0x%x" % (90+2*r, m)); k("s_mov_b32 s%d, 0x%x" % (91+2*r, m))
    for lam in range(4):
        k("s_add_u32 s88, s3, %d" % (lam+1))
        k("s_and_b32 s88, s88, 3")
        k("s_lshl_b32 s88, s88, 10")
        k("v_add_u32 v%d, s88, v%d" % (vHL+lam, vL))

def pre_s(k, layer):
    k("s_lshl_b32 s88, s70, 2")
    k("s_add_u32 s88, s88, s3")
    k("s_mul_i32 s74, s88, 40960")
    k("s_add_u32 s74, s74, 0x%x" % XG[2*layer+1])
    k("s_lshr_b32 s89, s88, 1")
    k("s_mul_i32 s77, s89, %d" % HBLK)
    k("s_and_b32 s90, s3, 1")
    k("s_lshl_b32 s90, s90, 11")
    k("s_add_u32 s77, s77, s90")
    k("s_add_u32 s77, s77, 0x%x" % H[layer])
    k("s_lshl_b32 s90, s71, 13")
    k("s_add_u32 s76, s77, s90")
    k("s_lshl_b32 s89, s70, 1")
    k("s_add_u32 s89, s89, s72")
    k("s_mul_i32 s89, s89, %d" % HBLK)
    k("s_add_u32 s89, s89, 0x%x" % H[layer])
    step_bases(k, 89, 4096, sHB)

def step_bases(k, base, unit, regs):
    k("s_mul_i32 s88, s3, %d" % (8*unit)); k("s_add_u32 s%d, s%d, s88" % (regs[0], base))
    k("s_mul_i32 s88, s3, %d" % unit); k("s_add_u32 s88, s88, %d" % (48*unit)); k("s_add_u32 s%d, s%d, s88" % (regs[1], base))
    k("s_add_u32 s%d, s%d, %d" % (regs[2], regs[1], 4*unit))
    k("s_cmp_lt_u32 s3, 2"); k("s_cselect_b32 s%d, s%d, 0x%x" % (regs[2], regs[2], OOB))
    k("s_mul_i32 s88, s3, %d" % (4*unit)); k("s_add_u32 s88, s88, %d" % (32*unit)); k("s_add_u32 s%d, s%d, s88" % (regs[3], base))

def pre_w(k, layer):
    k("s_mul_i32 s89, s73, %d" % LW2)
    k("s_add_u32 s89, s89, 0x%x" % W2P[layer])
    step_bases(k, 89, 5120, sWB)

def pre(k, layer):
    pre_s(k, layer); pre_v(k)

def step_base(idx):
    if idx < 4: return 0, 2*idx
    if idx == 4: return 1, 0
    if idx == 5: return 2, 0
    if idx < 10: return 0, 2*(idx-6) + 1
    return 3, idx-10

def w2_reg(idx, dt):
    return a(20*(idx % 12)+4*dt, 4)

def w2_loads(k, idx):
    b, n = step_base(idx)
    out = []
    for dt in range(5):
        def one(dt=dt):
            if dt == 0: k("s_add_u32 s89, s%d, %d" % (sWB[b], n*5120))
            if dt == 4: k("s_add_u32 s89, s%d, %d" % (sWB[b], n*5120 + 4096))
            k("buffer_load_dwordx4 %s, v%d, %s, s89 offen offset:%d" % (w2_reg(idx, dt), vL, srd(WS), (dt & 3)*1024))
        out.append(one)
    return out

def poison(k, off, nbytes, vz=64):
    n = -(-nbytes // (368*1024))
    for r in range(4): k("v_mov_b32 v%d, -1" % (vz+r))
    k("s_add_u32 s%d, s%d, 0x%x" % (AUX, pWS, off))
    k("s_addc_u32 s%d, s%d, 0" % (AUX+1, pWS+1))
    k("s_mov_b32 s%d, %d" % (AUX+2, nbytes))
    k("s_mov_b32 s%d, 0x00020000" % (AUX+3))
    k("s_lshl_b32 s90, s22, 2")
    k("s_add_u32 s90, s90, s3")
    k("s_mul_i32 s90, s90, %d" % (n*1024))
    out = []
    for j in range(n):
        def one(j=j):
            if j and j % 4 == 0: k("s_add_u32 s90, s90, 4096")
            k("buffer_store_dwordx4 %s, v%d, %s, s90 offen offset:%d sc1" % (v(vz, 4), vL, srd(AUX), (j & 3)*1024), tag="pz")
        out.append(one)
    return out

def poison_h(k, layer, vz):
    for r in range(4): k("v_mov_b32 v%d, -1" % (vz+r))
    k("s_mul_i32 s90, s2, 3")
    k("s_add_u32 s90, s90, s3")
    k("s_mul_i32 s90, s90, 9216")
    k("s_add_u32 s90, s90, 0x%x" % (H[layer] - 9216))
    for j in range(9):
        if j and j % 4 == 0: k("s_add_u32 s90, s90, 4096")
        k("buffer_store_dwordx4 %s, v%d, %s, s90 offen offset:%d sc1" % (v(vz, 4), vL, srd(WS), (j & 3)*1024), tag="ph")

def w1_block(k, sblk):
    k("s_lshl_b32 s88, s%d, 10" % sblk)
    k("s_mov_b32 m0, s88")
    k("s_sub_u32 s88, s88, s69")
    k("s_add_u32 s88, s88, s75")
    k("buffer_load_dwordx4 v%d, %s, s88 offen lds" % (vL, srd(WS)), tag="w1")

def x_check(s):
    b = XBR + 8*s
    return ["v_max3_u32 v31, v%d, v%d, v%d" % (b, b+1, b+2), "v_max3_u32 v31, v31, v%d, v%d" % (b+3, b+4),
            "v_max3_u32 v31, v31, v%d, v%d" % (b+5, b+6), "v_max_u32 v31, v31, v%d" % (b+7), "v_cmp_eq_u32 vcc, -1, v31"]

def x_branch(k, s, last):
    retry, back = k.label("xretry"), k.label("xback")
    k("s_cbranch_vccnz " + retry)
    k(back + ":")
    def tail():
        loop = k.label("xloop")
        k.vmq = []; k.lgq = []; k.hist = []
        k(retry + ":")
        k("s_mov_b32 s54, 0")
        k(loop + ":")
        for n in range(2*s, 2*last + 2):
            if n == 2*s or n % 4 == 0: k("s_add_u32 s53, s52, %d" % ((n >> 2)*4096))
            k("buffer_load_dwordx4 %s, v%d, %s, s53 offen offset:%d sc1" % (v(XBR+4*n, 4), vX, srd(WS), ((n >> 1) & 1)*2048 + (n & 1)*256))
        k("s_add_u32 s54, s54, 1")
        if k.stamps_on: k("s_add_u32 s101, s101, 0x100")
        k("s_waitcnt vmcnt(0)")
        for l in x_check(s): k(l)
        k("s_cmp_ge_u32 s54, %d" % SPIN_LIMIT)
        k("s_cbranch_scc1 " + back)
        k("s_nop 2")
        k("s_cbranch_vccnz " + loop)
        k("s_branch " + back)
    k.tails.append(tail)

def poison_next(k, vz):
    out = ["v_mov_b32 v%d, -1" % (vz+r) for r in range(4)]
    out += ["s_lshl_b32 s95, s2, 2", "s_add_u32 s95, s95, s3", "s_mul_i32 s95, s95, 6912", "s_add_u32 s95, s95, 0x%x" % H[1]]
    for j in range(7):
        if j == 4: out.append("s_add_u32 s95, s95, 4096")
        if j == 6: out.append("s_mov_b32 exec_hi, 0xffff")
        out.append("buffer_store_dwordx4 %s, v%d, %s, s95 offen offset:%d sc1" % (v(vz, 4), vL, srd(WS), (j & 3)*1024))
    return out

def touch_next(k):
    def setup():
        k("s_and_b32 s97, s70, 3")
        k("s_lshl_b32 s97, s97, 1")
        k("s_add_u32 s97, s97, s72")
        k("s_lshl_b32 s97, s97, 2")
        k("s_add_u32 s97, s97, s3")
        k("s_mul_i32 s97, s97, 8640")
        k("s_mul_i32 s96, s73, %d" % LW2)
        k("s_add_u32 s96, s96, s97")
        k("s_add_u32 s96, s96, 0x%x" % W2P[1])
        k("v_lshlrev_b32 v11, 6, v0")
    def one(j):
        if j: k("s_add_u32 s96, s96, %d" % (4096 if j == 1 else 448))
        k("buffer_load_dword v%d, v11, %s, s96 offen" % (208+j, srd(WS)))
    return [setup] + [lambda j=j: one(j) for j in range(3)]

def touch_w2(k, layer, va):
    def one(j):
        if j == 0:
            k("s_and_b32 s60, s70, 3")
            k("s_lshl_b32 s60, s60, 1")
            k("s_add_u32 s60, s60, s72")
            k("s_lshl_b32 s60, s60, 2")
            k("s_add_u32 s60, s60, s3")
            k("s_mul_i32 s60, s60, 8640")
            k("s_mul_i32 s61, s73, %d" % LW2)
            k("s_add_u32 s60, s60, s61")
            k("s_add_u32 s60, s60, 0x%x" % W2P[layer])
            k("v_lshlrev_b32 v%d, 6, v0" % va)
        else: k("s_add_u32 s60, s60, %d" % (4096 if j == 1 else 448))
        k("buffer_load_dword a%d, v%d, %s, s60 offen" % (252+j, va, srd(WS)))
    return [lambda j=j: one(j) for j in range(3)]

def w2_stage(k):
    out = []
    for idx in (11, 12, 13):
        b, n = step_base(idx)
        for dt in range(5):
            def one(idx=idx, dt=dt, b=b, n=n):
                if idx == 11 and dt == 0:
                    k("s_mul_i32 s91, s3, 15360"); k("s_add_u32 s91, s91, %d" % S_OFF)
                j = (idx-11)*5 + dt
                if j % 4 == 0:
                    k("s_add_u32 m0, s91, %d" % (j*1024))
                    k("s_add_u32 s89, s%d, %d" % (sWB[b], n*5120 + dt*1024))
                k("buffer_load_dwordx4 v%d, %s, s89 offen offset:%d lds" % (vL, srd(WS), (j % 4)*1024), tag="w2s")
            out.append(one)
    return out

def h_loads(k, idx):
    if P["exp"] & 2: return []
    b, n = step_base(idx)
    out = []
    for lam in range(4):
        def one(lam=lam):
            if lam == 0: k("s_add_u32 s90, s%d, %d" % (sHB[b], n*4096))
            k("buffer_load_dwordx4 %s, v%d, %s, s90 offen sc1" % (v(HR+16*(idx % NS)+4*lam, 4), vHL+lam, srd(WS)), tag="h%d" % idx)
        out.append(one)
    return out

def x_load(k, n):
    s, tt = n >> 1, n & 1
    if n and n % 4 == 0: k("s_add_u32 s74, s74, 4096")
    k("buffer_load_dwordx4 %s, v%d, %s, s74 offen offset:%d sc1" % (v(XBR+4*n, 4), vX, srd(WS), (s & 1)*2048 + tt*256), tag="x%d" % n)

def signal(k, stage, tag):
    def f():
        if stage == 0: k.stamp("sigA_pre")
        k.wait(vm=tag)
        k("buffer_atomic_add v%d, v%d, %s, s%d offen offset:%d sc1" % (vONE, vSIG, srd(WS), sCNT, stage*256))
        k.stamp("sig%d" % stage)
    return f

def poll_issue(k, stage, vp):
    return lambda: k("buffer_load_dword v%d, off, %s, s%d offset:%d sc1" % (vp, srd(WS), sCNTP, stage*256))

def poll_check(k, vp, soff, off, want):
    ok, again = k.label("ok"), k.label("again")
    k("v_readfirstlane_b32 s88, v%d" % vp)
    k("s_mov_b32 s%d, 0" % sSPIN)
    k("s_cmp_ge_u32 s88, %d" % want)
    k("s_cbranch_scc1 " + ok)
    st = k.fork()
    k(again + ":")
    k("buffer_load_dword v%d, off, %s, s%d offset:%d sc1" % (vp, srd(WS), soff, off))
    k("s_add_u32 s%d, s%d, 1" % (sSPIN, sSPIN))
    k("s_waitcnt vmcnt(0)")
    if P["slp"]: k("s_sleep %d" % P["slp"])
    k("v_readfirstlane_b32 s88, v%d" % vp)
    k("s_cmp_ge_u32 s%d, %d" % (sSPIN, SPIN_LIMIT))
    k("s_cbranch_scc1 " + ok)
    k("s_cmp_ge_u32 s88, %d" % want)
    k("s_cbranch_scc0 " + again)
    k.restore(st)
    k(ok + ":")
    k.stamp_val("#spin%d" % (off // 256), sSPIN)

def relu_ops(flip):
    return ("v_mul_f32 v%d, -v%d, |v%d|", "v_pk_max_u16 v%d, v%d, s79") if flip else ("v_mul_f32 v%d, v%d, |v%d|", "v_pk_max_i16 v%d, v%d, 0")

def pair_epilogue(p, tag, flip):
    out = []; mul, mx = relu_ops(flip)
    for tt in range(2):
        b = ACCP + 16*p + 8*tt
        for r in range(8): out.append(mul % (b+r, b+r, b+r))
        for r in range(4): out.append("v_cvt_pk_bf16_f32 v%d, v%d, v%d" % (b+r, b+2*r, b+2*r+1))
        for r in range(4): out.append(mx % (b+r, b+r))
        out.append(("buffer_store_dwordx4 %s, v%d, %s, s%d offen offset:%d sc1" % (v(b, 4), vL, srd(WS), sHS, tt*1024), tag))
    if P["exp"] & 4: out = [x for x in out if not isinstance(x, tuple)]
    if P["exp"] & 16: out = [x for x in out if isinstance(x, tuple)]
    return out

def short_epilogue(tag, flip):
    out = []; mul, mx = relu_ops(flip)
    for tt in range(2):
        b = ACCS + 4*tt
        for r in range(4): out.append(mul % (b+r, b+r, b+r))
        for r in range(2): out.append("v_cvt_pk_bf16_f32 v%d, v%d, v%d" % (b+r, b+2*r, b+2*r+1))
        for r in range(2): out.append(mx % (b+r, b+r))
        out.append(("buffer_store_dwordx2 %s, v%d, %s, s%d offen offset:%d sc1" % (v(b, 2), vH3, srd(WS), sHS3, tt*1024), tag))
    return out

def stats_ops():
    c = f2u(1.0/D)
    out = []
    both = lambda f: [f(GR+4*tt, SB+4*tt, TMP+4*tt, tt) for tt in range(2)]
    out += both(lambda G, S_, T, tt: "ds_bpermute_b32 v%d, v%d, v%d" % (T, vBS, ACCS+4*tt))
    for r in range(1, 4):
        out += both(lambda G, S_, T, tt: "v_cndmask_b32 v%d, v%d, v%d, s[%d:%d]" % (G, G, G+r, 90+2*r, 91+2*r))
    out += both(lambda G, S_, T, tt: "ds_bpermute_b32 v%d, v%d, v%d" % (G+1, vBQ, G))
    for f in (
        lambda G, S_, T, tt: "v_mov_b32 v%d, 0" % (S_+3),
        lambda G, S_, T, tt: "v_mul_f32 v%d, 0x%x, v%d" % (T, f2u(-1.0/D), T),
        lambda G, S_, T, tt: "v_cvt_pk_bf16_f32 v%d, v%d, v%d" % (S_, T, T),
        lambda G, S_, T, tt: "v_lshlrev_b32 v%d, 16, v%d" % (T+1, S_),
        lambda G, S_, T, tt: "v_sub_f32 v%d, v%d, v%d" % (T+1, T, T+1),
        lambda G, S_, T, tt: "v_mul_f32 v%d, 0x%x, v%d" % (G, c, G+1),
        lambda G, S_, T, tt: "v_fma_f32 v%d, -v%d, v%d, v%d" % (G, T, T, G),
        lambda G, S_, T, tt: "v_max_f32 v%d, 0, v%d" % (G, G),
        lambda G, S_, T, tt: "v_add_f32 v%d, 0x%x, v%d" % (G, f2u(1e-5), G),
        lambda G, S_, T, tt: "v_sqrt_f32 v%d, v%d" % (T+2, G),
        lambda G, S_, T, tt: "v_rcp_f32 v%d, v%d" % (G, G),
        lambda G, S_, T, tt: "v_cvt_pk_bf16_f32 v%d, v%d, v%d" % (S_+1, T+1, T+2),
        lambda G, S_, T, tt: "v_and_b32 v%d, 0xffff0000, v%d" % (T+3, S_+1),
        lambda G, S_, T, tt: "v_sub_f32 v%d, v%d, v%d" % (T+3, T+2, T+3),
        lambda G, S_, T, tt: "v_cvt_pk_bf16_f32 v%d, v%d, 0" % (S_+2, T+3),
        lambda G, S_, T, tt: "ds_write_b32 v%d, v%d offset:%d" % (vRW, G, tt*64)):
        out += both(f)
    return out

def extract_setup(k):
    return ["s_lshr_b32 s78, s73, 1", "s_mov_b32 s79, 0x05040100", "s_bitcmp0_b32 s73, 0", "s_cselect_b32 s79, s79, 0x07060302",
            "v_and_b32 v24, 15, v0", "v_mul_u32_u24 v24, 160, v24", "v_lshrrev_b32 v25, 4, v0", "v_lshl_add_u32 v24, v25, 2, v24",
            "s_and_b32 s88, s3, 1", "s_mul_i32 s88, s88, 5120", "s_add_u32 s88, s88, %d" % L_RES,
            "s_lshr_b32 s91, s3, 1", "s_cmp_eq_u32 s91, s72", "s_cselect_b32 s88, s88, 0x30000",
            "v_add_u32 v24, s88, v24", "v_add_u32 v25, 2560, v24"]

def extract_block(k, u, tt):
    def f():
        k("s_set_gpr_idx_on s78, gpr_idx(SRC0,SRC1)")
        for e in range(2):
            x = XBR + 16*(u+e) + 4*tt
            k("v_perm_b32 v%d, v%d, v%d, s79" % (26+2*tt+e, x+8, x))
        k("s_set_gpr_idx_off")
        k("ds_write2_b32 v%d, v%d, v%d offset0:%d offset1:%d" % (24+tt, 26+2*tt, 27+2*tt, 4*u, 4*u+4))
    return f

def put(k, x):
    if callable(x): x()
    elif isinstance(x, tuple): k(x[0], tag=x[1])
    else: k(x)

def g1(k, layer, w2_idx, late_image):
    k.comment("first GEMM")
    flip = layer and P["flip"]; xs = P["xs"] >> layer & 1
    LA = P["la"]
    groups = [[(6, s), (0, s), (1, s)] for s in range(20)]
    G2_ = len(groups)
    nx = P["nx"]
    half = lambda p, a_, b_: [[(t, s) for s in (2*u, 2*u+1) for t in (2*p, 2*p+1)] for u in range(a_, b_)]
    groups += half(1, 0, nx) + [[("x", 0), ("x", 1), ("x", 6)]] + half(1, nx, 10)
    G3_ = len(groups)
    groups += [[("x", 2), ("x", 3)]] + half(2, 0, 10) + [[("x", 4), ("x", 5)]]
    frags = [(g, f) for g, fs in enumerate(groups) for f in fs]
    slot = lambda n: a(RING + 4*(n % NRING), 4)
    def read(n):
        g, (t, s) = frags[n]
        if t == "x": txt = "v%d offset:%d" % (vL, EX_OFF + ((s+1) % 7)*1024)
        elif t == 6: txt = "v%d offset:%d" % (vL, S_OFF + s*1024)
        else: txt = "v%d offset:%d" % ((vA0, vA1, vA2)[t >> 1], (t & 1)*20480 + s*1024)
        return ("ds_read_b128 %s, %s" % (slot(n), txt), "g%d" % g)
    def acc(t, tt): return v(ACCS+4*tt, 4) if t == 6 else v(ACCP+16*(t >> 1)+8*tt+4*(t & 1), 4)
    mm = []
    for n, (g, (t, s)) in enumerate(frags):
        for tt in range(2):
            if t == "x": mm.append((g, n, "v_mfma_f32_16x16x32_bf16 %s, %s, %s, %s" % (acc(s, tt), slot(n), v(SB+4*tt, 4), acc(s, tt))))
            else: mm.append((g, n, "v_mfma_f32_16x16x32_bf16 %s, %s, %s, %s" % (acc(t, tt), slot(n), v(XBR+8*s+4*tt, 4), acc(t, tt) if s else "0")))
        if g < G2_ and t == 1:
            for tt in range(2):
                x = v(XBR+8*s+4*tt, 4)
                mm.append((g, None, "v_mfma_f32_16x16x32_bf16 %s, %s, %s, %s" % (v(GR+4*tt, 4), x, x, v(GR+4*tt, 4) if s else "0")))
    first = {}
    for i, (g, n, _) in enumerate(mm): first.setdefault(g, i)
    M2, M3, END = first[G2_], first[G3_], len(mm)
    MX = first[G2_ + nx]
    fill = {i: [] for i in range(END)}
    def spread(ops, i0, num, den=1):
        for j, op in enumerate(ops): fill[min(i0 + j*den//num, END-1)].append(op)
        return i0 + len(ops)*den//num + 1
    for n in range(LA, 40):
        fill[8*((n-LA) >> 1) + 1 + 4*(n & 1)].append(lambda n=n: x_load(k, n))
    if layer == 1:
        spread(extract_setup(k), 2, 1, 1)
        for j in range(5):
            for tt in range(2): fill[32*j + 32 + (3*tt + 2 if j < 4 else tt)].append(extract_block(k, 2*j, tt))
    st = stats_ops()
    spread(st, M2 + 3, len(st), MX - M2 - 5)
    nex = spread((["s_mov_b32 s79, 0x80008000"] if flip else []) + pair_epilogue(0, "hA", flip) + short_epilogue("hA", flip), MX + 8, P["epi"], 2)
    spread(["s_add_u32 s76, s76, 4096"] + pair_epilogue(1, "hB", flip), M3 + 9, P["epi"], 2)
    w2l = [l for idx in w2_idx for l in w2_loads(k, idx)]
    if P["exp"] & 1: w2l = []
    gap = P["gap"]
    i = 8*((40-LA) >> 1) + 4
    for l in w2l:
        fill[min(i, END-1)].append(l); i += P["wgap"]
    i = max(i, M2 + 2)
    for l in ([] if P["exp"] & 1 else w2_stage(k)):
        fill[min(i, END-1)].append(l); i += gap
    hl = [l for idx in range(6) for l in h_loads(k, idx)]
    nin = 0
    i = max(i, M3 + P["h0"])
    for j, l in enumerate(hl):
        i = max(i, M3 + 4 + 8*((j >> 2) + 1))
        if i >= END: break
        fill[i].append(l); nin += 1; i += P["hgap"]
    k("s_mov_b32 s52, s74")
    for n in range(LA): x_load(k, n)
    for s_ in range(1, 20):
        fill[8*s_ - (8 if xs else 1)].append(lambda s_=s_: k.wait(vm="x%d" % (2*s_+1)))
        if xs: spread(x_check(s_), 8*s_ - 7, 1, 1)
    k.wait(vm="x1")
    k("s_barrier")
    nread = 0
    while nread < NRING - 3: put(k, read(nread)); nread += 1
    last_use = {n: i for i, (g, n, _) in enumerate(mm) if n is not None}
    for i, (g, n, txt) in enumerate(mm):
        if i == 0: k.stamp("g1_start")
        if i == 8: k.stamp("g1_x0")
        if i == M2: k.stamp("g1_p1")
        if i == M3: k.stamp("g1_p2")
        if i == first[g]:
            if g == 0 and xs:
                for l in x_check(0): k(l)
                k("s_nop 1")
            if g < G2_ and xs: x_branch(k, g, min(19, g - 1 + LA//2) if g else LA//2 - 1)
            k.wait(lg="g%d" % g)
            if g == G2_: k("s_barrier")
        k(txt)
        if (i & 1) == 0 and nread < len(frags) and (nread < NRING or last_use[nread - NRING] <= i):
            put(k, read(nread)); nread += 1
        for x in fill[i]: put(k, x)
    assert nread == len(frags)
    k("s_lshl_b32 s88, s71, 12")
    k("s_add_u32 s76, s77, s88")
    k("s_add_u32 s76, s76, %d" % (32*4096))
    for x in pair_epilogue(2, "hC", flip): put(k, x)
    first_step = max(0, min(len(hl), 4*P["hpre"]) - nin)
    for x in hl[nin:nin+first_step]: put(k, x)
    return hl[nin+first_step:]

def check_ops(idx, vt, flip):
    b = HR + 16*(idx % NS)
    op3, op2 = ("v_min3_u32", "v_min_u32") if flip else ("v_or3_b32", "v_or_b32")
    out = ["%s v%d, v%d, v%d, v%d" % (op3, vt, b, b+1, b+2)]
    for r in range(3, 15, 2): out.append("%s v%d, v%d, v%d, v%d" % (op3, vt, vt, b+r, b+r+1))
    out.append("%s v%d, v%d, v%d" % (op2, vt, vt, b+15))
    if not flip: out.append("v_cmp_gt_i32 vcc, 0, v%d" % vt)
    elif idx == 5: out.append("v_cmp_gt_u32 vcc, s78, v%d" % vt)
    else: out.append("v_cmp_le_i32 vcc, 0, v%d" % vt)
    return out

def check_branch(k, idx, vt, flip):
    if P["exp"] & 6: return
    retry, back = k.label("retry"), k.label("back")
    k("s_cbranch_vccnz " + retry)
    k(back + ":")
    def tail():
        b_, n = step_base(idx)
        loop = k.label("loop")
        k.vmq = []; k.lgq = []; k.hist = []
        k(retry + ":")
        k("s_mov_b32 s%d, 0" % sSPIN)
        k("s_add_u32 s88, s%d, %d" % (sHB[b_], n*4096))
        k(loop + ":")
        for lam in range(4):
            k("buffer_load_dwordx4 %s, v%d, %s, s88 offen sc1" % (v(HR+16*(idx % NS)+4*lam, 4), vHL+lam, srd(WS)))
        k("s_add_u32 s%d, s%d, 1" % (sSPIN, sSPIN))
        if k.stamps_on: k("s_add_u32 s101, s101, 1")
        k("s_waitcnt vmcnt(0)")
        for l in check_ops(idx, vt, flip): k(l)
        k("s_cmp_ge_u32 s%d, %d" % (sSPIN, SPIN_LIMIT))
        k("s_cbranch_scc1 " + back)
        k("s_nop 2")
        k("s_cbranch_vccnz " + loop)
        k("s_branch " + back)
    k.tails.append(tail)

def m80_dma(k):
    def one(j):
        if j == 0:
            k("v_add_u32 v6, s69, v%d" % vL)
            tab_addr(k, 6, 6, TAB["M80"])
            k("s_mov_b32 s96, 4096"); k("s_mov_b32 s97, 0")
        k("s_add_u32 m0, s69, %d" % (L_M80 + j*4096))
        if j: k("v_lshl_add_u64 v[6:7], v[6:7], 0, s[96:97]")
        k("global_load_lds_dwordx4 v[6:7], off", tag="m80")
    return [lambda j=j: one(j) for j in range(4)]

def g2(k, layer, pending, tail_idx=()):
    k.comment("second GEMM")
    k.stamp("g1_end")
    flip = layer and P["flip"]
    if flip:
        k("s_cmp_lt_u32 s3, 2"); k("s_cselect_b32 s78, 0x80000000, 0")
    real = k
    setup = []
    def k(text, tag=None): setup.append((text, tag) if tag else text)
    vE = 248
    k("v_lshrrev_b32 v%d, 4, v0" % vE)
    def b2_dma():
        real("s_mul_i32 s74, s73, 320")
        real("s_add_u32 s74, s74, 0x%x" % (B2P + layer*2560))
        real("s_add_u32 m0, s69, %d" % L_B2)
        real("s_mov_b64 exec, 0xfffff")
        real("buffer_load_dwordx4 v%d, %s, s74 offen lds" % (vL, srd(WS)), tag="b2")
        real("s_mov_b64 exec, -1")
    setup.append(b2_dma)
    k("s_add_u32 s74, s69, %d" % L_B2)
    k("v_mul_u32_u24 v%d, 80, v%d" % (vE+1, vE))
    k("v_add_u32 v%d, s74, v%d" % (vE+1, vE+1))
    k("v_and_b32 v%d, 15, v0" % (vE+2))
    k("s_lshl_b32 s92, s70, 3")
    k("s_lshl_b32 s74, s72, 2")
    k("s_add_u32 s92, s92, s74")
    k("s_add_u32 s92, s92, s3")
    pre_ops = []
    if layer == 0:
        k("v_lshlrev_b32 v%d, 4, v%d" % (vE+3, vE+2))
        k("v_lshl_add_u32 v%d, v%d, 12, v%d" % (vE+4, vE, vE+3))
        k("v_lshrrev_b32 v%d, 5, v0" % (vE+5))
        k("v_lshl_add_u32 v%d, v%d, 12, v%d" % (vE+5, vE+5, vE+3))
        k("v_bfe_u32 v%d, v0, 4, 1" % (vE+3))
        k("v_lshl_add_u32 v%d, v%d, 3, v%d" % (vE+5, vE+3, vE+5))
        k("s_lshr_b32 s74, s92, 1")
        k("s_mul_i32 s93, s74, 40960")
        k("s_and_b32 s74, s92, 1")
        k("s_lshl_b32 s74, s74, 8")
        k("s_add_u32 s93, s93, s74")
        k("s_lshl_b32 s74, s73, 9")
        k("s_add_u32 s93, s93, s74")
        k("s_add_u32 s74, s93, 0x%x" % XG[1])
        k("buffer_load_dwordx4 %s, v%d, %s, s74 offen sc1" % (v(RT, 4), vE+4, srd(WS)))
        k("s_add_u32 s74, s93, 0x%x" % (XG[1] + 16384))
        k("buffer_load_dwordx4 %s, v%d, %s, s74 offen sc1" % (v(RT+4, 4), vE+4, srd(WS)))
        k("s_add_u32 s74, s93, 0x%x" % (XG[1] + 32768))
        k("buffer_load_dwordx2 %s, v%d, %s, s74 offen sc1" % (v(RT+8, 2), vE+5, srd(WS)))
        src = [(RT + (e >> 1), e & 1) for e in range(20)]
    else:
        k("v_mul_u32_u24 v%d, 160, v%d" % (vE+3, vE+2))
        k("s_mul_i32 s74, s3, 2560")
        k("s_add_u32 s74, s74, %d" % L_RES)
        k("v_add_u32 v%d, s74, v%d" % (vE+3, vE+3))
        k("v_lshl_add_u32 v%d, v%d, 4, v%d" % (vE+4, vE, vE+3))
        k("v_lshrrev_b32 v%d, 5, v0" % (vE+5))
        k("v_lshl_add_u32 v%d, v%d, 4, v%d" % (vE+5, vE+5, vE+3))
        k("ds_read_b128 %s, v%d" % (v(RT, 4), vE+4))
        k("ds_read_b128 %s, v%d offset:64" % (v(RT+4, 4), vE+4))
        k("ds_read_b128 %s, v%d offset:128" % (v(RT+8, 4), vE+5))
        k("v_and_b32 v%d, 16, v0" % (vE+4))
        k("v_xor_b32 v%d, 16, v%d" % (vE+4, vE+4))
        src = [(RT + 4*(e >> 3) + (e & 3), (e >> 2) & 1) for e in range(16)]
        for r in range(4):
            pre_ops.append("v_lshlrev_b32 v%d, v%d, v%d" % (RT+8+r, vE+4, RT+8+r))
            src.append((RT + 8 + r, 1))
    k("s_lshl_b32 s74, s72, 2")
    k("s_add_u32 s74, s74, s3")
    k("s_lshl_b32 s74, s74, 6")
    k("s_add_u32 s74, s74, %d" % L_RS2)
    k("v_lshl_add_u32 v%d, v%d, 2, s74" % (vE+3, vE+2))
    k("ds_read_b32 v%d, v%d" % (vE+6, vE+3))
    for e, (r, hi) in enumerate(src):
        pre_ops.append("v_and_b32 v%d, 0xffff0000, v%d" % (vE+7, r) if hi else "v_lshlrev_b32 v%d, 16, v%d" % (vE+7, r))
        pre_ops.append("v_add_f32 v%d, v%d, v%d" % (RB+e, RB+e, vE+7))
    red = []
    for lam in range(3):
        red.append(2+lam)
        k("s_add_u32 s74, s3, %d" % (lam+1))
        k("s_and_b32 s74, s74, 3")
        k("s_mul_i32 s74, s74, 15360")
        k("s_add_u32 s74, s74, %d" % (L_RED + lam*5120))
        k("v_add_u32 v%d, s74, v%d" % (2+lam, vL))
    k("s_mul_i32 s74, s3, 15360")
    k("s_add_u32 s74, s74, %d" % L_RED)
    k("v_add_u32 v5, s74, v%d" % vL)
    if layer == 0:
        u_addr(k, 212, 213)
        k("s_lshl_b32 s74, s73, 7")
        k("s_add_u32 s74, s74, s92")
        k("s_lshl_b32 s74, s74, 6")
        k("s_add_u32 s94, s74, 0x%x" % U[1])
        k("v_lshlrev_b32 v214, 3, v%d" % (vE+2))
        k("v_lshl_add_u32 v214, v%d, 2, v214" % vE)
        k("s_lshl_b32 s95, s92, 7")
        k("s_add_u32 s95, s95, 0x%x" % ST[1])
    else:
        for j, src_ in enumerate(("s%d" % pOUT, "s%d" % (pOUT+1), "0x%x" % XB, "0x00020000")): k("s_mov_b32 s%d, %s" % (AUX+j, src_))
        k("v_and_b32 v212, 7, v0")
        k("v_bfe_u32 v213, v0, 3, 1")
        k("v_lshl_add_u32 v212, v212, 1, v213")
        k("v_mul_u32_u24 v212, 40960, v212")
        k("v_lshl_add_u32 v213, v%d, 4, v212" % vE)
        k("v_lshl_add_u32 v212, v%d, 3, v212" % vE)
        k("s_lshr_b32 s74, s92, 5")
        k("s_lshl_b32 s74, s74, 9")
        k("s_and_b32 s94, s92, 31")
        k("s_add_u32 s74, s74, s94")
        k("s_mul_i32 s74, s74, 1280")
        k("s_mul_i32 s94, s73, 160")
        k("s_add_u32 s94, s94, s74")
    k = real
    def mf(idx, lam, dt):
        d = v(G2ACC+20*lam+4*dt, 4)
        return "v_mfma_f32_16x16x32_bf16 %s, %s, %s, %s" % (d, w2_reg(idx, dt), v(HR+16*(idx % NS)+4*lam, 4), d if idx else "0")
    J = P["J"]; NK = 14 - J
    F_ = {(idx, n): [] for idx in range(NK) for n in range(20)}
    pb, pc = P["hB"], P["hC"]
    def checked(idx):
        def ready():
            assert k.tagcount.pop("h%d" % idx) == 4
            k.wait(vm="h%d" % idx)
        if P["exp"] & 6: return [] if P["exp"] & 2 else [ready]
        return [ready] + check_ops(idx, 10, flip)
    for idx in range(1, NK+1):
        for j, l in enumerate(checked(idx)): F_[idx-1, 7+j].append(l)
    slots = [(idx, n) for idx in range(NK) for n in P["slots"]]
    used = set()
    def place(ops, after):
        for op in ops:
            sl = next(x for x in slots if x[0] > after and x not in used)
            used.add(sl); F_[sl].append(op)
    place(pending, -1)
    for idx in range(6, 14): place(h_loads(k, idx), max(pb if idx < 10 else pc, idx - NS))
    if layer == 0: place(m80_dma(k), 0)
    F_[0, 19].append(lambda: (k("s_waitcnt lgkmcnt(0)"), k("s_barrier")))
    quiet = (0, 2, 3, 4, 6, 17, 18, 19)
    spots = [(idx, n) for idx in range(1, 6) for n in quiet]
    for j, l in enumerate(setup): F_[spots[j*len(spots)//len(setup)]].append(l)
    F_[1, 0].append(lambda: (k.wait(vm="w2s"), k("s_mul_i32 s88, s3, 15360"), k("s_add_u32 s88, s88, %d" % S_OFF), k("v_add_u32 v11, s88, v%d" % vL)))
    for j in range(15): F_[2 + j // 5, 2 + j % 5].append("ds_read_b128 %s, v11 offset:%d" % (w2_reg(11 + j // 5, j % 5), j*1024))
    F_[6, 2].append(lambda: k.wait(vm="b2"))
    for dt in range(5): F_[6, 3+dt].append("ds_read_b128 %s, v%d offset:%d" % (v(RB+4*dt, 4), vE+1, dt*16))
    spots = [(idx, n) for idx in range(7, NK) for n in (0, 2, 3, 4, 5, 6, 17, 18, 19)]
    if P["exp"] & 8: pre_ops = []
    for j, l in enumerate(pre_ops): F_[spots[j*len(spots)//len(pre_ops)]].append(l)
    if layer == 0:
        F_[NK-1, 19].append(lambda: (k.wait(vm="m80"), k("s_barrier"), k("v_add_u32 v6, %d, v%d" % (L_M80, vL))))
    else:
        F_[NK-1, 19].append("s_barrier")
    for l in checked(0): put(k, l)
    k("s_nop 1")
    for idx in range(NK):
        check_branch(k, idx, 10, flip)
        if idx in (0, 5): k.stamp("g2_step%d" % idx)
        for n, m in enumerate([mf(idx, lam, dt) for lam in range(4) for dt in range(5)]):
            k(m)
            for x in F_[idx, n]: put(k, x)
    late = []
    if layer == 0:
        late += ["ds_read_b128 %s, v6 offset:%d" % (a(M80R+4*j, 4), j*1024) for j in range(13)]
        if P["touch2"]: k.bg += touch_next(k)
    f = []
    for lam in range(4):
        m = [mf(idx, lam, dt) for idx in range(NK, 14) for dt in range(5)]
        if lam == 0:
            for j in range(J):
                check_branch(k, NK+j, 10, flip)
                rest = interleave(k, m[5*j:5*j+5], checked(NK+1+j) if j < J-1 else [], 3)
                assert not rest
        else:
            for n, x in enumerate(m):
                k(x)
                if n >= 3 and f: put(k, f.pop(0))
                elif late: put(k, late.pop(0))
                k.drip()
            for x in f: put(k, x)
        f = [("ds_write_b128 v%d, %s offset:%d" % (red[lam], v(G2ACC+20*lam+4*dt, 4), dt*1024), "red") for dt in range(5)] if lam < 3 else []
    for x in late: put(k, x)
    k.wait(lg="red")
    k.stamp("g2_mfma")
    k("s_barrier")
    for sl in range(3):
        for dt in range(5):
            k("ds_read_b128 %s, v5 offset:%d" % (v(HR+20*sl+4*dt, 4), sl*5120 + dt*1024))
    O = G2ACC + 60
    if tail_idx:
        pre_w(k, layer+1)
        k.bg += [l for idx in tail_idx for l in w2_loads(k, idx)]
    for sl in range(3):
        for e in range(0, 20, 2):
            k("v_pk_add_f32 %s, %s, %s" % (v(O+e, 2), v(O+e, 2), v(HR+20*sl+e, 2))); k.drip()
    for e in range(0, 20, 2):
        k("v_pk_fma_f32 %s, %s, %s, %s op_sel_hi:[1,0,1]%s" % (v(O+e, 2), v(O+e, 2), v(vE+6, 2), v(RB+e, 2), " neg_lo:[1,0,0] neg_hi:[1,0,0]" if flip else "")); k.drip()
    XP = 36
    for e in range(10):
        k("v_cvt_pk_bf16_f32 v%d, v%d, v%d" % (XP+e, O+2*e, O+2*e+1))
    if layer == 0:
        m = dft80_mfmas(XP, XP+4, XP+8, M80R, 16, "a")
        st = ["s_add_u32 s88, s93, 0x%x" % XG[2],
              ("buffer_store_dwordx4 %s, v%d, %s, s88 offen sc1" % (v(XP, 4), vE+4, srd(WS)), "fin"),
              "s_add_u32 s88, s93, 0x%x" % (XG[2] + 16384),
              ("buffer_store_dwordx4 %s, v%d, %s, s88 offen sc1" % (v(XP+4, 4), vE+4, srd(WS)), "fin"),
              "s_add_u32 s88, s93, 0x%x" % (XG[2] + 32768),
              ("buffer_store_dwordx2 %s, v%d, %s, s88 offen sc1" % (v(XP+8, 2), vE+5, srd(WS)), "fin"),
              ]
        k("v_pk_add_f32 v[46:47], %s, %s" % (v(O, 2), v(O+2, 2)))
        k("v_pk_mul_f32 v[48:49], %s, %s" % (v(O, 2), v(O, 2)))
        k("v_pk_fma_f32 v[48:49], %s, %s, v[48:49]" % (v(O+2, 2), v(O+2, 2)))
        for e in range(4, 20, 2):
            k("v_pk_add_f32 v[46:47], v[46:47], %s" % v(O+e, 2))
            k("v_pk_fma_f32 v[48:49], %s, %s, v[48:49]" % (v(O+e, 2), v(O+e, 2)))
        k("v_add_f32 v46, v46, v47"); k("v_add_f32 v47, v48, v49")
        for x in m[:5]: k(x)
        xsum(k, [46], 48, [4]); k(m[5]); xsum(k, [47], 49, [4]); k(m[6])
        xsum(k, [46], 48, [5]); k(m[7]); xsum(k, [47], 49, [5]); k(m[8])
        k("v_cmp_gt_u32 vcc, 16, v0")
        k(m[9])
        k("v_cndmask_b32 v46, v47, v46, vcc")
        k("s_mov_b32 exec_hi, 0")
        if not P["exp"] & 32: k("buffer_atomic_add_f32 v46, v214, %s, s95 offen" % srd(WS), tag="fin")
        k("s_mov_b64 exec, -1")
        rest = interleave(k, m[10:], st, 2)
        for x in rest: put(k, x)
        u_stores(k, 16, 212, 94, 88, tag="fin")
        if k.bg: print("second GEMM: %d background items left for after the stores" % len(k.bg))
        while k.bg: k.bg.pop(0)()
    else:
        pol = ("", " sc1", " nt", " sc0 sc1")[P["outpol"]]
        k("buffer_store_dwordx4 %s, v213, %s, s94 offen%s" % (v(XP, 4), srd(AUX), pol))
        k("buffer_store_dwordx4 %s, v213, %s, s94 offen offset:64%s" % (v(XP+4, 4), srd(AUX), pol))
        k("buffer_store_dwordx2 %s, v212, %s, s94 offen offset:128%s" % (v(XP+8, 2), srd(AUX), pol))
```

```python
from common import *
PP = dict(m80=1, selft=0, norm0=1)

def px(k, sT):
    k.comment("input row tile: granule copy, row sums, 80-point partial transform")
    k.srd(AUX, pX, XB)
    norm = PP["norm0"]
    k("s_lshr_b32 s40, s%d, 5" % sT)
    k("s_lshl_b32 s40, s40, 9")
    k("s_and_b32 s41, s%d, 31" % sT)
    k("s_add_u32 s40, s40, s41")
    k("s_lshl_b32 s41, s3, 2")
    k("s_mul_i32 s42, s3, 5120")
    k("s_mov_b32 s43, 1280")
    for n in range(5):
        k("v_add_u32 v1, %d, v0" % (64*n))
        k("v_mul_u32_u24 v2, 205, v1")
        k("v_lshrrev_b32 v2, 14, v2")
        k("v_mul_u32_u24 v3, 80, v2")
        k("v_sub_u32 v1, v1, v3")
        k("v_add_u32 v2, s41, v2")
        k("v_and_b32 v3, 7, v2")
        k("v_lshrrev_b32 v2, 3, v2")
        k("v_lshl_add_u32 v2, v3, 1, v2")
        k("v_lshl_add_u32 v2, v2, 5, s40")
        k("v_lshlrev_b32 v1, 4, v1")
        k("v_mad_u32_u24 v1, v2, s43, v1")
        k("s_add_u32 m0, s42, %d" % (n*1024))
        k("buffer_load_dwordx4 v1, %s, 0 offen lds" % srd(AUX), tag="raw")
    if PP["selft"]:
        here = k.label("here")
        k("s_getpc_b64 s[50:51]")
        k(here + ":")
        k("v_lshlrev_b32 v8, 6, v0"); k("v_mov_b32 v9, 0")
        k("v_lshl_add_u64 v[8:9], v[8:9], 0, s[50:51]")
        k("global_load_dword v19, v[8:9], off offset:256")
    M = 80
    k("v_lshlrev_b32 v4, 4, v0")
    mode = PP["m80"]
    if mode == 0:
        for l in m80_loads(k, M, 6, 4): k(l)
    else:
        k("s_lshl_b32 s50, s3, 10")
        k("v_add_u32 v6, s50, v4")
        tab_addr(k, 6, 6, TAB["M80"])
        k("s_mov_b32 s52, 4096"); k("s_mov_b32 s53, 0")
        for j in range(4):
            k("s_add_u32 m0, s50, %d" % (49152 + j*4096))
            if j: k("v_lshl_add_u64 v[6:7], v[6:7], 0, s[52:53]")
            k("global_load_lds_dwordx4 v[6:7], off", tag="m80")
    m80r = ["ds_read_b128 %s, v4 offset:%d" % (v(M+4*j, 4), 49152 + j*1024) for j in range(13)]
    k("v_and_b32 v1, 3, v0")
    k("v_mul_u32_u24 v10, 1280, v1")
    k("v_add_u32 v10, s42, v10")
    k("v_lshrrev_b32 v2, 4, v0")
    k("v_lshl_add_u32 v10, v2, 3, v10")
    k("v_bfe_u32 v3, v0, 2, 2")
    k("v_mul_u32_u24 v11, 160, v3")
    k("v_add_u32 v10, v10, v11")
    k("v_lshl_add_u32 v12, v2, 2, v1")
    k("v_add_u32 v13, s41, v3")
    k("v_mul_u32_u24 v14, 288, v12")
    k("v_lshl_add_u32 v14, v13, 4, v14")
    k("v_add_u32 v14, 20480, v14")
    k("v_lshlrev_b32 v15, 9, v12")
    k("v_lshl_add_u32 v15, v13, 4, v15")
    k("s_lshr_b32 s44, s%d, 1" % sT)
    k("s_mul_i32 s44, s44, 40960")
    k("s_and_b32 s45, s%d, 1" % sT)
    k("s_lshl_b32 s45, s45, 8")
    k("s_add_u32 s44, s44, s45")
    k("s_add_u32 s44, s44, 0x%x" % XG[0])
    k("v_and_b32 v1, 15, v0")
    k("v_lshlrev_b32 v1, 4, v1")
    k("s_mul_i32 s47, s3, 576")
    k("s_add_u32 s47, s47, 20480")
    k("v_mul_u32_u24 v5, 2304, v2")
    k("v_add3_u32 v5, v5, v1, s47")
    k("v_lshrrev_b32 v3, 5, v0")
    k("v_mul_u32_u24 v6, 2304, v3")
    k("v_bfe_u32 v3, v0, 4, 1")
    k("v_lshl_add_u32 v6, v3, 3, v6")
    k("v_add3_u32 v6, v6, v1, s47")
    u_addr(k, 7, 8)
    k("s_lshl_b32 s48, s3, 8")
    k("s_add_u32 s48, s48, s%d" % sT)
    k("s_lshl_b32 s48, s48, 6")
    k("s_add_u32 s48, s48, 0x%x" % U[0])
    G = 20
    k.stamp("p_issued")
    k.wait(vm="raw")
    k.stamp("p_raw")
    for n in range(5):
        for h in range(2):
            k("ds_read_b64_tr_b16 %s, v10 offset:%d" % (v(G+4*n+2*h, 2), n*32 + h*640))
    k("v_mov_b32 v16, 0"); k("v_mov_b32 v17, 0")
    k("s_mov_b32 s46, 0x%x" % ONES)
    for n in range(5):
        k("ds_write_b128 v14, %s offset:%d" % (v(G+4*n, 4), n*16*288), tag="g")
        if n: k("s_add_u32 s44, s44, 8192")
        k("buffer_store_dwordx4 %s, v15, %s, s44 offen sc1" % (v(G+4*n, 4), srd(WS)))
    def sums():
        for n in range(20):
            k("v_dot2c_f32_bf16 v16, s46, v%d" % (G+n))
            k("v_dot2c_f32_bf16 v17, v%d, v%d" % (G+n, G+n))
        xsum(k, [16, 17], 60, [0, 1, 4, 5])
    if norm:
        sums()
        k("v_mul_f32 v16, 0x%x, v16" % f2u(1.0/D))
        k("v_mul_f32 v17, 0x%x, v17" % f2u(1.0/D))
        k("v_fma_f32 v17, -v16, v16, v17")
        k("v_max_f32 v17, 0, v17")
        k("v_add_f32 v17, 0x%x, v17" % f2u(1e-5))
        k("v_rsq_f32 v17, v17")
        k("v_lshlrev_b32 v13, 2, v13")
        k("ds_write_b32 v13, v17 offset:45056", tag="g")
    k.wait(vm="m80" if mode else None, lg="g")
    k("s_barrier")
    A = 40
    for dd in range(2):
        k("ds_read_b128 %s, v5 offset:%d" % (v(A+10*dd, 4), dd*288))
        k("ds_read_b128 %s, v5 offset:%d" % (v(A+10*dd+4, 4), dd*288 + 9216))
        k("ds_read_b64 %s, v6 offset:%d" % (v(A+10*dd+8, 2), dd*288 + 18432))
    if mode:
        for j in (0, 2, 4, 6, 8, 1, 3, 5, 7, 9, 10, 11, 12): k(m80r[j])
    if norm:
        k("v_lshlrev_b32 v2, 4, v2")
        k("ds_read_b128 v[60:63], v2 offset:45056")
    for dd in range(2):
        for m in dft80_mfmas(A+10*dd, A+10*dd+4, A+10*dd+8, M, 140+20*dd): k(m)
    for dd in range(2):
        if dd: k("s_add_u32 s48, s48, 8192")
        if norm:
            for e in range(0, 20, 2):
                k("v_pk_mul_f32 %s, %s, %s" % (v(140+20*dd+e, 2), v(140+20*dd+e, 2), v(60 + (e & 2), 2)))
        u_stores(k, 140+20*dd, 7, 48, 49)
    if not norm:
        sums()
        k("v_lshlrev_b32 v13, 3, v13")
        k("s_lshl_b32 s45, s%d, 7" % sT)
        k("s_add_u32 s45, s45, 0x%x" % ST[0])
        k("s_mov_b64 exec, 0x1111")
        k("buffer_store_dwordx2 v[16:17], v13, %s, s45 offen sc1" % srd(WS))
        k("s_mov_b64 exec, -1")

def pw1(k, sT):
    k.comment("w1 block -> fragment image")
    k.srd(AUX, pW1, D*F*2)
    k.srd(AUX2, pB1, F*2)
    k("s_lshr_b32 s39, s%d, 1" % sT)
    k("s_and_b32 s47, s%d, 1" % sT)
    k("v_lshrrev_b32 v1, 3, v0")
    k("s_mov_b32 s40, %d" % (80*3456))
    k("v_mul_lo_u32 v1, v1, s40")
    k("v_and_b32 v3, 7, v0")
    k("v_lshl_add_u32 v1, v3, 4, v1")
    k("s_lshl_b32 s40, s47, 2")
    k("s_add_u32 s48, s40, s3")
    k("s_mul_i32 s40, s48, 34560")
    k("s_lshl_b32 s41, s39, 7")
    k("s_add_u32 s40, s40, s41")
    k("s_mul_i32 s42, s3, 10240")
    for n in range(10):
        k("s_add_u32 m0, s42, %d" % (n*1024))
        if n: k("s_add_u32 s40, s40, 3456")
        else: k("s_nop 0")
        k("buffer_load_dwordx4 v1, %s, s40 offen lds" % srd(AUX), tag="raw")
    k("v_lshrrev_b32 v2, 4, v0")
    k("v_and_b32 v3, 3, v0")
    k("v_bfe_u32 v4, v0, 2, 2")
    k("s_lshr_b32 s43, s3, 1")
    k("s_and_b32 s44, s3, 1")
    k("s_lshl_b32 s45, s43, 5")
    k("s_lshl_b32 s46, s44, 2")
    k("s_add_u32 s45, s45, s46")
    k("s_mov_b32 s46, 8")
    k("v_lshlrev_b32 v11, 4, v0")
    k("s_sub_u32 s52, s39, 16")
    k("s_lshl_b32 s52, s52, 1")
    k("s_add_u32 s52, s52, s43")
    k("s_lshl_b32 s53, s43, 1")
    k("s_cmp_lt_u32 s39, 16")
    k("s_cselect_b32 s52, s39, s52")
    k("s_cselect_b32 s53, s53, 4")
    k("s_add_u32 s53, s53, s44")
    k("s_mul_i32 s52, s52, %d" % LW1)
    k("s_add_u32 s52, s52, 0x%x" % W1P)
    k("s_mul_i32 s54, s53, 20480")
    k("s_add_u32 s54, s54, s52")
    k("s_add_u32 s54, s54, %d" % PT_OFF[0])
    k("s_lshl_b32 s55, s53, 10")
    k("s_add_u32 s55, s55, s52")
    k("s_add_u32 s55, s55, %d" % (EX_OFF + 1024))
    ready = k.label("ready")
    k.settle()
    k("s_cmp_lt_u32 s39, 24")
    k("s_cbranch_scc1 " + ready)
    k("s_lshl_b32 s45, s3, 4")
    k("s_mov_b32 s46, 4")
    k("s_sub_u32 s53, s39, 24")
    k("s_lshl_b32 s53, s53, 2")
    k("s_add_u32 s53, s53, s3")
    k("s_lshl_b32 s53, s53, 2")
    k("v_add_u32 v5, s53, v4")
    k("v_mul_u32_u24 v6, 43, v5")
    k("v_lshrrev_b32 v6, 7, v6")
    k("v_mul_u32_u24 v7, 3, v6")
    k("v_sub_u32 v5, v5, v7")
    k("s_mov_b32 s53, %d" % LW1)
    k("v_mul_lo_u32 v6, v6, s53")
    k("v_lshl_add_u32 v5, v5, 2, v3")
    k("v_lshl_add_u32 v5, v2, 4, v5")
    k("v_lshl_add_u32 v11, v5, 4, v6")
    k("s_mov_b32 s54, 0x%x" % (W1P + S_OFF))
    k("s_mov_b32 s55, 0x%x" % (W1P + EX_OFF))
    k.settle()
    k(ready + ":")
    k("s_mul_i32 s53, s47, 10240")
    k("s_add_u32 s54, s54, s53")
    k("v_mul_lo_u32 v5, v3, s46")
    k("v_add_lshl_u32 v5, v5, s45, 1")
    k("v_lshl_add_u32 v10, v2, 10, v5")
    k("v_lshl_add_u32 v10, v4, 7, v10")
    k("v_mul_lo_u32 v5, v4, s46")
    k("v_add_u32 v5, s45, v5")
    k("v_add_lshl_u32 v5, v5, v3, 1")
    k("buffer_load_ushort v18, v5, %s, s41 offen" % srd(AUX2))
    k("s_lshl_b32 s53, s3, 2")
    k("v_add_u32 v5, s53, v2")
    k("v_lshlrev_b32 v6, 10, v5")
    k("v_lshl_add_u32 v6, v4, 8, v6")
    k("v_lshl_add_u32 v6, v3, 4, v6")
    k("v_cmp_gt_u32 vcc, 10, v5")
    k("v_mov_b32 v7, 0x%x" % OOB)
    k("v_cndmask_b32 v6, v7, v6, vcc")
    k("s_mul_i32 s53, s47, 10240")
    k("s_add_u32 s53, s53, s52")
    k("s_add_u32 s53, s53, %d" % (S_OFF + 192))
    k("s_cmp_lt_u32 s39, 16")
    k("s_cselect_b32 s53, s53, 0x%x" % OOB)
    for r in range(4): k("v_mov_b32 v%d, 0x%x" % (64+r, ONES))
    k("buffer_store_dwordx4 v[64:67], v6, %s, s53 offen sc1" % srd(WS))
    k("v_mov_b32 v16, 0"); k("v_mov_b32 v17, 0")
    k("s_mov_b32 s53, 0x%x" % ONES)
    G = 20
    k.stamp("p_issued")
    k.wait(vm="raw")
    k("s_barrier")
    k.stamp("p_raw")
    for n in range(10):
        for h in range(2):
            k("ds_read_b64_tr_b16 %s, v10 offset:%d" % (v(G+4*n+2*h, 2), n*4096 + h*512))
    for n in range(10):
        if n and n % 4 == 0: k("s_add_u32 s54, s54, 4096")
        k("buffer_store_dwordx4 %s, v11, %s, s54 offen offset:%d sc1" % (v(G+4*n, 4), srd(WS), (n & 3)*1024))
        for jj in range(4):
            k("v_dot2c_f32_bf16 v%d, s53, v%d" % (16 + (jj & 1), G+4*n+jj))
    k("v_add_f32 v60, v16, v17")
    xsum(k, [60], 62, [4, 5])
    k("s_cmp_eq_u32 s47, 0")
    k("s_cselect_b32 s52, -1, 0")
    k("v_cvt_pk_bf16_f32 v61, v60, v60")
    k("v_lshlrev_b32 v62, 16, v61")
    k("v_sub_f32 v62, v60, v62")
    k("v_and_b32 v70, s52, v18")
    k("v_lshlrev_b32 v63, 16, v70")
    k("v_cvt_pk_bf16_f32 v68, v60, v62")
    k("v_cvt_pk_bf16_f32 v69, v60, v63")
    k("v_mov_b32 v71, 0")
    k("v_cmp_gt_u32 vcc, 32, v0")
    for r in range(3):
        k("v_cndmask_b32 v%d, 0, v%d, vcc" % (68+r, 68+r))
    k("s_xor_b32 s52, s52, 0xffff0000")
    k("s_mov_b32 exec_lo, s52")
    k("s_mov_b32 exec_hi, s52")
    k("buffer_store_dwordx4 v[68:71], v11, %s, s55 offen sc1" % srd(WS))
    k("s_mov_b64 exec, -1")

def pw2(k, sT):
    k.comment("w2 row block -> fragment images for both layers")
    k.srd(AUX, pW2, D*F*2)
    k("v_lshlrev_b32 v1, 4, v0")
    k("s_mul_i32 s40, s%d, 40960" % sT)
    k("s_mul_i32 s42, s3, 10240")
    k("s_add_u32 s40, s40, s42")
    for n in range(10):
        k("s_add_u32 m0, s42, %d" % (n*1024))
        if n: k("s_add_u32 s40, s40, 1024")
        else: k("s_nop 0")
        k("buffer_load_dwordx4 v1, %s, s40 offen lds" % srd(AUX), tag="raw")
    k("v_lshrrev_b32 v2, 4, v0")
    k("v_and_b32 v3, 3, v0")
    k("v_bfe_u32 v4, v0, 2, 2")
    k("v_mul_u32_u24 v10, 1280, v4")
    k("v_mul_u32_u24 v5, 160, v2")
    k("v_add3_u32 v10, v10, v5, s42")
    k("v_lshl_add_u32 v10, v3, 3, v10")
    k("s_mov_b32 s43, %d" % LW2)
    k("s_lshl_b32 s44, s3, 8")
    k("v_bfe_u32 v6, v0, 3, 1")
    k("v_and_b32 v7, 7, v0")
    k("v_mul_lo_u32 v7, v7, s43")
    k("v_add_u32 v7, s44, v7")
    k("v_lshl_add_u32 v7, v2, 4, v7")
    k("v_lshl_add_u32 v11, v6, 6, v7")
    k("v_lshl_add_u32 v12, v6, 7, v7")
    k("v_add_u32 v12, 4096, v12")
    k("v_mul_lo_u32 v8, v2, s43")
    k("v_add_u32 v8, s44, v8")
    k("v_bfe_u32 v5, v0, 2, 1")
    k("v_lshl_add_u32 v68, v5, 10, v8")
    k("v_lshl_add_u32 v68, v6, 6, v68")
    k("v_lshl_add_u32 v68, v3, 4, v68")
    k("v_and_b32 v5, 15, v0")
    k("v_lshl_add_u32 v69, v5, 4, v8")
    k("v_add_u32 v69, 4096, v69")
    k("s_mul_i32 s45, s%d, 5120" % sT)
    k("s_add_u32 s46, s45, 0x%x" % W2P[0])
    k("s_add_u32 s47, s45, 0x%x" % W2P[1])
    k("s_add_u32 s48, s45, 0x%x" % (W2P[1] + 4*LW2))
    G = 24
    k.stamp("p_issued")
    k.wait(vm="raw")
    k.stamp("p_raw")
    for jh in range(2):
        for n in range(5):
            for h in range(2):
                k("ds_read_b64_tr_b16 %s, v10 offset:%d" % (v(G+20*jh+4*n+2*h, 2), h*5120 + jh*640 + n*32))
    for jh in range(2):
        for n in range(5):
            r = v(G+20*jh+4*n, 4)
            if n < 4: k("buffer_store_dwordx4 %s, v11, %s, s46 offen offset:%d sc1" % (r, srd(WS), (2*(n >> 1) + jh)*1024 + (n & 1)*128))
            else: k("buffer_store_dwordx4 %s, v12, %s, s46 offen offset:%d sc1" % (r, srd(WS), jh*64))

def pw2_second(k):
    G = 24
    for jh in range(2):
        for n in range(5):
            r = v(G+20*jh+4*n, 4)
            if n < 4: k("buffer_store_dwordx4 %s, v68, %s, s%d offen offset:%d sc1" % (r, srd(WS), 47+jh, (n >> 1)*2048 + (n & 1)*128))
            else: k("buffer_store_dwordx4 %s, v69, %s, s%d offen sc1" % (r, srd(WS), 47+jh))

def pw2_half(k, sT, sJ):
    k.comment("half of a w2 row block -> fragment images for both layers")
    k.srd(AUX, pW2, D*F*2)
    k("s_mul_i32 s40, s%d, 40960" % sT)
    k("s_mul_i32 s42, s3, 10240")
    k("s_add_u32 s40, s40, s42")
    k("s_mul_i32 s41, s%d, 640" % sJ)
    k("s_add_u32 s40, s40, s41")
    k("s_mul_i32 s42, s3, 5120")
    for n in range(5):
        k("v_add_u32 v1, %d, v0" % (64*n))
        k("v_mul_u32_u24 v2, 205, v1")
        k("v_lshrrev_b32 v2, 13, v2")
        k("v_mul_u32_u24 v3, 640, v2")
        k("v_lshl_add_u32 v1, v1, 4, v3")
        k("s_add_u32 m0, s42, %d" % (n*1024))
        k("buffer_load_dwordx4 v1, %s, s40 offen lds" % srd(AUX), tag="raw")
    k("v_lshrrev_b32 v2, 4, v0")
    k("v_and_b32 v3, 3, v0")
    k("v_bfe_u32 v4, v0, 2, 2")
    k("v_mul_u32_u24 v10, 640, v4")
    k("v_mul_u32_u24 v5, 160, v2")
    k("v_add3_u32 v10, v10, v5, s42")
    k("v_lshl_add_u32 v10, v3, 3, v10")
    k("s_mov_b32 s43, %d" % LW2)
    k("s_lshl_b32 s44, s3, 8")
    k("v_bfe_u32 v6, v0, 3, 1")
    k("v_and_b32 v7, 7, v0")
    k("v_mul_lo_u32 v7, v7, s43")
    k("v_add_u32 v7, s44, v7")
    k("v_lshl_add_u32 v7, v2, 4, v7")
    k("v_lshl_add_u32 v11, v6, 6, v7")
    k("v_lshl_add_u32 v12, v6, 7, v7")
    k("v_add_u32 v12, 4096, v12")
    k("v_mul_lo_u32 v8, v2, s43")
    k("v_add_u32 v8, s44, v8")
    k("v_bfe_u32 v5, v0, 2, 1")
    k("v_lshl_add_u32 v68, v5, 10, v8")
    k("v_lshl_add_u32 v68, v6, 6, v68")
    k("v_lshl_add_u32 v68, v3, 4, v68")
    k("v_and_b32 v5, 15, v0")
    k("v_lshl_add_u32 v69, v5, 4, v8")
    k("v_add_u32 v69, 4096, v69")
    k("s_mul_i32 s45, s%d, 5120" % sT)
    k("s_add_u32 s46, s45, 0x%x" % W2P[0])
    k("s_mul_i32 s47, s%d, %d" % (sJ, 4*LW2))
    k("s_add_u32 s47, s47, s45")
    k("s_add_u32 s47, s47, 0x%x" % W2P[1])
    k("s_lshl_b32 s48, s%d, 6" % sJ)
    k("s_add_u32 s48, s48, s46")
    k("s_lshl_b32 s43, s%d, 10" % sJ)
    k("s_add_u32 s46, s46, s43")
    G = 24
    k.wait(vm="raw")
    for n in range(5):
        for h in range(2):
            k("ds_read_b64_tr_b16 %s, v10 offset:%d" % (v(G+4*n+2*h, 2), h*2560 + n*32))
    for n in range(5):
        r = v(G+4*n, 4)
        if n < 4: k("buffer_store_dwordx4 %s, v11, %s, s46 offen offset:%d sc1" % (r, srd(WS), (n >> 1)*2048 + (n & 1)*128))
        else: k("buffer_store_dwordx4 %s, v12, %s, s48 offen sc1" % (r, srd(WS)))
    for n in range(5):
        r = v(G+4*n, 4)
        if n < 4: k("buffer_store_dwordx4 %s, v68, %s, s47 offen offset:%d sc1" % (r, srd(WS), (n >> 1)*2048 + (n & 1)*128))
        else: k("buffer_store_dwordx4 %s, v69, %s, s47 offen sc1" % (r, srd(WS)))

def pmisc(k, sT):
    k.comment("clear counters and accumulators, lay out b2")
    k("s_lshl_b32 s40, s3, 6")
    k("v_add_u32 v1, s40, v0")
    k("v_lshlrev_b32 v2, 4, v1")
    for r in range(4): k("v_mov_b32 v%d, 0" % (4+r))
    k("s_lshl_b32 s41, s%d, 12" % sT)
    k("s_add_u32 s42, s41, 0x%x" % CNT)
    k("buffer_store_dwordx4 v[4:7], v2, %s, s42 offen sc1" % srd(WS))
    k("s_add_u32 s42, s41, 0x%x" % ST[1])
    k("s_cmp_lt_u32 s%d, 4" % sT)
    k("s_cselect_b32 s42, s42, 0x%x" % OOB)
    k("buffer_store_dwordx4 v[4:7], v2, %s, s42 offen sc1" % srd(WS))
    done = k.label("done")
    k("s_cmp_eq_u32 s%d, 4" % sT)
    k.settle()
    k("s_cbranch_scc0 " + done)
    k.srd(AUX, pB2, D*2)
    k("s_mov_b32 s43, 0x%x" % B2P)
    for n in range(5):
        k("v_add_u32 v8, %d, v1" % (256*n))
        k("v_mul_u32_u24 v9, 3277, v8")
        k("v_lshrrev_b32 v9, 16, v9")
        k("v_mul_u32_u24 v10, 20, v9")
        k("v_sub_u32 v10, v8, v10")
        k("v_and_b32 v11, 3, v9")
        k("v_bfe_u32 v12, v9, 2, 3")
        k("v_lshrrev_b32 v13, 3, v10")
        k("v_lshl_add_u32 v13, v13, 2, v11")
        k("v_and_b32 v14, 7, v10")
        k("v_lshrrev_b32 v15, 1, v11")
        k("v_add_u32 v15, 8, v15")
        k("v_and_b32 v16, 1, v11")
        k("v_and_b32 v17, 3, v10")
        k("v_lshl_add_u32 v16, v16, 2, v17")
        k("v_cmp_gt_u32 vcc, 16, v10")
        k("v_cndmask_b32 v13, v15, v13, vcc")
        k("v_cndmask_b32 v14, v16, v14, vcc")
        k("v_cmp_gt_u32 vcc, 32, v9")
        k("v_cndmask_b32 v15, v14, v12, vcc")
        k("v_cndmask_b32 v16, v12, v14, vcc")
        k("v_mul_u32_u24 v16, 80, v16")
        k("v_lshl_add_u32 v16, v13, 3, v16")
        k("v_add_lshl_u32 v16, v16, v15, 1")
        k("buffer_load_ushort v18, v16, %s, 0 offen" % srd(AUX))
        k("v_lshlrev_b32 v8, 2, v8")
        k("v_lshlrev_b32 v18, 16, v18")
        k("buffer_store_dword v18, v8, %s, s43 offen sc1" % srd(WS))
    k.settle()
    k(done + ":")

def p0_dispatch(k, lend):
    l1, l2, l3 = k.label("w1"), k.label("w2"), k.label("misc")
    k.settle()
    st = k.fork()
    k("s_cmp_lt_u32 s2, 128"); k("s_cbranch_scc0 " + l1)
    px(k, 2); k.settle(); k("s_branch " + lend)
    k.restore(st); k(l1 + ":")
    k("s_sub_u32 s38, s2, 128"); k("s_cmp_lt_u32 s38, 54"); k("s_cbranch_scc0 " + l2)
    pw1(k, 38); k.settle(); k("s_branch " + lend)
    k.restore(st); k(l2 + ":")
    k("s_sub_u32 s38, s2, 182"); k("s_cmp_lt_u32 s38, 54"); k("s_cbranch_scc0 " + l3)
    pw2(k, 38); k.settle(); k("s_branch " + lend)
    k.restore(st); k(l3 + ":")
    k("s_sub_u32 s38, s2, 236")
    pmisc(k, 38); k.settle()

def pmisc2(k, sT):
    k.comment("clear counters and accumulators, lay out b2")
    done, j1 = k.label("done"), k.label("j1")
    k("s_lshl_b32 s40, s3, 6")
    k("v_add_u32 v1, s40, v0")
    k.settle()
    st = k.fork()
    k("s_cmp_eq_u32 s%d, 0" % sT)
    k("s_cbranch_scc0 " + j1)
    for r in range(4): k("v_mov_b32 v%d, 0" % (4+r))
    k("v_lshlrev_b32 v2, 8, v1")
    k("s_mov_b32 s42, 0x%x" % CNT)
    k("buffer_store_dword v4, v2, %s, s42 offen sc1" % srd(WS))
    k("v_lshlrev_b32 v2, 4, v1")
    for n in range(4):
        k("s_mov_b32 s42, 0x%x" % (ST[1] + n*4096))
        k("buffer_store_dwordx4 v[4:7], v2, %s, s42 offen sc1" % srd(WS))
    k.srd(AUX2, pDBG, 256)
    k("v_mov_b32 v8, 1")
    k("s_waitcnt vmcnt(0)")
    k("s_barrier")
    k("s_mov_b64 exec, 1")
    k("buffer_store_dword v8, off, %s, 0 sc1" % srd(AUX2))
    k("s_mov_b64 exec, -1")
    k.settle()
    k("s_branch " + done)
    k.restore(st)
    k(j1 + ":")
    k("s_cmp_eq_u32 s%d, 3" % sT)
    k("s_cbranch_scc0 " + done)
    k.srd(AUX, pB2, D*2)
    k("s_mov_b32 s43, 0x%x" % B2P)
    for n in range(5):
        k("v_add_u32 v8, %d, v1" % (256*n))
        k("v_mul_u32_u24 v9, 3277, v8")
        k("v_lshrrev_b32 v9, 16, v9")
        k("v_mul_u32_u24 v10, 20, v9")
        k("v_sub_u32 v10, v8, v10")
        k("v_and_b32 v11, 3, v9")
        k("v_bfe_u32 v12, v9, 2, 3")
        k("v_lshrrev_b32 v13, 3, v10")
        k("v_lshl_add_u32 v13, v13, 2, v11")
        k("v_and_b32 v14, 7, v10")
        k("v_lshrrev_b32 v15, 1, v11")
        k("v_add_u32 v15, 8, v15")
        k("v_and_b32 v16, 1, v11")
        k("v_and_b32 v17, 3, v10")
        k("v_lshl_add_u32 v16, v16, 2, v17")
        k("v_cmp_gt_u32 vcc, 16, v10")
        k("v_cndmask_b32 v13, v15, v13, vcc")
        k("v_cndmask_b32 v14, v16, v14, vcc")
        k("v_cmp_gt_u32 vcc, 32, v9")
        k("v_cndmask_b32 v15, v14, v12, vcc")
        k("v_cndmask_b32 v16, v12, v14, vcc")
        k("v_mul_u32_u24 v16, 80, v16")
        k("v_lshl_add_u32 v16, v13, 3, v16")
        k("v_add_lshl_u32 v16, v16, v15, 1")
        k("buffer_load_ushort v%d, v16, %s, 0 offen" % (70+n, srd(AUX)))
    k("v_lshlrev_b32 v8, 2, v1")
    for n in range(5):
        k("v_lshlrev_b32 v%d, 16, v%d" % (70+n, 70+n))
        if n == 4: k("s_add_u32 s43, s43, 4096")
        k("buffer_store_dword v%d, v8, %s, s43 offen offset:%d sc1" % (70+n, srd(WS), (n & 3)*1024))
    k.settle()
    k(done + ":")
```

```python
import sys, json
from common import *
import p0, cph, ff

HEADER = open(__file__.replace("fused.py", "header.txt")).read()
SPIN = 100000
P = ff.P
P.update(p0.PP); p0.PP = P
P.update(amp=0, ampA=0, ampB=0, pwait=0, ntail=0, touch3=0, hint=1, prelate=0, pzidle=0, gate0=0, ndr=0, nwin=3, nmid=4, nmid0=2, bgap=20, prefirst=1, touch=1, twait=2, ithr=24)

def flag_load(k, bar, vt):
    k("v_and_b32 v%d, 15, v0" % vt)
    k("v_lshlrev_b32 v%d, 8, v%d" % (vt, vt))
    k("v_add_u32 v%d, 0x%x, v%d" % (vt, GBAR + bar*8192 + 4096, vt))
    k("buffer_load_dword v%d, v%d, %s, 0 offen sc1" % (vt+1, vt, srd(WS)))

def flag_wait(k, vt):
    again, ok = k.label("again"), k.label("ok")
    k("s_mov_b32 s91, 0")
    k("v_cmp_eq_u32 vcc, 0, v%d" % (vt+1))
    k("s_cmp_eq_u64 vcc, 0")
    k("s_cbranch_scc1 " + ok)
    st = k.fork()
    k(again + ":")
    k("buffer_load_dword v%d, v%d, %s, 0 offen sc1" % (vt+1, vt, srd(WS)))
    k("s_add_u32 s91, s91, 1")
    k("s_waitcnt vmcnt(0)")
    k("v_cmp_eq_u32 vcc, 0, v%d" % (vt+1))
    k("s_cmp_ge_u32 s91, %d" % SPIN)
    k("s_cbranch_scc1 " + ok)
    k("s_cmp_eq_u64 vcc, 0")
    k("s_cbranch_scc0 " + again)
    k.restore(st)
    k(ok + ":")

def poll(k, bar, vt=18):
    flag_load(k, bar, vt); flag_wait(k, vt)

def arrive(k, sline, swant, vt=16):
    done = k.label("notlast")
    k("s_lshl_b32 s88, s%d, 8" % sline)
    k("s_add_u32 s88, s88, 0x%x" % GBAR)
    k("v_mov_b32 v%d, 1" % vt)
    k("v_mov_b32 v%d, 1" % (vt+1))
    k("s_mov_b64 exec, 1")
    k("buffer_atomic_add v%d, off, %s, s88 sc0 sc1" % (vt, srd(WS)))
    k("v_readfirstlane_b32 s91, v%d" % vt)
    k("s_add_u32 s88, s88, 4096")
    k("s_add_u32 s91, s91, 1")
    k("s_cmp_eq_u32 s91, s%d" % swant)
    k("s_cbranch_scc0 " + done)
    st = k.fork()
    k("buffer_store_dword v%d, off, %s, s88 sc1" % (vt+1, srd(WS)))
    k.restore(st)
    k(done + ":")
    k("s_mov_b64 exec, -1")

def hint_issue(k, bar):
    k("s_and_b32 s55, s2, 15")
    k("s_add_u32 s55, s55, %d" % (32*bar))
    k("s_lshl_b32 s55, s55, 8")
    k("s_add_u32 s55, s55, 0x%x" % GBAR)
    k("s_cmp_eq_u32 s3, 0")
    k("s_cselect_b32 s55, s55, 0x%x" % OOB)
    k("s_cselect_b32 s56, 15, -1")
    k("v_mov_b32 v14, 1"); k("v_mov_b32 v15, 1")
    k("s_mov_b64 exec, 1")
    k("buffer_atomic_add v14, off, %s, s55 sc0 sc1" % srd(WS))
    k("s_mov_b64 exec, -1")

def hint_check(k):
    done = k.label("notlast")
    k("v_readfirstlane_b32 s57, v14")
    k("s_add_u32 s55, s55, 4096")
    k("s_cmp_eq_u32 s57, s56")
    k("s_cbranch_scc0 " + done)
    st = k.fork()
    k("s_mov_b64 exec, 1")
    k("buffer_store_dword v15, off, %s, s55 sc1" % srd(WS))
    k("s_mov_b64 exec, -1")
    k.restore(st)
    k(done + ":")

def arrive_on(k, bar, sidx, counts):
    base = min(counts); extra = sum(c > base for c in counts)
    assert counts == [base + (n < extra) for n in range(16)]
    k("s_and_b32 s89, s%d, 15" % sidx)
    k("s_cmp_lt_u32 s89, %d" % extra)
    k("s_cselect_b32 s90, %d, %d" % (base+1, base))
    k("s_add_u32 s89, s89, %d" % (32*bar))
    arrive(k, 89, 90)

def split_waves(k, wave0, others):
    lo, join = k.label("others"), k.label("join")
    k.settle(vm=False)
    st = k.fork()
    k("s_cmp_eq_u32 s3, 0")
    k("s_cbranch_scc0 " + lo)
    wave0(); k.settle()
    k("s_branch " + join)
    k.restore(st)
    k(lo + ":")
    others(); k.settle(vm=False)
    k(join + ":")
    k("s_barrier")
    k.vmq = []; k.lgq = []

def touch_code(k):
    skip, here = k.label("notouch"), k.label("here")
    k("s_sub_u32 s40, s5, 16")
    k("s_lshl_b32 s40, s40, 2")
    k("s_add_u32 s40, s40, s3")
    k("s_lshl_b32 s40, s40, 12")
    k("s_cmp_lt_u32 s40, dft_end-%s-4096" % k.name)
    k("s_cbranch_scc0 " + skip)
    k("s_sub_u32 s42, s6, dft_tables-%s" % k.name)
    k("s_subb_u32 s43, s7, 0")
    k("v_lshl_add_u32 v2, v0, 6, s40")
    k("v_mov_b32 v3, 0")
    k("v_lshl_add_u64 v[2:3], v[2:3], 0, s[42:43]")
    k("global_load_dword v255, v[2:3], off")
    k.vmq.pop()
    k(skip + ":")

B_IN, B_OUT, B_W, B_Z = (0, 2), (1, 3), 4, 5

def setup(k):
    l1, lw2, lmisc, join = k.label("w"), k.label("w2"), k.label("misc"), k.label("p0join")
    lspare, lhalf = k.label("spare"), k.label("half")
    k("v_mov_b32 v68, 0x%x" % OOB); k("v_mov_b32 v69, 0x%x" % OOB)
    k("s_mov_b32 s23, 0")
    k("s_mov_b32 s22, 0"); k("s_mov_b32 s38, 0")
    k.settle()
    st = k.fork()
    k("s_cmp_lt_u32 s2, 128"); k("s_cbranch_scc0 " + l1)
    p0.px(k, 2); k.settle(); k("s_branch " + join)
    k.restore(st); k(l1 + ":")
    k("s_mov_b32 s23, 2")
    if P["touch"]: touch_code(k)
    if P["twait"] == 2:
        nw = k.label("nowait")
        k("s_cmp_eq_u32 s2, 128"); k("s_cbranch_scc1 " + nw)
        k("s_waitcnt vmcnt(0)")
        k(nw + ":")
    k("s_cmp_eq_u32 s68, 0"); k("s_cbranch_scc0 " + lmisc)
    if P["twait"] == 1: k("s_waitcnt vmcnt(0)")
    k("s_sub_u32 s60, s5, 20"); k("s_mul_i32 s60, s60, 7"); k("s_add_u32 s60, s60, s4"); k("s_sub_u32 s60, s60, 1")
    k("s_sub_u32 s62, s2, 164")
    k("s_cmp_lt_u32 s2, 192"); k("s_cselect_b32 s60, s60, s62")
    k("s_cmp_lt_u32 s60, 54"); k("s_cbranch_scc0 " + lw2)
    k("s_mov_b32 s23, 1")
    k("s_mov_b32 s22, s60"); k("s_mov_b32 s38, s60")
    p0.pw1(k, 60); k.settle(); k("s_branch " + join)
    k.restore(st); k(lw2 + ":")
    k("s_mov_b32 s22, s60"); k("s_mov_b32 s38, s60")
    k("s_sub_u32 s60, s60, 54")
    k("s_mov_b32 s23, 1")
    k("s_cmp_lt_u32 s60, 36"); k("s_cbranch_scc0 " + lspare)
    p0.pw2(k, 60); k.settle(); k("s_branch " + join)
    k.restore(st); k(lspare + ":")
    k("s_sub_u32 s60, s60, 36"); k("s_mul_i32 s60, s60, 3")
    k("s_add_u32 s38, s60, 90")
    k("s_branch " + lhalf)
    k.restore(st); k(lmisc + ":")
    k("s_sub_u32 s39, s2, 128")
    k("s_mov_b32 s38, 126")
    k("s_cmp_eq_u32 s39, 3")
    k("s_cselect_b32 s23, 1, 2")
    p0.pmisc2(k, 39); k.settle()
    k("s_cmp_eq_u32 s39, 0"); k("s_cbranch_scc1 " + join)
    k("s_cmp_eq_u32 s39, 3"); k("s_cbranch_scc1 " + join)
    k("s_mov_b32 s23, 1")
    k("s_sub_u32 s60, s5, 20"); k("s_add_u32 s60, s60, 32")
    k("s_cmp_lt_u32 s2, 160"); k("s_cselect_b32 s60, s39, s60")
    k("s_add_u32 s38, s60, 90")
    k(lhalf + ":")
    k("s_and_b32 s61, s60, 1"); k("s_lshr_b32 s60, s60, 1"); k("s_add_u32 s60, s60, 36")
    p0.pw2_half(k, 60, 61); k.settle()
    k(join + ":")
    k.vmq = [("st", set(), False)]; k.lgq = []

def arrive_setup(k):
    other, skip = k.label("wjob"), k.label("nojob")
    init_check(k)
    st = k.fork()
    k("s_cmp_eq_u32 s23, 0")
    k("s_cbranch_scc0 " + other)
    arrive_on(k, 0, 2, [8]*16)
    k("s_branch " + skip)
    k.restore(st)
    k(other + ":")
    k("s_cmp_eq_u32 s23, 2")
    k("s_cbranch_scc1 " + skip)
    arrive_on(k, B_W, 38, CNT_W)
    k(skip + ":")

def by_wave(k, fns):
    join = k.label("join")
    k.settle(vm=False)
    st = k.fork()
    groups = {}
    for w, f in enumerate(fns): groups.setdefault(id(f), (f, []))[1].append(w)
    items = list(groups.values())
    for n, (f, ws) in enumerate(items):
        nxt = k.label("next")
        k.restore(st)
        last = n == len(items) - 1
        if not last:
            assert len(ws) == 1
            k("s_cmp_eq_u32 s3, %d" % ws[0]); k("s_cbranch_scc0 " + nxt)
        f(); k.settle(vm=False)
        if not last:
            k("s_branch " + join); k(nxt + ":")
    k(join + ":")
    k("s_barrier")
    k.vmq = []; k.lgq = []

CNT_W = [sum(1 for j in range(127) if j & 15 == n) for n in range(16)]
CNT_Z = [sum(1 for j in range(92) if j & 15 == n) for n in range(16)]
CNT_OUT = [sum(1 for j in range(164) if j & 15 == n) + 4 for n in range(16)]

def build():
    k = Kern(NAME + "_kernel", 256, 256, lds=LDS_BYTES, vgpr=256, agpr=256, sgpr=102)
    k.stamp_regs = list(range(70, 90))
    prologue(k)
    k.protected = {6, 7, 8, 9, 10, 11, 20, 21} | set(range(24, 38))
    k.stamp_regs = list(range(70, 90))
    k.stamp("start")
    cph.role_flag(k)
    setup(k)
    k.stamp("p_end")
    if k.only: k("s_mov_b32 s100, s70"); k.stamp_names = []
    k.flush_stamps(STAMP, 0)
    k.protected = {6, 7, 8, 9, 10, 11, 22, 23, 32, 33, 34, 35, 36, 37}
    k.stamp_regs = list(range(39, 47)) + [49] + list(range(24, 32)) + [20, 21, 100]
    ff.roles(k)
    cph.role_flag(k)
    if P["flip"]: H[1] = H[0]
    nothing = lambda: None
    k.bg_gap = P["bgap"]
    for layer in range(2):
        k.dbg_layer = layer
        bin_, bout = B_IN[layer], B_OUT[layer]
        idle, go = k.label("idle"), k.label("go")
        tail_idx = list(range(11 - P["ntail"], 11))
        xs = P["xs"] >> layer & 1
        byidle = xs and layer and P["pzidle"]
        dr_idx = list(range(P["ndr"])) if layer else []
        win_idx = list(range(len(dr_idx), len(dr_idx) + P["nwin"])) if layer else []
        n0 = len(dr_idx) + len(win_idx)
        mid_idx = list(range(n0, n0 + (P["nmid"] if layer else P["nmid0"]*P["gate0"])))
        g1_idx = [i for i in range(11) if i not in mid_idx + win_idx + dr_idx and (layer == 0 or i not in tail_idx)]
        w2dr = lambda: [l for idx in dr_idx for l in ff.w2_loads(k, idx)]
        w2mid = lambda: [l for idx in mid_idx for l in ff.w2_loads(k, idx)]
        w2win = lambda: [l for idx in win_idx for l in ff.w2_loads(k, idx)]
        add_own = lambda bar: arrive_on(k, bar, 2, [16]*16)
        add_out = lambda: add_own(bout)
        poll_out = lambda: poll(k, bout)
        poll_w = lambda: poll(k, B_W)
        if k.stamps_on and not (k.only and layer): k("s_mov_b32 s101, 0")
        ff.pre_s(k, layer)
        if layer == 0 or not tail_idx: ff.pre_w(k, layer)
        k.settle(vm=False)
        entry = k.fork()
        k("s_cmp_eq_u32 s68, 0")
        k("s_cbranch_scc1 " + idle)
        cph.pre(k)
        def pre2():
            cph.offsets(k, layer); cph.pre2(k)
            k("v_lshlrev_b32 v1, 4, v0")
        if not P["prelate"]: pre2()
        for l in w2dr(): l()
        k.wait(vm="tab")
        k.stamp("drained")
        k("s_barrier")
        def w0():
            if layer == 0: arrive_setup(k)
            else: add_own(bin_)
            if P["prelate"]: pre2()
            if xs and not byidle: cph.poison_out(k, 20)
            for l in w2win(): l()
            flag_load(k, bin_, 18)
            cph.tables(k)
            flag_wait(k, 18)
        def w123():
            if P["prelate"]: pre2()
            if xs and not byidle: cph.poison_out(k, 20)
            for l in w2win(): l()
            if layer:
                ff.w1_dma3(k, 0, 66, "w1")
                k("s_mov_b32 s89, 66"); ff.w1_block(k, 89)
            cph.tables(k)
            k.wait(vm="px")
        split_waves(k, w0, w123)
        k.stamp("c_go")
        def tail_blocks():
            k("s_add_u32 s89, s3, 63"); ff.w1_block(k, 89)
        tch = lambda va: ff.touch_w2(k, layer, va) if P["touch3"] >> layer & 1 else []
        gated = layer == 0 and P["gate0"]
        late = tch(12) + (w2mid() if layer else (ff.w1_dma(k, 0, 16, "w1") + [tail_blocks] + w2mid() if gated else []))
        cph.main(k, late, (lambda: flag_load(k, B_Z if layer else B_W, 14), lambda: flag_wait(k, 14), gated) if gated or byidle else None,
                 (lambda: hint_issue(k, bout), lambda: hint_check(k), P["hint"]) if xs else None, layer == 0 and P["norm0"])
        k.stamp("c_stored")
        ungated = layer == 0 and not gated
        if ungated: flag_load(k, B_W, 22)
        ff.pre_v(k)
        if not xs:
            k.wait(vm="cst"); k.stamp("c_drained"); k("s_barrier")
        def rest():
            if ungated: flag_wait(k, 22)
            ff.w1_dma3(k, 0 if ungated else 67, 147 if ungated else 148, "w1")
        def first():
            if not xs: add_out()
            if ungated: flag_wait(k, 22)
            poll_out()
        split_waves(k, first, rest)
        k("s_branch " + go)
        k.restore(entry)
        k(idle + ":")
        for l in w2dr(): l()
        k.wait(vm="st" if layer == 0 else "fin"); k("s_barrier")
        split_waves(k, (lambda: arrive_setup(k)) if layer == 0 else (lambda: add_own(bin_)), nothing)
        ff.pre_v(k)
        def second():
            sk = k.label("nosecond")
            k("s_sub_u32 s88, s22, 54"); k("s_cmp_lt_u32 s88, 36"); k("s_cbranch_scc0 " + sk)
            p0.pw2_second(k); k.settle()
            k(sk + ":")
        early = P["ndr"] or P["nwin"] or P["touch2"] or P["ntail"]
        if layer == 0 and early: second()
        if not (layer and P["flip"]):
            for l in ff.poison(k, H[layer], 32*HBLK): l()
            k.wait(vm="pz"); k("s_barrier")
        k.stamp("i_poison")
        if layer == 0:
            if early: split_waves(k, lambda: (add_out(), poll_w()), nothing)
            else: split_waves(k, lambda: (add_out(), poll_w(), second()), second)
            k.stamp("i_wready")
            for l in tch(21) + ff.w1_dma(k, 0, 37, "w1") + w2mid(): l()
        else:
            if byidle:
                for l in ff.poison(k, XG[3], XB): l()
                k.wait(vm="pz"); k("s_barrier")
            split_waves(k, lambda: (arrive_on(k, B_Z, 22, CNT_Z) if byidle else None, add_out(), poll(k, bin_)), lambda: (ff.w1_dma3(k, 66, 147, "w1"), ff.w1_dma3(k, 0, 66, "w1")))
            for l in tch(21) + w2win() + w2mid(): l()
        k.stamp("i_fetched")
        split_waves(k, poll_out, nothing)
        k(go + ":")
        k.stamp("g_go")
        pending = ff.g1(k, layer, g1_idx, True)
        ff.g2(k, layer, pending, tail_idx if layer == 0 else [])
        k.stamp("issued_end")
        if layer == 1 and k.stamps_on: k("s_waitcnt vmcnt(0)")
        k.stamp("end")
        k.stamp_val("#retry", 101)
        if k.only and layer == 1:
            k.stamp("last"); k.stamp_val("entry", 100); k.stamp_val("#lastretry", 101)
        k.flush_stamps(STAMP, 1 + layer)
        if k.stamps_on and layer == 0 and not k.only: k.vmq.append(("fin", set(), False)); k("s_nop 0")
    if k.dbg_mode:
        lab = k.label("nodbg")
        k("s_waitcnt vmcnt(0)")
        k.dbg_layer = 2; k.dbg_mode = ("end",); k.dbg_regs = k.dbg_regs[:len(k.dbg_list)] + [20]; k.stamp("end")
        k("s_or_b32 s98, s2, s3"); k("s_cmp_eq_u32 s98, 0"); k("s_cbranch_scc0 " + lab)
        A, B, mult = P["ampA"], P["ampB"], P["amp"]
        k("s_sub_u32 s90, s%d, s%d" % (k.dbg_regs[B], k.dbg_regs[A]))
        k("s_mul_i32 s90, s90, %d" % mult)
        k("s_min_u32 s90, s90, 50000")
        sp = k.label("amp")
        k(sp + ":")
        k("s_memrealtime s[98:99]"); k("s_waitcnt lgkmcnt(0)")
        k("s_sub_u32 s98, s98, s%d" % k.dbg_regs[len(k.dbg_list)-1])
        k("s_cmp_lt_u32 s98, s90"); k("s_cbranch_scc1 " + sp)
        k(lab + ":")
        print(k.dbg_list)
    finish(k)
    return k

def init_check(k):
    again, ok = k.label("again"), k.label("ok")
    k.srd(AUX2, pDBG, 256)
    k("s_mov_b32 s91, 0")
    k(again + ":")
    k("buffer_load_dword v16, off, %s, 0 sc1" % srd(AUX2))
    k("s_add_u32 s91, s91, 1")
    k("s_waitcnt vmcnt(0)")
    k("v_readfirstlane_b32 s88, v16")
    k("s_cmp_ge_u32 s91, %d" % SPIN)
    k("s_cbranch_scc1 " + ok)
    k("s_cmp_eq_u32 s88, 1")
    k("s_cbranch_scc0 " + again)
    k(ok + ":")

if __name__ == "__main__":
    out = sys.argv[1]
    for a_ in sys.argv[2:]:
        if a_ == "stamps": Kern.stamps_on = True
        elif a_.startswith("wsoff="): WSOFF[0] = int(a_[6:]) << 20
        elif a_ == "reuse": U[1] = U[0]; XG[2] = XG[0]; XG[3] = XG[1]
        elif a_ == "ends": Kern.stamps_on = True; Kern.only = ("entry", "last", "#lastretry")
        elif a_ == "dbg2": Kern.dbg_mode = ("entry", "start"); Kern.dbg_regs = [100, 101]
        elif a_ == "dbg": Kern.dbg_mode = ("start", "drained", "c_go", "c_drained", "g_go", "g1_end", "g2_mfma", "end")
        else:
            n, val = a_.split("="); assert n in P, n; P[n] = eval(val)
    k = build()
    open(out, "w").write(assemble(HEADER, [k], [k], TABTXT + "dft_end:\n"))
    print(k.count, "nops", k.nops)
    if Kern.stamps_on: json.dump(k.stamp_log, open(out + ".stamps.json", "w"))
```

```python
from common import *

sKP, sC, sRH, sCB = 70, 71, 72, 73
sXO, sW1O, sHS, sHS3 = 74, 75, 76, 77
sCNT, sCNTP = 78, 79
sHB = [80, 81, 82, 83]
sWB = [84, 85, 86, 87]
sT0, sT1, sT2 = 88, 89, 90
sSPIN = 91
vL, vA0, vA1, vA2, vX, vH3, vBQ, vSIG, vONE, vBS, vRW = 1, 2, 3, 4, 5, 6, 7, 8, 9, 10, 11
vHL = 12
SB, TMP = 16, 24
ACCP, ACCS, GR = 32, 80, 88
XBR = 96
RING, NRING = 220, 9
G2ACC, HR, RB, RT = 16, 96, 216, 236
SPIN_LIMIT = 100000
NS = 7
M80R = 40

P = dict(dbl=0, exp=0, flip=1, xs=2, outpol=0, J=3, touch2=1, slp=0, map42=1, la=14, nx=3, epi=3, gap=5, wgap=4, hgap=4, hpre=2, slots=(1, 5, 9, 13, 17), h0=32, hB=-1, hC=3, thr=60)

def roles(k):
    if P["map42"]:
        k("s_lshr_b32 s70, s4, 1")
        k("s_lshl_b32 s70, s70, 2")
        k("s_lshr_b32 s88, s5, 3")
        k("s_add_u32 s70, s70, s88")
        k("s_and_b32 s88, s4, 1")
        k("s_and_b32 s89, s5, 7")
        k("s_lshl_b32 s71, s88, 3")
        k("s_add_u32 s71, s71, s89")
        k("s_lshr_b32 s72, s89, 2")
        k("s_and_b32 s73, s89, 3")
        k("s_lshl_b32 s88, s88, 2")
        k("s_add_u32 s73, s73, s88")
    else:
        k("s_lshr_b32 s70, s5, 4")
        k("s_lshl_b32 s88, s4, 1")
        k("s_add_u32 s70, s70, s88")
        k("s_and_b32 s71, s5, 15")
        k("s_lshr_b32 s72, s71, 3")
        k("s_and_b32 s73, s71, 7")
    k("s_mul_i32 s75, s71, %d" % LW1)
    k("s_lshl_b32 s69, s3, 10")
    k("s_add_u32 s75, s75, s69")
    k("s_add_u32 s75, s75, 0x%x" % W1P)

def w1_dma3(k, lo, hi, tag, nw=3):
    k("s_add_u32 s89, s75, %d" % ((lo-4+nw)*1024))
    k("s_add_u32 s88, s69, %d" % ((lo-4+nw)*1024))
    for j in range((hi - lo)//nw):
        k("s_add_u32 m0, s88, %d" % (j*nw*1024))
        if j: k("s_add_u32 s89, s89, %d" % (nw*1024))
        else: k("s_nop 0")
        k("buffer_load_dwordx4 v%d, %s, s89 offen lds" % (vL, srd(WS)), tag=tag)
        if j >= P["thr"]: k("s_waitcnt vmcnt(%d)" % P["thr"])

def w1_dma(k, lo, hi, tag):
    out = []
    for j in range(lo, hi):
        def one(j=j):
            k("s_add_u32 m0, s69, %d" % (j*4096))
            k("s_add_u32 s88, s75, %d" % (j*4096))
            k("buffer_load_dwordx4 v%d, %s, s88 offen lds" % (vL, srd(WS)), tag=tag)
        out.append(one)
    return out

def pre_v(k):
    k.comment("feed-forward: addresses")
    k("v_lshlrev_b32 v%d, 4, v0" % vL)
    k("v_add_u32 v%d, %d, v%d" % (vA0, PT_OFF[0], vL))
    k("v_add_u32 v%d, %d, v%d" % (vA1, PT_OFF[2], vL))
    k("v_add_u32 v%d, %d, v%d" % (vA2, PT_OFF[4], vL))
    k("v_and_b32 v16, 15, v0")
    k("v_lshrrev_b32 v17, 4, v0")
    k("v_lshlrev_b32 v18, 4, v16")
    k("v_lshl_add_u32 v%d, v17, 9, v18" % vX)
    k("s_mul_i32 s88, s71, 3")
    k("v_add_u32 v19, s88, v17")
    k("v_and_b32 v20, 1, v19")
    k("v_lshl_add_u32 v18, v20, 3, v18")
    k("v_bfe_u32 v20, v19, 1, 2")
    k("v_lshl_add_u32 v18, v20, 8, v18")
    k("v_lshrrev_b32 v20, 3, v19")
    k("v_add_u32 v20, 48, v20")
    k("v_lshl_add_u32 v18, v20, 12, v18")
    k("v_add_u32 v19, 1, v17")
    k("v_lshrrev_b32 v19, 2, v19")
    k("v_lshl_add_u32 v%d, v19, 30, v18" % vH3)
    k("v_lshrrev_b32 v19, 2, v16")
    k("v_lshl_add_u32 v19, v19, 4, v16")
    k("v_lshlrev_b32 v%d, 2, v19" % vBQ)
    k("v_add_lshl_u32 v%d, v16, 48, 2" % vBS)
    k("s_lshl_b32 s88, s3, 7")
    k("s_add_u32 s88, s88, %d" % L_RS2)
    k("v_lshl_add_u32 v%d, v16, 2, s88" % vRW)
    k("v_min_u32 v16, 1, v0")
    k("v_lshlrev_b32 v%d, 30, v16" % vSIG)
    k("v_mov_b32 v%d, 1" % vONE)
    for r, m in ((1, 0x22222222), (2, 0x44444444), (3, 0x88888888)):
        k("s_mov_b32 s%d, 0x%x" % (90+2*r, m)); k("s_mov_b32 s%d, 0x%x" % (91+2*r, m))
    for lam in range(4):
        k("s_add_u32 s88, s3, %d" % (lam+1))
        k("s_and_b32 s88, s88, 3")
        k("s_lshl_b32 s88, s88, 10")
        k("v_add_u32 v%d, s88, v%d" % (vHL+lam, vL))

def pre_s(k, layer):
    k("s_lshl_b32 s88, s70, 2")
    k("s_add_u32 s88, s88, s3")
    k("s_mul_i32 s74, s88, 40960")
    k("s_add_u32 s74, s74, 0x%x" % XG[2*layer+1])
    k("s_lshr_b32 s89, s88, 1")
    k("s_mul_i32 s77, s89, %d" % HBLK)
    k("s_and_b32 s90, s3, 1")
    k("s_lshl_b32 s90, s90, 11")
    k("s_add_u32 s77, s77, s90")
    k("s_add_u32 s77, s77, 0x%x" % H[layer])
    k("s_lshl_b32 s90, s71, 13")
    k("s_add_u32 s76, s77, s90")
    k("s_lshl_b32 s89, s70, 1")
    k("s_add_u32 s89, s89, s72")
    k("s_mul_i32 s89, s89, %d" % HBLK)
    k("s_add_u32 s89, s89, 0x%x" % H[layer])
    step_bases(k, 89, 4096, sHB)

def step_bases(k, base, unit, regs):
    k("s_mul_i32 s88, s3, %d" % (8*unit)); k("s_add_u32 s%d, s%d, s88" % (regs[0], base))
    k("s_mul_i32 s88, s3, %d" % unit); k("s_add_u32 s88, s88, %d" % (48*unit)); k("s_add_u32 s%d, s%d, s88" % (regs[1], base))
    k("s_add_u32 s%d, s%d, %d" % (regs[2], regs[1], 4*unit))
    k("s_cmp_lt_u32 s3, 2"); k("s_cselect_b32 s%d, s%d, 0x%x" % (regs[2], regs[2], OOB))
    k("s_mul_i32 s88, s3, %d" % (4*unit)); k("s_add_u32 s88, s88, %d" % (32*unit)); k("s_add_u32 s%d, s%d, s88" % (regs[3], base))

def pre_w(k, layer):
    k("s_mul_i32 s89, s73, %d" % LW2)
    k("s_add_u32 s89, s89, 0x%x" % W2P[layer])
    step_bases(k, 89, 5120, sWB)

def pre(k, layer):
    pre_s(k, layer); pre_v(k)

def step_base(idx):
    if idx < 4: return 0, 2*idx
    if idx == 4: return 1, 0
    if idx == 5: return 2, 0
    if idx < 10: return 0, 2*(idx-6) + 1
    return 3, idx-10

def w2_reg(idx, dt):
    return a(20*(idx % 12)+4*dt, 4)

def w2_loads(k, idx):
    b, n = step_base(idx)
    out = []
    for dt in range(5):
        def one(dt=dt):
            if dt == 0: k("s_add_u32 s89, s%d, %d" % (sWB[b], n*5120))
            if dt == 4: k("s_add_u32 s89, s%d, %d" % (sWB[b], n*5120 + 4096))
            k("buffer_load_dwordx4 %s, v%d, %s, s89 offen offset:%d" % (w2_reg(idx, dt), vL, srd(WS), (dt & 3)*1024))
        out.append(one)
    return out

def poison(k, off, nbytes, vz=64):
    n = -(-nbytes // (368*1024))
    for r in range(4): k("v_mov_b32 v%d, -1" % (vz+r))
    k("s_add_u32 s%d, s%d, 0x%x" % (AUX, pWS, off))
    k("s_addc_u32 s%d, s%d, 0" % (AUX+1, pWS+1))
    k("s_mov_b32 s%d, %d" % (AUX+2, nbytes))
    k("s_mov_b32 s%d, 0x00020000" % (AUX+3))
    k("s_lshl_b32 s90, s22, 2")
    k("s_add_u32 s90, s90, s3")
    k("s_mul_i32 s90, s90, %d" % (n*1024))
    out = []
    for j in range(n):
        def one(j=j):
            if j and j % 4 == 0: k("s_add_u32 s90, s90, 4096")
            k("buffer_store_dwordx4 %s, v%d, %s, s90 offen offset:%d sc1" % (v(vz, 4), vL, srd(AUX), (j & 3)*1024), tag="pz")
        out.append(one)
    return out

def poison_first(k, vz=64):
    for r in range(4): k("v_mov_b32 v%d, -1" % (vz+r))
    k("s_add_u32 s%d, s%d, 0x%x" % (AUX, pWS, H[0]))
    k("s_addc_u32 s%d, s%d, 0" % (AUX+1, pWS+1))
    k("s_mov_b32 s%d, %d" % (AUX+2, 32*HBLK))
    k("s_mov_b32 s%d, 0x00020000" % (AUX+3))
    k("s_lshl_b32 s90, s22, 2")
    k("s_add_u32 s90, s90, s3")
    k("s_sub_u32 s89, s90, 216")
    k("s_max_i32 s89, s89, 0")
    k("s_min_u32 s89, s89, 144")
    k("s_mul_i32 s90, s90, 23")
    k("s_mul_i32 s89, s89, 10")
    k("s_sub_u32 s90, s90, s89")
    k("s_lshl_b32 s90, s90, 10")
    done = k.label("marked")
    for j in range(23):
        if j == 13:
            k("s_sub_u32 s88, s22, 54"); k("s_cmp_lt_u32 s88, 36"); k("s_cbranch_scc1 " + done)
        if j and j % 4 == 0: k("s_add_u32 s90, s90, 4096")
        k("buffer_store_dwordx4 %s, v%d, %s, s90 offen offset:%d sc1" % (v(vz, 4), vL, srd(AUX), (j & 3)*1024))
    k(done + ":")

def poison_h(k, layer, vz):
    for r in range(4): k("v_mov_b32 v%d, -1" % (vz+r))
    k("s_mul_i32 s90, s2, 3")
    k("s_add_u32 s90, s90, s3")
    k("s_mul_i32 s90, s90, 9216")
    k("s_add_u32 s90, s90, 0x%x" % (H[layer] - 9216))
    for j in range(9):
        if j and j % 4 == 0: k("s_add_u32 s90, s90, 4096")
        k("buffer_store_dwordx4 %s, v%d, %s, s90 offen offset:%d sc1" % (v(vz, 4), vL, srd(WS), (j & 3)*1024), tag="ph")

def w1_block(k, sblk):
    k("s_lshl_b32 s88, s%d, 10" % sblk)
    k("s_mov_b32 m0, s88")
    k("s_sub_u32 s88, s88, s69")
    k("s_add_u32 s88, s88, s75")
    k("buffer_load_dwordx4 v%d, %s, s88 offen lds" % (vL, srd(WS)), tag="w1")

def x_check(s):
    b = XBR + 8*s
    return ["v_max3_u32 v31, v%d, v%d, v%d" % (b, b+1, b+2), "v_max3_u32 v31, v31, v%d, v%d" % (b+3, b+4),
            "v_max3_u32 v31, v31, v%d, v%d" % (b+5, b+6), "v_max_u32 v31, v31, v%d" % (b+7), "v_cmp_eq_u32 vcc, -1, v31"]

def x_branch(k, s, last):
    retry, back = k.label("xretry"), k.label("xback")
    k("s_cbranch_vccnz " + retry)
    k(back + ":")
    def tail():
        loop = k.label("xloop")
        k.vmq = []; k.lgq = []; k.hist = []
        k(retry + ":")
        k("s_mov_b32 s54, 0")
        k(loop + ":")
        for n in range(2*s, 2*last + 2):
            if n == 2*s or n % 4 == 0: k("s_add_u32 s53, s52, %d" % ((n >> 2)*4096))
            k("buffer_load_dwordx4 %s, v%d, %s, s53 offen offset:%d sc1" % (v(XBR+4*n, 4), vX, srd(WS), ((n >> 1) & 1)*2048 + (n & 1)*256))
        k("s_add_u32 s54, s54, 1")
        if k.stamps_on: k("s_add_u32 s101, s101, 0x100")
        k("s_waitcnt vmcnt(0)")
        for l in x_check(s): k(l)
        k("s_cmp_ge_u32 s54, %d" % SPIN_LIMIT)
        k("s_cbranch_scc1 " + back)
        k("s_nop 2")
        k("s_cbranch_vccnz " + loop)
        k("s_branch " + back)
    k.tails.append(tail)

def poison_next(k, vz):
    out = ["v_mov_b32 v%d, -1" % (vz+r) for r in range(4)]
    out += ["s_lshl_b32 s95, s2, 2", "s_add_u32 s95, s95, s3", "s_mul_i32 s95, s95, 6912", "s_add_u32 s95, s95, 0x%x" % H[1]]
    for j in range(7):
        if j == 4: out.append("s_add_u32 s95, s95, 4096")
        if j == 6: out.append("s_mov_b32 exec_hi, 0xffff")
        out.append("buffer_store_dwordx4 %s, v%d, %s, s95 offen offset:%d sc1" % (v(vz, 4), vL, srd(WS), (j & 3)*1024))
    return out

def touch_next(k):
    def setup():
        k("s_and_b32 s97, s70, 3")
        k("s_lshl_b32 s97, s97, 1")
        k("s_add_u32 s97, s97, s72")
        k("s_lshl_b32 s97, s97, 2")
        k("s_add_u32 s97, s97, s3")
        k("s_mul_i32 s97, s97, 8640")
        k("s_mul_i32 s96, s73, %d" % LW2)
        k("s_add_u32 s96, s96, s97")
        k("s_add_u32 s96, s96, 0x%x" % W2P[1])
        k("v_lshlrev_b32 v11, 6, v0")
    def one(j):
        if j: k("s_add_u32 s96, s96, %d" % (4096 if j == 1 else 448))
        k("buffer_load_dword v%d, v11, %s, s96 offen" % (208+j, srd(WS)))
    return [setup] + [lambda j=j: one(j) for j in range(3)]

def touch_w2(k, layer, va):
    def one(j):
        if j == 0:
            k("s_and_b32 s60, s70, 3")
            k("s_lshl_b32 s60, s60, 1")
            k("s_add_u32 s60, s60, s72")
            k("s_lshl_b32 s60, s60, 2")
            k("s_add_u32 s60, s60, s3")
            k("s_mul_i32 s60, s60, 8640")
            k("s_mul_i32 s61, s73, %d" % LW2)
            k("s_add_u32 s60, s60, s61")
            k("s_add_u32 s60, s60, 0x%x" % W2P[layer])
            k("v_lshlrev_b32 v%d, 6, v0" % va)
        else: k("s_add_u32 s60, s60, %d" % (4096 if j == 1 else 448))
        k("buffer_load_dword a%d, v%d, %s, s60 offen" % (252+j, va, srd(WS)))
    return [lambda j=j: one(j) for j in range(3)]

def w2_stage(k):
    out = []
    for idx in (11, 12, 13):
        b, n = step_base(idx)
        for dt in range(5):
            def one(idx=idx, dt=dt, b=b, n=n):
                if idx == 11 and dt == 0:
                    k("s_mul_i32 s91, s3, 15360"); k("s_add_u32 s91, s91, %d" % S_OFF)
                j = (idx-11)*5 + dt
                if j % 4 == 0:
                    k("s_add_u32 m0, s91, %d" % (j*1024))
                    k("s_add_u32 s89, s%d, %d" % (sWB[b], n*5120 + dt*1024))
                k("buffer_load_dwordx4 v%d, %s, s89 offen offset:%d lds" % (vL, srd(WS), (j % 4)*1024), tag="w2s")
            out.append(one)
    return out

def h_loads(k, idx):
    if P["exp"] & 2: return []
    b, n = step_base(idx)
    out = []
    for lam in range(4):
        def one(lam=lam):
            if lam == 0: k("s_add_u32 s90, s%d, %d" % (sHB[b], n*4096))
            k("buffer_load_dwordx4 %s, v%d, %s, s90 offen sc1" % (v(HR+16*(idx % NS)+4*lam, 4), vHL+lam, srd(WS)), tag="h%d" % idx)
        out.append(one)
    return out

def x_load(k, n):
    s, tt = n >> 1, n & 1
    if n and n % 4 == 0: k("s_add_u32 s74, s74, 4096")
    k("buffer_load_dwordx4 %s, v%d, %s, s74 offen offset:%d sc1" % (v(XBR+4*n, 4), vX, srd(WS), (s & 1)*2048 + tt*256), tag="x%d" % n)

def signal(k, stage, tag):
    def f():
        if stage == 0: k.stamp("sigA_pre")
        k.wait(vm=tag)
        k("buffer_atomic_add v%d, v%d, %s, s%d offen offset:%d sc1" % (vONE, vSIG, srd(WS), sCNT, stage*256))
        k.stamp("sig%d" % stage)
    return f

def poll_issue(k, stage, vp):
    return lambda: k("buffer_load_dword v%d, off, %s, s%d offset:%d sc1" % (vp, srd(WS), sCNTP, stage*256))

def poll_check(k, vp, soff, off, want):
    ok, again = k.label("ok"), k.label("again")
    k("v_readfirstlane_b32 s88, v%d" % vp)
    k("s_mov_b32 s%d, 0" % sSPIN)
    k("s_cmp_ge_u32 s88, %d" % want)
    k("s_cbranch_scc1 " + ok)
    st = k.fork()
    k(again + ":")
    k("buffer_load_dword v%d, off, %s, s%d offset:%d sc1" % (vp, srd(WS), soff, off))
    k("s_add_u32 s%d, s%d, 1" % (sSPIN, sSPIN))
    k("s_waitcnt vmcnt(0)")
    if P["slp"]: k("s_sleep %d" % P["slp"])
    k("v_readfirstlane_b32 s88, v%d" % vp)
    k("s_cmp_ge_u32 s%d, %d" % (sSPIN, SPIN_LIMIT))
    k("s_cbranch_scc1 " + ok)
    k("s_cmp_ge_u32 s88, %d" % want)
    k("s_cbranch_scc0 " + again)
    k.restore(st)
    k(ok + ":")
    k.stamp_val("#spin%d" % (off // 256), sSPIN)

def relu_ops(flip):
    return ("v_mul_f32 v%d, -v%d, |v%d|", "v_pk_max_u16 v%d, v%d, s79") if flip else ("v_mul_f32 v%d, v%d, |v%d|", "v_pk_max_i16 v%d, v%d, 0")

def pair_epilogue(p, tag, flip):
    out = []; mul, mx = relu_ops(flip)
    for tt in range(2):
        b = ACCP + 16*p + 8*tt
        for r in range(8): out.append(mul % (b+r, b+r, b+r))
        for r in range(4): out.append("v_cvt_pk_bf16_f32 v%d, v%d, v%d" % (b+r, b+2*r, b+2*r+1))
        for r in range(4): out.append(mx % (b+r, b+r))
        out.append(("buffer_store_dwordx4 %s, v%d, %s, s%d offen offset:%d sc1" % (v(b, 4), vL, srd(WS), sHS, tt*1024), tag))
        if P["dbl"]: out.append(("buffer_store_dwordx4 %s, v%d, %s, s%d offen offset:%d" % (v(b, 4), vL, srd(WS), sHS, tt*1024), tag))
    if P["exp"] & 4: out = [x for x in out if not isinstance(x, tuple)]
    if P["exp"] & 16: out = [x for x in out if isinstance(x, tuple)]
    return out

def short_epilogue(tag, flip):
    out = []; mul, mx = relu_ops(flip)
    for tt in range(2):
        b = ACCS + 4*tt
        for r in range(4): out.append(mul % (b+r, b+r, b+r))
        for r in range(2): out.append("v_cvt_pk_bf16_f32 v%d, v%d, v%d" % (b+r, b+2*r, b+2*r+1))
        for r in range(2): out.append(mx % (b+r, b+r))
        out.append(("buffer_store_dwordx2 %s, v%d, %s, s%d offen offset:%d sc1" % (v(b, 2), vH3, srd(WS), sHS3, tt*1024), tag))
    return out

def stats_ops():
    c = f2u(1.0/D)
    out = []
    both = lambda f: [f(GR+4*tt, SB+4*tt, TMP+4*tt, tt) for tt in range(2)]
    out += both(lambda G, S_, T, tt: "ds_bpermute_b32 v%d, v%d, v%d" % (T, vBS, ACCS+4*tt))
    for r in range(1, 4):
        out += both(lambda G, S_, T, tt: "v_cndmask_b32 v%d, v%d, v%d, s[%d:%d]" % (G, G, G+r, 90+2*r, 91+2*r))
    out += both(lambda G, S_, T, tt: "ds_bpermute_b32 v%d, v%d, v%d" % (G+1, vBQ, G))
    for f in (
        lambda G, S_, T, tt: "v_mov_b32 v%d, 0" % (S_+3),
        lambda G, S_, T, tt: "v_mul_f32 v%d, 0x%x, v%d" % (T, f2u(-1.0/D), T),
        lambda G, S_, T, tt: "v_cvt_pk_bf16_f32 v%d, v%d, v%d" % (S_, T, T),
        lambda G, S_, T, tt: "v_lshlrev_b32 v%d, 16, v%d" % (T+1, S_),
        lambda G, S_, T, tt: "v_sub_f32 v%d, v%d, v%d" % (T+1, T, T+1),
        lambda G, S_, T, tt: "v_mul_f32 v%d, 0x%x, v%d" % (G, c, G+1),
        lambda G, S_, T, tt: "v_fma_f32 v%d, -v%d, v%d, v%d" % (G, T, T, G),
        lambda G, S_, T, tt: "v_max_f32 v%d, 0, v%d" % (G, G),
        lambda G, S_, T, tt: "v_add_f32 v%d, 0x%x, v%d" % (G, f2u(1e-5), G),
        lambda G, S_, T, tt: "v_sqrt_f32 v%d, v%d" % (T+2, G),
        lambda G, S_, T, tt: "v_rcp_f32 v%d, v%d" % (G, G),
        lambda G, S_, T, tt: "v_cvt_pk_bf16_f32 v%d, v%d, v%d" % (S_+1, T+1, T+2),
        lambda G, S_, T, tt: "v_and_b32 v%d, 0xffff0000, v%d" % (T+3, S_+1),
        lambda G, S_, T, tt: "v_sub_f32 v%d, v%d, v%d" % (T+3, T+2, T+3),
        lambda G, S_, T, tt: "v_cvt_pk_bf16_f32 v%d, v%d, 0" % (S_+2, T+3),
        lambda G, S_, T, tt: "ds_write_b32 v%d, v%d offset:%d" % (vRW, G, tt*64)):
        out += both(f)
    return out

def extract_setup(k):
    return ["s_lshr_b32 s78, s73, 1", "s_mov_b32 s79, 0x05040100", "s_bitcmp0_b32 s73, 0", "s_cselect_b32 s79, s79, 0x07060302",
            "v_and_b32 v24, 15, v0", "v_mul_u32_u24 v24, 160, v24", "v_lshrrev_b32 v25, 4, v0", "v_lshl_add_u32 v24, v25, 2, v24",
            "s_and_b32 s88, s3, 1", "s_mul_i32 s88, s88, 5120", "s_add_u32 s88, s88, %d" % L_RES,
            "s_lshr_b32 s91, s3, 1", "s_cmp_eq_u32 s91, s72", "s_cselect_b32 s88, s88, 0x30000",
            "v_add_u32 v24, s88, v24", "v_add_u32 v25, 2560, v24"]

def extract_block(k, u, tt):
    def f():
        k("s_set_gpr_idx_on s78, gpr_idx(SRC0,SRC1)")
        for e in range(2):
            x = XBR + 16*(u+e) + 4*tt
            k("v_perm_b32 v%d, v%d, v%d, s79" % (26+2*tt+e, x+8, x))
        k("s_set_gpr_idx_off")
        k("ds_write2_b32 v%d, v%d, v%d offset0:%d offset1:%d" % (24+tt, 26+2*tt, 27+2*tt, 4*u, 4*u+4))
    return f

def put(k, x):
    if callable(x): x()
    elif isinstance(x, tuple): k(x[0], tag=x[1])
    else: k(x)

def g1(k, layer, w2_idx, late_image):
    k.comment("first GEMM")
    flip = layer and P["flip"]; xs = P["xs"] >> layer & 1
    LA = P["la"]
    groups = [[(6, s), (0, s), (1, s)] for s in range(20)]
    G2_ = len(groups)
    nx = P["nx"]
    half = lambda p, a_, b_: [[(t, s) for s in (2*u, 2*u+1) for t in (2*p, 2*p+1)] for u in range(a_, b_)]
    groups += half(1, 0, nx) + [[("x", 0), ("x", 1), ("x", 6)]] + half(1, nx, 10)
    G3_ = len(groups)
    groups += [[("x", 2), ("x", 3)]] + half(2, 0, 10) + [[("x", 4), ("x", 5)]]
    frags = [(g, f) for g, fs in enumerate(groups) for f in fs]
    slot = lambda n: a(RING + 4*(n % NRING), 4)
    def read(n):
        g, (t, s) = frags[n]
        if t == "x": txt = "v%d offset:%d" % (vL, EX_OFF + ((s+1) % 7)*1024)
        elif t == 6: txt = "v%d offset:%d" % (vL, S_OFF + s*1024)
        else: txt = "v%d offset:%d" % ((vA0, vA1, vA2)[t >> 1], (t & 1)*20480 + s*1024)
        return ("ds_read_b128 %s, %s" % (slot(n), txt), "g%d" % g)
    def acc(t, tt): return v(ACCS+4*tt, 4) if t == 6 else v(ACCP+16*(t >> 1)+8*tt+4*(t & 1), 4)
    mm = []
    for n, (g, (t, s)) in enumerate(frags):
        for tt in range(2):
            if t == "x": mm.append((g, n, "v_mfma_f32_16x16x32_bf16 %s, %s, %s, %s" % (acc(s, tt), slot(n), v(SB+4*tt, 4), acc(s, tt))))
            else: mm.append((g, n, "v_mfma_f32_16x16x32_bf16 %s, %s, %s, %s" % (acc(t, tt), slot(n), v(XBR+8*s+4*tt, 4), acc(t, tt) if s else "0")))
        if g < G2_ and t == 1:
            for tt in range(2):
                x = v(XBR+8*s+4*tt, 4)
                mm.append((g, None, "v_mfma_f32_16x16x32_bf16 %s, %s, %s, %s" % (v(GR+4*tt, 4), x, x, v(GR+4*tt, 4) if s else "0")))
    first = {}
    for i, (g, n, _) in enumerate(mm): first.setdefault(g, i)
    M2, M3, END = first[G2_], first[G3_], len(mm)
    MX = first[G2_ + nx]
    fill = {i: [] for i in range(END)}
    def spread(ops, i0, num, den=1):
        for j, op in enumerate(ops): fill[min(i0 + j*den//num, END-1)].append(op)
        return i0 + len(ops)*den//num + 1
    for n in range(LA, 40):
        fill[8*((n-LA) >> 1) + 1 + 4*(n & 1)].append(lambda n=n: x_load(k, n))
    if layer == 1:
        spread(extract_setup(k), 2, 1, 1)
        for j in range(5):
            for tt in range(2): fill[32*j + 32 + (3*tt + 2 if j < 4 else tt)].append(extract_block(k, 2*j, tt))
    st = stats_ops()
    spread(st, M2 + 3, len(st), MX - M2 - 5)
    nex = spread((["s_mov_b32 s79, 0x80008000"] if flip else []) + pair_epilogue(0, "hA", flip) + short_epilogue("hA", flip), MX + 8, P["epi"], 2)
    spread(["s_add_u32 s76, s76, 4096"] + pair_epilogue(1, "hB", flip), M3 + 9, P["epi"], 2)
    w2l = [l for idx in w2_idx for l in w2_loads(k, idx)]
    if P["exp"] & 1: w2l = []
    gap = P["gap"]
    i = 8*((40-LA) >> 1) + 4
    for l in w2l:
        fill[min(i, END-1)].append(l); i += P["wgap"]
    i = max(i, M2 + 2)
    for l in ([] if P["exp"] & 1 else w2_stage(k)):
        fill[min(i, END-1)].append(l); i += gap
    hl = [l for idx in range(6) for l in h_loads(k, idx)]
    nin = 0
    i = max(i, M3 + P["h0"])
    for j, l in enumerate(hl):
        i = max(i, M3 + 4 + 8*((j >> 2) + 1))
        if i >= END: break
        fill[i].append(l); nin += 1; i += P["hgap"]
    k("s_mov_b32 s52, s74")
    for n in range(LA): x_load(k, n)
    for s_ in range(1, 20):
        fill[8*s_ - (8 if xs else 1)].append(lambda s_=s_: k.wait(vm="x%d" % (2*s_+1)))
        if xs: spread(x_check(s_), 8*s_ - 7, 1, 1)
    k.wait(vm="x1")
    k("s_barrier")
    nread = 0
    while nread < NRING - 3: put(k, read(nread)); nread += 1
    last_use = {n: i for i, (g, n, _) in enumerate(mm) if n is not None}
    for i, (g, n, txt) in enumerate(mm):
        if i == 0: k.stamp("g1_start")
        if i == 8: k.stamp("g1_x0")
        if i == M2: k.stamp("g1_p1")
        if i == M3: k.stamp("g1_p2")
        if i == first[g]:
            if g == 0 and xs:
                for l in x_check(0): k(l)
                k("s_nop 1")
            if g < G2_ and xs: x_branch(k, g, min(19, g - 1 + LA//2) if g else LA//2 - 1)
            k.wait(lg="g%d" % g)
            if g == G2_: k("s_barrier")
        k(txt)
        if (i & 1) == 0 and nread < len(frags) and (nread < NRING or last_use[nread - NRING] <= i):
            put(k, read(nread)); nread += 1
        for x in fill[i]: put(k, x)
    assert nread == len(frags)
    k("s_lshl_b32 s88, s71, 12")
    k("s_add_u32 s76, s77, s88")
    k("s_add_u32 s76, s76, %d" % (32*4096))
    for x in pair_epilogue(2, "hC", flip): put(k, x)
    first_step = max(0, min(len(hl), 4*P["hpre"]) - nin)
    for x in hl[nin:nin+first_step]: put(k, x)
    return hl[nin+first_step:]

def check_ops(idx, vt, flip):
    b = HR + 16*(idx % NS)
    op3, op2 = ("v_min3_u32", "v_min_u32") if flip else ("v_or3_b32", "v_or_b32")
    out = ["%s v%d, v%d, v%d, v%d" % (op3, vt, b, b+1, b+2)]
    for r in range(3, 15, 2): out.append("%s v%d, v%d, v%d, v%d" % (op3, vt, vt, b+r, b+r+1))
    out.append("%s v%d, v%d, v%d" % (op2, vt, vt, b+15))
    if not flip: out.append("v_cmp_gt_i32 vcc, 0, v%d" % vt)
    elif idx == 5: out.append("v_cmp_gt_u32 vcc, s78, v%d" % vt)
    else: out.append("v_cmp_le_i32 vcc, 0, v%d" % vt)
    return out

def check_branch(k, idx, vt, flip):
    if P["exp"] & 6: return
    retry, back = k.label("retry"), k.label("back")
    k("s_cbranch_vccnz " + retry)
    k(back + ":")
    def tail():
        b_, n = step_base(idx)
        loop = k.label("loop")
        k.vmq = []; k.lgq = []; k.hist = []
        k(retry + ":")
        k("s_mov_b32 s%d, 0" % sSPIN)
        k("s_add_u32 s88, s%d, %d" % (sHB[b_], n*4096))
        k(loop + ":")
        for lam in range(4):
            k("buffer_load_dwordx4 %s, v%d, %s, s88 offen sc1" % (v(HR+16*(idx % NS)+4*lam, 4), vHL+lam, srd(WS)))
        k("s_add_u32 s%d, s%d, 1" % (sSPIN, sSPIN))
        if k.stamps_on: k("s_add_u32 s101, s101, 1")
        k("s_waitcnt vmcnt(0)")
        for l in check_ops(idx, vt, flip): k(l)
        k("s_cmp_ge_u32 s%d, %d" % (sSPIN, SPIN_LIMIT))
        k("s_cbranch_scc1 " + back)
        k("s_nop 2")
        k("s_cbranch_vccnz " + loop)
        k("s_branch " + back)
    k.tails.append(tail)

def m80_dma(k):
    def one(j):
        if j == 0:
            k("v_add_u32 v6, s69, v%d" % vL)
            tab_addr(k, 6, 6, TAB["M80"])
            k("s_mov_b32 s96, 4096"); k("s_mov_b32 s97, 0")
        k("s_add_u32 m0, s69, %d" % (L_M80 + j*4096))
        if j: k("v_lshl_add_u64 v[6:7], v[6:7], 0, s[96:97]")
        k("global_load_lds_dwordx4 v[6:7], off", tag="m80")
    return [lambda j=j: one(j) for j in range(4)]

def g2(k, layer, pending, tail_idx=()):
    k.comment("second GEMM")
    k.stamp("g1_end")
    flip = layer and P["flip"]
    if flip:
        k("s_cmp_lt_u32 s3, 2"); k("s_cselect_b32 s78, 0x80000000, 0")
    real = k
    setup = []
    def k(text, tag=None): setup.append((text, tag) if tag else text)
    vE = 248
    k("v_lshrrev_b32 v%d, 4, v0" % vE)
    def b2_dma():
        real("s_mul_i32 s74, s73, 320")
        real("s_add_u32 s74, s74, 0x%x" % (B2P + layer*2560))
        real("s_add_u32 m0, s69, %d" % L_B2)
        real("s_mov_b64 exec, 0xfffff")
        real("buffer_load_dwordx4 v%d, %s, s74 offen lds" % (vL, srd(WS)), tag="b2")
        real("s_mov_b64 exec, -1")
    setup.append(b2_dma)
    k("s_add_u32 s74, s69, %d" % L_B2)
    k("v_mul_u32_u24 v%d, 80, v%d" % (vE+1, vE))
    k("v_add_u32 v%d, s74, v%d" % (vE+1, vE+1))
    k("v_and_b32 v%d, 15, v0" % (vE+2))
    k("s_lshl_b32 s92, s70, 3")
    k("s_lshl_b32 s74, s72, 2")
    k("s_add_u32 s92, s92, s74")
    k("s_add_u32 s92, s92, s3")
    pre_ops = []
    if layer == 0:
        k("v_lshlrev_b32 v%d, 4, v%d" % (vE+3, vE+2))
        k("v_lshl_add_u32 v%d, v%d, 12, v%d" % (vE+4, vE, vE+3))
        k("v_lshrrev_b32 v%d, 5, v0" % (vE+5))
        k("v_lshl_add_u32 v%d, v%d, 12, v%d" % (vE+5, vE+5, vE+3))
        k("v_bfe_u32 v%d, v0, 4, 1" % (vE+3))
        k("v_lshl_add_u32 v%d, v%d, 3, v%d" % (vE+5, vE+3, vE+5))
        k("s_lshr_b32 s74, s92, 1")
        k("s_mul_i32 s93, s74, 40960")
        k("s_and_b32 s74, s92, 1")
        k("s_lshl_b32 s74, s74, 8")
        k("s_add_u32 s93, s93, s74")
        k("s_lshl_b32 s74, s73, 9")
        k("s_add_u32 s93, s93, s74")
        k("s_add_u32 s74, s93, 0x%x" % XG[1])
        k("buffer_load_dwordx4 %s, v%d, %s, s74 offen sc1" % (v(RT, 4), vE+4, srd(WS)))
        k("s_add_u32 s74, s93, 0x%x" % (XG[1] + 16384))
        k("buffer_load_dwordx4 %s, v%d, %s, s74 offen sc1" % (v(RT+4, 4), vE+4, srd(WS)))
        k("s_add_u32 s74, s93, 0x%x" % (XG[1] + 32768))
        k("buffer_load_dwordx2 %s, v%d, %s, s74 offen sc1" % (v(RT+8, 2), vE+5, srd(WS)))
        src = [(RT + (e >> 1), e & 1) for e in range(20)]
    else:
        k("v_mul_u32_u24 v%d, 160, v%d" % (vE+3, vE+2))
        k("s_mul_i32 s74, s3, 2560")
        k("s_add_u32 s74, s74, %d" % L_RES)
        k("v_add_u32 v%d, s74, v%d" % (vE+3, vE+3))
        k("v_lshl_add_u32 v%d, v%d, 4, v%d" % (vE+4, vE, vE+3))
        k("v_lshrrev_b32 v%d, 5, v0" % (vE+5))
        k("v_lshl_add_u32 v%d, v%d, 4, v%d" % (vE+5, vE+5, vE+3))
        k("ds_read_b128 %s, v%d" % (v(RT, 4), vE+4))
        k("ds_read_b128 %s, v%d offset:64" % (v(RT+4, 4), vE+4))
        k("ds_read_b128 %s, v%d offset:128" % (v(RT+8, 4), vE+5))
        k("v_and_b32 v%d, 16, v0" % (vE+4))
        k("v_xor_b32 v%d, 16, v%d" % (vE+4, vE+4))
        src = [(RT + 4*(e >> 3) + (e & 3), (e >> 2) & 1) for e in range(16)]
        for r in range(4):
            pre_ops.append("v_lshlrev_b32 v%d, v%d, v%d" % (RT+8+r, vE+4, RT+8+r))
            src.append((RT + 8 + r, 1))
    k("s_lshl_b32 s74, s72, 2")
    k("s_add_u32 s74, s74, s3")
    k("s_lshl_b32 s74, s74, 6")
    k("s_add_u32 s74, s74, %d" % L_RS2)
    k("v_lshl_add_u32 v%d, v%d, 2, s74" % (vE+3, vE+2))
    k("ds_read_b32 v%d, v%d" % (vE+6, vE+3))
    for e, (r, hi) in enumerate(src):
        pre_ops.append("v_and_b32 v%d, 0xffff0000, v%d" % (vE+7, r) if hi else "v_lshlrev_b32 v%d, 16, v%d" % (vE+7, r))
        pre_ops.append("v_add_f32 v%d, v%d, v%d" % (RB+e, RB+e, vE+7))
    red = []
    for lam in range(3):
        red.append(2+lam)
        k("s_add_u32 s74, s3, %d" % (lam+1))
        k("s_and_b32 s74, s74, 3")
        k("s_mul_i32 s74, s74, 15360")
        k("s_add_u32 s74, s74, %d" % (L_RED + lam*5120))
        k("v_add_u32 v%d, s74, v%d" % (2+lam, vL))
    k("s_mul_i32 s74, s3, 15360")
    k("s_add_u32 s74, s74, %d" % L_RED)
    k("v_add_u32 v5, s74, v%d" % vL)
    if layer == 0:
        u_addr(k, 212, 213)
        k("s_lshl_b32 s74, s73, 7")
        k("s_add_u32 s74, s74, s92")
        k("s_lshl_b32 s74, s74, 6")
        k("s_add_u32 s94, s74, 0x%x" % U[1])
        k("v_lshlrev_b32 v214, 3, v%d" % (vE+2))
        k("v_lshl_add_u32 v214, v%d, 2, v214" % vE)
        k("s_lshl_b32 s95, s92, 7")
        k("s_add_u32 s95, s95, 0x%x" % ST[1])
    else:
        for j, src_ in enumerate(("s%d" % pOUT, "s%d" % (pOUT+1), "0x%x" % XB, "0x00020000")): k("s_mov_b32 s%d, %s" % (AUX+j, src_))
        k("v_and_b32 v212, 7, v0")
        k("v_bfe_u32 v213, v0, 3, 1")
        k("v_lshl_add_u32 v212, v212, 1, v213")
        k("v_mul_u32_u24 v212, 40960, v212")
        k("v_lshl_add_u32 v213, v%d, 4, v212" % vE)
        k("v_lshl_add_u32 v212, v%d, 3, v212" % vE)
        k("s_lshr_b32 s74, s92, 5")
        k("s_lshl_b32 s74, s74, 9")
        k("s_and_b32 s94, s92, 31")
        k("s_add_u32 s74, s74, s94")
        k("s_mul_i32 s74, s74, 1280")
        k("s_mul_i32 s94, s73, 160")
        k("s_add_u32 s94, s94, s74")
    k = real
    def mf(idx, lam, dt):
        d = v(G2ACC+20*lam+4*dt, 4)
        return "v_mfma_f32_16x16x32_bf16 %s, %s, %s, %s" % (d, w2_reg(idx, dt), v(HR+16*(idx % NS)+4*lam, 4), d if idx else "0")
    J = P["J"]; NK = 14 - J
    F_ = {(idx, n): [] for idx in range(NK) for n in range(20)}
    pb, pc = P["hB"], P["hC"]
    def checked(idx):
        def ready():
            assert k.tagcount.pop("h%d" % idx) == 4
            k.wait(vm="h%d" % idx)
        if P["exp"] & 6: return [] if P["exp"] & 2 else [ready]
        return [ready] + check_ops(idx, 10, flip)
    for idx in range(1, NK+1):
        for j, l in enumerate(checked(idx)): F_[idx-1, 7+j].append(l)
    slots = [(idx, n) for idx in range(NK) for n in P["slots"]]
    used = set()
    def place(ops, after):
        for op in ops:
            sl = next(x for x in slots if x[0] > after and x not in used)
            used.add(sl); F_[sl].append(op)
    place(pending, -1)
    for idx in range(6, 14): place(h_loads(k, idx), max(pb if idx < 10 else pc, idx - NS))
    if layer == 0: place(m80_dma(k), 0)
    F_[0, 19].append(lambda: (k("s_waitcnt lgkmcnt(0)"), k("s_barrier")))
    quiet = (0, 2, 3, 4, 6, 17, 18, 19)
    spots = [(idx, n) for idx in range(1, 6) for n in quiet]
    for j, l in enumerate(setup): F_[spots[j*len(spots)//len(setup)]].append(l)
    F_[1, 0].append(lambda: (k.wait(vm="w2s"), k("s_mul_i32 s88, s3, 15360"), k("s_add_u32 s88, s88, %d" % S_OFF), k("v_add_u32 v11, s88, v%d" % vL)))
    for j in range(15): F_[2 + j // 5, 2 + j % 5].append("ds_read_b128 %s, v11 offset:%d" % (w2_reg(11 + j // 5, j % 5), j*1024))
    F_[6, 2].append(lambda: k.wait(vm="b2"))
    for dt in range(5): F_[6, 3+dt].append("ds_read_b128 %s, v%d offset:%d" % (v(RB+4*dt, 4), vE+1, dt*16))
    spots = [(idx, n) for idx in range(7, NK) for n in (0, 2, 3, 4, 5, 6, 17, 18, 19)]
    if P["exp"] & 8: pre_ops = []
    for j, l in enumerate(pre_ops): F_[spots[j*len(spots)//len(pre_ops)]].append(l)
    if layer == 0:
        F_[NK-1, 19].append(lambda: (k.wait(vm="m80"), k("s_barrier"), k("v_add_u32 v6, %d, v%d" % (L_M80, vL))))
    else:
        F_[NK-1, 19].append("s_barrier")
    for l in checked(0): put(k, l)
    k("s_nop 1")
    for idx in range(NK):
        check_branch(k, idx, 10, flip)
        if idx in (0, 5): k.stamp("g2_step%d" % idx)
        for n, m in enumerate([mf(idx, lam, dt) for lam in range(4) for dt in range(5)]):
            k(m)
            for x in F_[idx, n]: put(k, x)
    late = []
    if layer == 0:
        late += ["ds_read_b128 %s, v6 offset:%d" % (a(M80R+4*j, 4), j*1024) for j in range(13)]
        if P["touch2"]: k.bg += touch_next(k)
    f = []
    for lam in range(4):
        m = [mf(idx, lam, dt) for idx in range(NK, 14) for dt in range(5)]
        if lam == 0:
            for j in range(J):
                check_branch(k, NK+j, 10, flip)
                rest = interleave(k, m[5*j:5*j+5], checked(NK+1+j) if j < J-1 else [], 3)
                assert not rest
        else:
            for n, x in enumerate(m):
                k(x)
                if n >= 3 and f: put(k, f.pop(0))
                elif late: put(k, late.pop(0))
                k.drip()
            for x in f: put(k, x)
        f = [("ds_write_b128 v%d, %s offset:%d" % (red[lam], v(G2ACC+20*lam+4*dt, 4), dt*1024), "red") for dt in range(5)] if lam < 3 else []
    for x in late: put(k, x)
    k.wait(lg="red")
    k.stamp("g2_mfma")
    k("s_barrier")
    for sl in range(3):
        for dt in range(5):
            k("ds_read_b128 %s, v5 offset:%d" % (v(HR+20*sl+4*dt, 4), sl*5120 + dt*1024))
    O = G2ACC + 60
    if tail_idx:
        pre_w(k, layer+1)
        k.bg += [l for idx in tail_idx for l in w2_loads(k, idx)]
    for sl in range(3):
        for e in range(0, 20, 2):
            k("v_pk_add_f32 %s, %s, %s" % (v(O+e, 2), v(O+e, 2), v(HR+20*sl+e, 2))); k.drip()
    for e in range(0, 20, 2):
        k("v_pk_fma_f32 %s, %s, %s, %s op_sel_hi:[1,0,1]%s" % (v(O+e, 2), v(O+e, 2), v(vE+6, 2), v(RB+e, 2), " neg_lo:[1,0,0] neg_hi:[1,0,0]" if flip else "")); k.drip()
    XP = 36
    for e in range(10):
        k("v_cvt_pk_bf16_f32 v%d, v%d, v%d" % (XP+e, O+2*e, O+2*e+1))
    if layer == 0:
        m = dft80_mfmas(XP, XP+4, XP+8, M80R, 16, "a")
        st = ["s_add_u32 s88, s93, 0x%x" % XG[2],
              ("buffer_store_dwordx4 %s, v%d, %s, s88 offen sc1" % (v(XP, 4), vE+4, srd(WS)), "fin"),
              "s_add_u32 s88, s93, 0x%x" % (XG[2] + 16384),
              ("buffer_store_dwordx4 %s, v%d, %s, s88 offen sc1" % (v(XP+4, 4), vE+4, srd(WS)), "fin"),
              "s_add_u32 s88, s93, 0x%x" % (XG[2] + 32768),
              ("buffer_store_dwordx2 %s, v%d, %s, s88 offen sc1" % (v(XP+8, 2), vE+5, srd(WS)), "fin"),
              ]
        k("v_pk_add_f32 v[46:47], %s, %s" % (v(O, 2), v(O+2, 2)))
        k("v_pk_mul_f32 v[48:49], %s, %s" % (v(O, 2), v(O, 2)))
        k("v_pk_fma_f32 v[48:49], %s, %s, v[48:49]" % (v(O+2, 2), v(O+2, 2)))
        for e in range(4, 20, 2):
            k("v_pk_add_f32 v[46:47], v[46:47], %s" % v(O+e, 2))
            k("v_pk_fma_f32 v[48:49], %s, %s, v[48:49]" % (v(O+e, 2), v(O+e, 2)))
        k("v_add_f32 v46, v46, v47"); k("v_add_f32 v47, v48, v49")
        for x in m[:5]: k(x)
        xsum(k, [46], 48, [4]); k(m[5]); xsum(k, [47], 49, [4]); k(m[6])
        xsum(k, [46], 48, [5]); k(m[7]); xsum(k, [47], 49, [5]); k(m[8])
        k("v_cmp_gt_u32 vcc, 16, v0")
        k(m[9])
        k("v_cndmask_b32 v46, v47, v46, vcc")
        k("s_mov_b32 exec_hi, 0")
        if not P["exp"] & 32: k("buffer_atomic_add_f32 v46, v214, %s, s95 offen" % srd(WS), tag="fin")
        k("s_mov_b64 exec, -1")
        rest = interleave(k, m[10:], st, 2)
        for x in rest: put(k, x)
        u_stores(k, 16, 212, 94, 88, tag="fin")
        if k.bg: print("second GEMM: %d background items left for after the stores" % len(k.bg))
        while k.bg: k.bg.pop(0)()
    else:
        pol = ("", " sc1", " nt", " sc0 sc1")[P["outpol"]]
        k("buffer_store_dwordx4 %s, v213, %s, s94 offen%s" % (v(XP, 4), srd(AUX), pol))
        k("buffer_store_dwordx4 %s, v213, %s, s94 offen offset:64%s" % (v(XP+4, 4), srd(AUX), pol))
        k("buffer_store_dwordx2 %s, v212, %s, s94 offen offset:128%s" % (v(XP+8, 2), srd(AUX), pol))
```

```python
from common import *
PP = dict(xglate=1, m80=1, selft=0, norm0=1)

def px(k, sT):
    k.comment("input row tile: granule copy, row sums, 80-point partial transform")
    norm = PP["norm0"]
    k("s_lshl_b32 s41, s3, 2")
    if PP["selft"]:
        here = k.label("here")
        k("s_getpc_b64 s[50:51]")
        k(here + ":")
        k("v_lshlrev_b32 v8, 6, v0"); k("v_mov_b32 v9, 0")
        k("v_lshl_add_u64 v[8:9], v[8:9], 0, s[50:51]")
        k("global_load_dword v19, v[8:9], off offset:256")
    M = 80
    k("v_lshlrev_b32 v4, 4, v0")
    mode = PP["m80"]
    if mode == 0:
        for l in m80_loads(k, M, 6, 4): k(l)
    else:
        k("s_lshl_b32 s50, s3, 10")
        k("v_add_u32 v6, s50, v4")
        tab_addr(k, 6, 6, TAB["M80"])
        k("s_mov_b32 s52, 4096"); k("s_mov_b32 s53, 0")
        for j in range(4):
            k("s_add_u32 m0, s50, %d" % (49152 + j*4096))
            if j: k("v_lshl_add_u64 v[6:7], v[6:7], 0, s[52:53]")
            k("global_load_lds_dwordx4 v[6:7], off", tag="m80")
    m80r = ["ds_read_b128 %s, v4 offset:%d" % (v(M+4*j, 4), 49152 + j*1024) for j in range(13)]
    k("v_and_b32 v1, 3, v0")
    k("v_lshrrev_b32 v2, 4, v0")
    k("v_bfe_u32 v3, v0, 2, 2")
    k("v_mul_u32_u24 v11, 80, v3")
    k("v_lshl_add_u32 v11, v2, 2, v11")
    k("v_lshl_add_u32 v10, v1, 8, s42")
    for n in range(5):
        for h in range(2):
            r = 64 + 2*n + h
            k("v_add_u32 v9, %d, v11" % (16*n + 320*h))
            k("v_lshrrev_b32 v8, 7, v9")
            k("v_and_b32 v9, 127, v9")
            k("v_lshl_add_u32 v%d, v8, 10, v10" % r)
            k("v_lshl_add_u32 v%d, v9, 1, v%d" % (r, r))
    k("v_lshl_add_u32 v12, v2, 2, v1")
    k("v_add_u32 v13, s41, v3")
    k("v_mul_u32_u24 v14, 288, v12")
    k("v_lshl_add_u32 v14, v13, 4, v14")
    k("v_add_u32 v14, 20480, v14")
    k("v_lshlrev_b32 v15, 9, v12")
    k("v_lshl_add_u32 v15, v13, 4, v15")
    k("s_lshr_b32 s44, s%d, 1" % sT)
    k("s_mul_i32 s44, s44, 40960")
    k("s_and_b32 s45, s%d, 1" % sT)
    k("s_lshl_b32 s45, s45, 8")
    k("s_add_u32 s44, s44, s45")
    k("s_add_u32 s44, s44, 0x%x" % XG[0])
    k("v_and_b32 v1, 15, v0")
    k("v_lshlrev_b32 v1, 4, v1")
    k("s_mul_i32 s47, s3, 576")
    k("s_add_u32 s47, s47, 20480")
    k("v_mul_u32_u24 v5, 2304, v2")
    k("v_add3_u32 v5, v5, v1, s47")
    k("v_lshrrev_b32 v3, 5, v0")
    k("v_mul_u32_u24 v6, 2304, v3")
    k("v_bfe_u32 v3, v0, 4, 1")
    k("v_lshl_add_u32 v6, v3, 3, v6")
    k("v_add3_u32 v6, v6, v1, s47")
    u_addr(k, 7, 8)
    k("s_lshl_b32 s48, s3, 8")
    k("s_add_u32 s48, s48, s%d" % sT)
    k("s_lshl_b32 s48, s48, 6")
    k("s_add_u32 s48, s48, 0x%x" % U[0])
    G = 20
    k.stamp("p_issued")
    k.wait(vm="raw")
    k.stamp("p_raw")
    for n in range(5):
        for h in range(2):
            k("ds_read_b64_tr_b16 %s, v%d" % (v(G+4*n+2*h, 2), 64 + 2*n + h))
    k("v_mov_b32 v16, 0"); k("v_mov_b32 v17, 0")
    k("s_mov_b32 s46, 0x%x" % ONES)
    def copy(n):
        if n: k("s_add_u32 s44, s44, 8192")
        k("buffer_store_dwordx4 %s, v15, %s, s44 offen sc1" % (v(G+4*n, 4), srd(WS)))
    for n in range(5):
        k("ds_write_b128 v14, %s offset:%d" % (v(G+4*n, 4), n*16*288), tag="g")
        if not PP["xglate"]: copy(n)
    def sums():
        for n in range(20):
            k("v_dot2c_f32_bf16 v16, s46, v%d" % (G+n))
            k("v_dot2c_f32_bf16 v17, v%d, v%d" % (G+n, G+n))
        xsum(k, [16, 17], 60, [0, 1, 4, 5])
    if norm:
        sums()
        k("v_mul_f32 v16, 0x%x, v16" % f2u(1.0/D))
        k("v_mul_f32 v17, 0x%x, v17" % f2u(1.0/D))
        k("v_fma_f32 v17, -v16, v16, v17")
        k("v_max_f32 v17, 0, v17")
        k("v_add_f32 v17, 0x%x, v17" % f2u(1e-5))
        k("v_rsq_f32 v17, v17")
        k("v_lshlrev_b32 v13, 2, v13")
        k("ds_write_b32 v13, v17 offset:45056", tag="g")
    k.wait(vm="m80" if mode else None, lg="g")
    k("s_barrier")
    A = 40
    for dd in range(2):
        k("ds_read_b128 %s, v5 offset:%d" % (v(A+10*dd, 4), dd*288))
        k("ds_read_b128 %s, v5 offset:%d" % (v(A+10*dd+4, 4), dd*288 + 9216))
        k("ds_read_b64 %s, v6 offset:%d" % (v(A+10*dd+8, 2), dd*288 + 18432))
    if mode:
        for j in (0, 2, 4, 6, 8, 1, 3, 5, 7, 9, 10, 11, 12): k(m80r[j])
    if norm:
        k("v_lshlrev_b32 v2, 4, v2")
        k("ds_read_b128 v[60:63], v2 offset:45056")
    for dd in range(2):
        for m in dft80_mfmas(A+10*dd, A+10*dd+4, A+10*dd+8, M, 140+20*dd): k(m)
    for dd in range(2):
        if dd: k("s_add_u32 s48, s48, 8192")
        if norm:
            for e in range(0, 20, 2):
                k("v_pk_mul_f32 %s, %s, %s" % (v(140+20*dd+e, 2), v(140+20*dd+e, 2), v(60 + (e & 2), 2)))
        u_stores(k, 140+20*dd, 7, 48, 49)
    if PP["xglate"]:
        for n in range(5): copy(n)
    if not norm:
        sums()
        k("v_lshlrev_b32 v13, 3, v13")
        k("s_lshl_b32 s45, s%d, 7" % sT)
        k("s_add_u32 s45, s45, 0x%x" % ST[0])
        k("s_mov_b64 exec, 0x1111")
        k("buffer_store_dwordx2 v[16:17], v13, %s, s45 offen sc1" % srd(WS))
        k("s_mov_b64 exec, -1")

def pw1(k, sT):
    k.comment("w1 block -> fragment image")
    k.srd(AUX2, pB1, F*2)
    k("s_lshr_b32 s39, s%d, 1" % sT)
    k("s_and_b32 s47, s%d, 1" % sT)
    k("s_lshl_b32 s41, s39, 7")
    k("v_lshrrev_b32 v2, 4, v0")
    k("v_and_b32 v3, 3, v0")
    k("v_bfe_u32 v4, v0, 2, 2")
    k("s_lshr_b32 s43, s3, 1")
    k("s_and_b32 s44, s3, 1")
    k("s_lshl_b32 s45, s43, 5")
    k("s_lshl_b32 s46, s44, 2")
    k("s_add_u32 s45, s45, s46")
    k("s_mov_b32 s46, 8")
    k("v_lshlrev_b32 v11, 4, v0")
    k("s_sub_u32 s52, s39, 16")
    k("s_lshl_b32 s52, s52, 1")
    k("s_add_u32 s52, s52, s43")
    k("s_lshl_b32 s53, s43, 1")
    k("s_cmp_lt_u32 s39, 16")
    k("s_cselect_b32 s52, s39, s52")
    k("s_cselect_b32 s53, s53, 4")
    k("s_add_u32 s53, s53, s44")
    k("s_mul_i32 s52, s52, %d" % LW1)
    k("s_add_u32 s52, s52, 0x%x" % W1P)
    k("s_mul_i32 s54, s53, 20480")
    k("s_add_u32 s54, s54, s52")
    k("s_add_u32 s54, s54, %d" % PT_OFF[0])
    k("s_lshl_b32 s55, s53, 10")
    k("s_add_u32 s55, s55, s52")
    k("s_add_u32 s55, s55, %d" % (EX_OFF + 1024))
    ready = k.label("ready")
    k.settle()
    k("s_cmp_lt_u32 s39, 24")
    k("s_cbranch_scc1 " + ready)
    k("s_lshl_b32 s45, s3, 4")
    k("s_mov_b32 s46, 4")
    k("s_sub_u32 s53, s39, 24")
    k("s_lshl_b32 s53, s53, 2")
    k("s_add_u32 s53, s53, s3")
    k("s_lshl_b32 s53, s53, 2")
    k("v_add_u32 v5, s53, v4")
    k("v_mul_u32_u24 v6, 43, v5")
    k("v_lshrrev_b32 v6, 7, v6")
    k("v_mul_u32_u24 v7, 3, v6")
    k("v_sub_u32 v5, v5, v7")
    k("s_mov_b32 s53, %d" % LW1)
    k("v_mul_lo_u32 v6, v6, s53")
    k("v_lshl_add_u32 v5, v5, 2, v3")
    k("v_lshl_add_u32 v5, v2, 4, v5")
    k("v_lshl_add_u32 v11, v5, 4, v6")
    k("s_mov_b32 s54, 0x%x" % (W1P + S_OFF))
    k("s_mov_b32 s55, 0x%x" % (W1P + EX_OFF))
    k.settle()
    k(ready + ":")
    k("s_mul_i32 s53, s47, 10240")
    k("s_add_u32 s54, s54, s53")
    k("v_mul_lo_u32 v5, v3, s46")
    k("v_add_lshl_u32 v5, v5, s45, 1")
    k("v_lshl_add_u32 v10, v2, 10, v5")
    k("v_lshl_add_u32 v10, v4, 7, v10")
    k("v_mul_lo_u32 v5, v4, s46")
    k("v_add_u32 v5, s45, v5")
    k("v_add_lshl_u32 v5, v5, v3, 1")
    k("buffer_load_ushort v18, v5, %s, s41 offen" % srd(AUX2))
    k("s_lshl_b32 s53, s3, 2")
    k("v_add_u32 v5, s53, v2")
    k("v_lshlrev_b32 v6, 10, v5")
    k("v_lshl_add_u32 v6, v4, 8, v6")
    k("v_lshl_add_u32 v6, v3, 4, v6")
    k("v_cmp_gt_u32 vcc, 10, v5")
    k("v_mov_b32 v7, 0x%x" % OOB)
    k("v_cndmask_b32 v6, v7, v6, vcc")
    k("s_mul_i32 s53, s47, 10240")
    k("s_add_u32 s53, s53, s52")
    k("s_add_u32 s53, s53, %d" % (S_OFF + 192))
    k("s_cmp_lt_u32 s39, 16")
    k("s_cselect_b32 s53, s53, 0x%x" % OOB)
    for r in range(4): k("v_mov_b32 v%d, 0x%x" % (64+r, ONES))
    k("buffer_store_dwordx4 v[64:67], v6, %s, s53 offen sc1" % srd(WS))
    k("v_mov_b32 v16, 0"); k("v_mov_b32 v17, 0")
    k("s_mov_b32 s53, 0x%x" % ONES)
    G = 20
    k.stamp("p_issued")
    k.wait(vm="raw")
    k("s_barrier")
    k.stamp("p_raw")
    for n in range(10):
        for h in range(2):
            k("ds_read_b64_tr_b16 %s, v10 offset:%d" % (v(G+4*n+2*h, 2), n*4096 + h*512))
    for n in range(10):
        if n and n % 4 == 0: k("s_add_u32 s54, s54, 4096")
        k("buffer_store_dwordx4 %s, v11, %s, s54 offen offset:%d sc1" % (v(G+4*n, 4), srd(WS), (n & 3)*1024))
        for jj in range(4):
            k("v_dot2c_f32_bf16 v%d, s53, v%d" % (16 + (jj & 1), G+4*n+jj))
    k("v_add_f32 v60, v16, v17")
    xsum(k, [60], 62, [4, 5])
    k("s_cmp_eq_u32 s47, 0")
    k("s_cselect_b32 s52, -1, 0")
    k("v_cvt_pk_bf16_f32 v61, v60, v60")
    k("v_lshlrev_b32 v62, 16, v61")
    k("v_sub_f32 v62, v60, v62")
    k("v_and_b32 v70, s52, v18")
    k("v_lshlrev_b32 v63, 16, v70")
    k("v_cvt_pk_bf16_f32 v68, v60, v62")
    k("v_cvt_pk_bf16_f32 v69, v60, v63")
    k("v_mov_b32 v71, 0")
    k("v_cmp_gt_u32 vcc, 32, v0")
    for r in range(3):
        k("v_cndmask_b32 v%d, 0, v%d, vcc" % (68+r, 68+r))
    k("s_xor_b32 s52, s52, 0xffff0000")
    k("s_mov_b32 exec_lo, s52")
    k("s_mov_b32 exec_hi, s52")
    k("buffer_store_dwordx4 v[68:71], v11, %s, s55 offen sc1" % srd(WS))
    k("s_mov_b64 exec, -1")

def pw2(k, sT):
    k.comment("w2 row block -> fragment images for both layers")
    k("v_lshrrev_b32 v2, 4, v0")
    k("v_and_b32 v3, 3, v0")
    k("v_bfe_u32 v4, v0, 2, 2")
    k("v_mul_u32_u24 v5, 80, v2")
    k("v_lshl_add_u32 v5, v3, 2, v5")
    k("v_lshl_add_u32 v10, v4, 7, s42")
    for n in range(10):
        r = 70 + n
        k("v_add_u32 v9, %d, v5" % (320*(n // 5) + 16*(n % 5)))
        k("v_lshrrev_b32 v8, 6, v9")
        k("v_and_b32 v9, 63, v9")
        k("v_lshl_add_u32 v%d, v8, 10, v10" % r)
        k("v_lshl_add_u32 v%d, v9, 1, v%d" % (r, r))
    k("s_mov_b32 s43, %d" % LW2)
    k("s_lshl_b32 s44, s3, 8")
    k("v_bfe_u32 v6, v0, 3, 1")
    k("v_and_b32 v7, 7, v0")
    k("v_mul_lo_u32 v7, v7, s43")
    k("v_add_u32 v7, s44, v7")
    k("v_lshl_add_u32 v7, v2, 4, v7")
    k("v_lshl_add_u32 v11, v6, 6, v7")
    k("v_lshl_add_u32 v12, v6, 7, v7")
    k("v_add_u32 v12, 4096, v12")
    k("v_mul_lo_u32 v8, v2, s43")
    k("v_add_u32 v8, s44, v8")
    k("v_bfe_u32 v5, v0, 2, 1")
    k("v_lshl_add_u32 v68, v5, 10, v8")
    k("v_lshl_add_u32 v68, v6, 6, v68")
    k("v_lshl_add_u32 v68, v3, 4, v68")
    k("v_and_b32 v5, 15, v0")
    k("v_lshl_add_u32 v69, v5, 4, v8")
    k("v_add_u32 v69, 4096, v69")
    k("s_mul_i32 s45, s%d, 5120" % sT)
    k("s_add_u32 s46, s45, 0x%x" % W2P[0])
    k("s_add_u32 s47, s45, 0x%x" % W2P[1])
    k("s_add_u32 s48, s45, 0x%x" % (W2P[1] + 4*LW2))
    G = 24
    k.stamp("p_issued")
    k.wait(vm="raw")
    k.stamp("p_raw")
    for jh in range(2):
        for n in range(5):
            for h in range(2):
                k("ds_read_b64_tr_b16 %s, v%d offset:%d" % (v(G+20*jh+4*n+2*h, 2), 70 + 5*jh + n, h*512))
    for jh in range(2):
        for n in range(5):
            r = v(G+20*jh+4*n, 4)
            if n < 4: k("buffer_store_dwordx4 %s, v11, %s, s46 offen offset:%d sc1" % (r, srd(WS), (2*(n >> 1) + jh)*1024 + (n & 1)*128))
            else: k("buffer_store_dwordx4 %s, v12, %s, s46 offen offset:%d sc1" % (r, srd(WS), jh*64))

def pw2_second(k):
    G = 24
    for jh in range(2):
        for n in range(5):
            r = v(G+20*jh+4*n, 4)
            if n < 4: k("buffer_store_dwordx4 %s, v68, %s, s%d offen offset:%d sc1" % (r, srd(WS), 47+jh, (n >> 1)*2048 + (n & 1)*128))
            else: k("buffer_store_dwordx4 %s, v69, %s, s%d offen sc1" % (r, srd(WS), 47+jh))

def pw2_half(k, sT, sJ):
    k.comment("half of a w2 row block -> fragment images for both layers")
    k("v_lshrrev_b32 v2, 4, v0")
    k("v_and_b32 v3, 3, v0")
    k("v_bfe_u32 v4, v0, 2, 2")
    k("v_mul_u32_u24 v5, 80, v2")
    k("v_lshl_add_u32 v5, v3, 2, v5")
    k("v_lshl_add_u32 v10, v4, 7, s42")
    for n in range(5):
        r = 70 + n
        k("v_add_u32 v9, %d, v5" % (320*(n // 5) + 16*(n % 5)))
        k("v_lshrrev_b32 v8, 6, v9")
        k("v_and_b32 v9, 63, v9")
        k("v_lshl_add_u32 v%d, v8, 10, v10" % r)
        k("v_lshl_add_u32 v%d, v9, 1, v%d" % (r, r))
    k("s_mov_b32 s43, %d" % LW2)
    k("s_lshl_b32 s44, s3, 8")
    k("v_bfe_u32 v6, v0, 3, 1")
    k("v_and_b32 v7, 7, v0")
    k("v_mul_lo_u32 v7, v7, s43")
    k("v_add_u32 v7, s44, v7")
    k("v_lshl_add_u32 v7, v2, 4, v7")
    k("v_lshl_add_u32 v11, v6, 6, v7")
    k("v_lshl_add_u32 v12, v6, 7, v7")
    k("v_add_u32 v12, 4096, v12")
    k("v_mul_lo_u32 v8, v2, s43")
    k("v_add_u32 v8, s44, v8")
    k("v_bfe_u32 v5, v0, 2, 1")
    k("v_lshl_add_u32 v68, v5, 10, v8")
    k("v_lshl_add_u32 v68, v6, 6, v68")
    k("v_lshl_add_u32 v68, v3, 4, v68")
    k("v_and_b32 v5, 15, v0")
    k("v_lshl_add_u32 v69, v5, 4, v8")
    k("v_add_u32 v69, 4096, v69")
    k("s_mul_i32 s45, s%d, 5120" % sT)
    k("s_add_u32 s46, s45, 0x%x" % W2P[0])
    k("s_mul_i32 s47, s%d, %d" % (sJ, 4*LW2))
    k("s_add_u32 s47, s47, s45")
    k("s_add_u32 s47, s47, 0x%x" % W2P[1])
    k("s_lshl_b32 s48, s%d, 6" % sJ)
    k("s_add_u32 s48, s48, s46")
    k("s_lshl_b32 s43, s%d, 10" % sJ)
    k("s_add_u32 s46, s46, s43")
    G = 24
    k.wait(vm="raw")
    for n in range(5):
        for h in range(2):
            k("ds_read_b64_tr_b16 %s, v%d offset:%d" % (v(G+4*n+2*h, 2), 70 + n, h*512))
    for n in range(5):
        r = v(G+4*n, 4)
        if n < 4: k("buffer_store_dwordx4 %s, v11, %s, s46 offen offset:%d sc1" % (r, srd(WS), (n >> 1)*2048 + (n & 1)*128))
        else: k("buffer_store_dwordx4 %s, v12, %s, s48 offen sc1" % (r, srd(WS)))
    for n in range(5):
        r = v(G+4*n, 4)
        if n < 4: k("buffer_store_dwordx4 %s, v68, %s, s47 offen offset:%d sc1" % (r, srd(WS), (n >> 1)*2048 + (n & 1)*128))
        else: k("buffer_store_dwordx4 %s, v69, %s, s47 offen sc1" % (r, srd(WS)))

def pmisc(k, sT):
    k.comment("clear counters and accumulators, lay out b2")
    k("s_lshl_b32 s40, s3, 6")
    k("v_add_u32 v1, s40, v0")
    k("v_lshlrev_b32 v2, 4, v1")
    for r in range(4): k("v_mov_b32 v%d, 0" % (4+r))
    k("s_lshl_b32 s41, s%d, 12" % sT)
    k("s_add_u32 s42, s41, 0x%x" % CNT)
    k("buffer_store_dwordx4 v[4:7], v2, %s, s42 offen sc1" % srd(WS))
    k("s_add_u32 s42, s41, 0x%x" % ST[1])
    k("s_cmp_lt_u32 s%d, 4" % sT)
    k("s_cselect_b32 s42, s42, 0x%x" % OOB)
    k("buffer_store_dwordx4 v[4:7], v2, %s, s42 offen sc1" % srd(WS))
    done = k.label("done")
    k("s_cmp_eq_u32 s%d, 4" % sT)
    k.settle()
    k("s_cbranch_scc0 " + done)
    k.srd(AUX, pB2, D*2)
    k("s_mov_b32 s43, 0x%x" % B2P)
    for n in range(5):
        k("v_add_u32 v8, %d, v1" % (256*n))
        k("v_mul_u32_u24 v9, 3277, v8")
        k("v_lshrrev_b32 v9, 16, v9")
        k("v_mul_u32_u24 v10, 20, v9")
        k("v_sub_u32 v10, v8, v10")
        k("v_and_b32 v11, 3, v9")
        k("v_bfe_u32 v12, v9, 2, 3")
        k("v_lshrrev_b32 v13, 3, v10")
        k("v_lshl_add_u32 v13, v13, 2, v11")
        k("v_and_b32 v14, 7, v10")
        k("v_lshrrev_b32 v15, 1, v11")
        k("v_add_u32 v15, 8, v15")
        k("v_and_b32 v16, 1, v11")
        k("v_and_b32 v17, 3, v10")
        k("v_lshl_add_u32 v16, v16, 2, v17")
        k("v_cmp_gt_u32 vcc, 16, v10")
        k("v_cndmask_b32 v13, v15, v13, vcc")
        k("v_cndmask_b32 v14, v16, v14, vcc")
        k("v_cmp_gt_u32 vcc, 32, v9")
        k("v_cndmask_b32 v15, v14, v12, vcc")
        k("v_cndmask_b32 v16, v12, v14, vcc")
        k("v_mul_u32_u24 v16, 80, v16")
        k("v_lshl_add_u32 v16, v13, 3, v16")
        k("v_add_lshl_u32 v16, v16, v15, 1")
        k("buffer_load_ushort v18, v16, %s, 0 offen" % srd(AUX))
        k("v_lshlrev_b32 v8, 2, v8")
        k("v_lshlrev_b32 v18, 16, v18")
        k("buffer_store_dword v18, v8, %s, s43 offen sc1" % srd(WS))
    k.settle()
    k(done + ":")

def p0_dispatch(k, lend):
    l1, l2, l3 = k.label("w1"), k.label("w2"), k.label("misc")
    k.settle()
    st = k.fork()
    k("s_cmp_lt_u32 s2, 128"); k("s_cbranch_scc0 " + l1)
    px(k, 2); k.settle(); k("s_branch " + lend)
    k.restore(st); k(l1 + ":")
    k("s_sub_u32 s38, s2, 128"); k("s_cmp_lt_u32 s38, 54"); k("s_cbranch_scc0 " + l2)
    pw1(k, 38); k.settle(); k("s_branch " + lend)
    k.restore(st); k(l2 + ":")
    k("s_sub_u32 s38, s2, 182"); k("s_cmp_lt_u32 s38, 54"); k("s_cbranch_scc0 " + l3)
    pw2(k, 38); k.settle(); k("s_branch " + lend)
    k.restore(st); k(l3 + ":")
    k("s_sub_u32 s38, s2, 236")
    pmisc(k, 38); k.settle()

def pmisc2(k, sT):
    k.comment("clear counters and accumulators, lay out b2")
    done, j1 = k.label("done"), k.label("j1")
    k("s_lshl_b32 s40, s3, 6")
    k("v_add_u32 v1, s40, v0")
    k.settle()
    st = k.fork()
    k("s_cmp_eq_u32 s%d, 0" % sT)
    k("s_cbranch_scc0 " + j1)
    for r in range(4): k("v_mov_b32 v%d, 0" % (4+r))
    k("v_lshlrev_b32 v2, 8, v1")
    k("s_mov_b32 s42, 0x%x" % CNT)
    k("buffer_store_dword v4, v2, %s, s42 offen sc1" % srd(WS))
    k("v_lshlrev_b32 v2, 4, v1")
    for n in range(4):
        k("s_mov_b32 s42, 0x%x" % (ST[1] + n*4096))
        k("buffer_store_dwordx4 v[4:7], v2, %s, s42 offen sc1" % srd(WS))
    k.srd(AUX2, pDBG, 256)
    k("v_mov_b32 v8, 1")
    k("s_waitcnt vmcnt(0)")
    k("s_barrier")
    k("s_mov_b64 exec, 1")
    k("buffer_store_dword v8, off, %s, 0 sc1" % srd(AUX2))
    k("s_mov_b64 exec, -1")
    k.settle()
    k("s_branch " + done)
    k.restore(st)
    k(j1 + ":")
    k("s_cmp_eq_u32 s%d, 3" % sT)
    k("s_cbranch_scc0 " + done)
    k.srd(AUX, pB2, D*2)
    k("s_mov_b32 s43, 0x%x" % B2P)
    for n in range(5):
        k("v_add_u32 v8, %d, v1" % (256*n))
        k("v_mul_u32_u24 v9, 3277, v8")
        k("v_lshrrev_b32 v9, 16, v9")
        k("v_mul_u32_u24 v10, 20, v9")
        k("v_sub_u32 v10, v8, v10")
        k("v_and_b32 v11, 3, v9")
        k("v_bfe_u32 v12, v9, 2, 3")
        k("v_lshrrev_b32 v13, 3, v10")
        k("v_lshl_add_u32 v13, v13, 2, v11")
        k("v_and_b32 v14, 7, v10")
        k("v_lshrrev_b32 v15, 1, v11")
        k("v_add_u32 v15, 8, v15")
        k("v_and_b32 v16, 1, v11")
        k("v_and_b32 v17, 3, v10")
        k("v_lshl_add_u32 v16, v16, 2, v17")
        k("v_cmp_gt_u32 vcc, 16, v10")
        k("v_cndmask_b32 v13, v15, v13, vcc")
        k("v_cndmask_b32 v14, v16, v14, vcc")
        k("v_cmp_gt_u32 vcc, 32, v9")
        k("v_cndmask_b32 v15, v14, v12, vcc")
        k("v_cndmask_b32 v16, v12, v14, vcc")
        k("v_mul_u32_u24 v16, 80, v16")
        k("v_lshl_add_u32 v16, v13, 3, v16")
        k("v_add_lshl_u32 v16, v16, v15, 1")
        k("buffer_load_ushort v%d, v16, %s, 0 offen" % (70+n, srd(AUX)))
    k("v_lshlrev_b32 v8, 2, v1")
    for n in range(5):
        k("v_lshlrev_b32 v%d, 16, v%d" % (70+n, 70+n))
        if n == 4: k("s_add_u32 s43, s43, 4096")
        k("buffer_store_dword v%d, v8, %s, s43 offen offset:%d sc1" % (70+n, srd(WS), (n & 3)*1024))
    k.settle()
    k(done + ":")
```

```python
import sys, json
from common import *
import p0, cph, ff

HEADER = open(__file__.replace("fused.py", "header.txt")).read()
SPIN = 100000
P = ff.P
P.update(p0.PP); p0.PP = P
P.update(amp=0, ampA=0, ampB=0, pwait=0, ntail=0, touch3=0, hint=1, latew=0, pzfirst=0, nout=0, nout0=6, prelate=0, pzidle=0, gate0=0, ndr=0, nwin=3, nmid=4, nmid0=2, bgap=20, prefirst=1, touch=1, twait=2, ithr=24)

def flag_load(k, bar, vt):
    k("v_and_b32 v%d, 15, v0" % vt)
    k("v_lshlrev_b32 v%d, 8, v%d" % (vt, vt))
    k("v_add_u32 v%d, 0x%x, v%d" % (vt, GBAR + bar*8192 + 4096, vt))
    k("buffer_load_dword v%d, v%d, %s, 0 offen sc1" % (vt+1, vt, srd(WS)))

def flag_wait(k, vt):
    again, ok = k.label("again"), k.label("ok")
    k("s_mov_b32 s91, 0")
    k("v_cmp_eq_u32 vcc, 0, v%d" % (vt+1))
    k("s_cmp_eq_u64 vcc, 0")
    k("s_cbranch_scc1 " + ok)
    st = k.fork()
    k(again + ":")
    k("buffer_load_dword v%d, v%d, %s, 0 offen sc1" % (vt+1, vt, srd(WS)))
    k("s_add_u32 s91, s91, 1")
    k("s_waitcnt vmcnt(0)")
    k("v_cmp_eq_u32 vcc, 0, v%d" % (vt+1))
    k("s_cmp_ge_u32 s91, %d" % SPIN)
    k("s_cbranch_scc1 " + ok)
    k("s_cmp_eq_u64 vcc, 0")
    k("s_cbranch_scc0 " + again)
    k.restore(st)
    k(ok + ":")

def poll(k, bar, vt=18):
    flag_load(k, bar, vt); flag_wait(k, vt)

def arrive(k, sline, swant, vt=16):
    done = k.label("notlast")
    k("s_lshl_b32 s88, s%d, 8" % sline)
    k("s_add_u32 s88, s88, 0x%x" % GBAR)
    k("v_mov_b32 v%d, 1" % vt)
    k("v_mov_b32 v%d, 1" % (vt+1))
    k("s_mov_b64 exec, 1")
    k("buffer_atomic_add v%d, off, %s, s88 sc0 sc1" % (vt, srd(WS)))
    k("v_readfirstlane_b32 s91, v%d" % vt)
    k("s_add_u32 s88, s88, 4096")
    k("s_add_u32 s91, s91, 1")
    k("s_cmp_eq_u32 s91, s%d" % swant)
    k("s_cbranch_scc0 " + done)
    st = k.fork()
    k("buffer_store_dword v%d, off, %s, s88 sc1" % (vt+1, srd(WS)))
    k.restore(st)
    k(done + ":")
    k("s_mov_b64 exec, -1")

def hint_issue(k, bar):
    k("s_and_b32 s55, s2, 15")
    k("s_add_u32 s55, s55, %d" % (32*bar))
    k("s_lshl_b32 s55, s55, 8")
    k("s_add_u32 s55, s55, 0x%x" % GBAR)
    k("s_cmp_eq_u32 s3, 0")
    k("s_cselect_b32 s55, s55, 0x%x" % OOB)
    k("s_cselect_b32 s56, 15, -1")
    k("v_mov_b32 v14, 1"); k("v_mov_b32 v15, 1")
    k("s_mov_b64 exec, 1")
    k("buffer_atomic_add v14, off, %s, s55 sc0 sc1" % srd(WS))
    k("s_mov_b64 exec, -1")

def late_report(k):
    base = min(CNT_W); extra = sum(c > base for c in CNT_W)
    k("s_and_b32 s55, s38, 15")
    k("s_cmp_lt_u32 s55, %d" % extra)
    k("s_cselect_b32 s56, %d, %d" % (base, base-1))
    k("s_add_u32 s55, s55, %d" % (32*B_W))
    k("s_lshl_b32 s55, s55, 8")
    k("s_add_u32 s55, s55, 0x%x" % GBAR)
    k("s_lshl_b32 s57, s3, 2")
    k("s_add_u32 s57, s57, s23")
    k("s_cmp_eq_u32 s57, 1")
    k("s_cselect_b32 s55, s55, 0x%x" % OOB)
    k("s_cselect_b32 s56, s56, -1")
    k("v_mov_b32 v14, 1"); k("v_mov_b32 v15, 1")
    k("s_mov_b64 exec, 1")
    k("buffer_atomic_add v14, off, %s, s55 sc0 sc1" % srd(WS))
    k("s_mov_b64 exec, -1")

def hint_check(k):
    done = k.label("notlast")
    k("v_readfirstlane_b32 s57, v14")
    k("s_add_u32 s55, s55, 4096")
    k("s_cmp_eq_u32 s57, s56")
    k("s_cbranch_scc0 " + done)
    st = k.fork()
    k("s_mov_b64 exec, 1")
    k("buffer_store_dword v15, off, %s, s55 sc1" % srd(WS))
    k("s_mov_b64 exec, -1")
    k.restore(st)
    k(done + ":")

def arrive_on(k, bar, sidx, counts):
    base = min(counts); extra = sum(c > base for c in counts)
    assert counts == [base + (n < extra) for n in range(16)]
    k("s_and_b32 s89, s%d, 15" % sidx)
    k("s_cmp_lt_u32 s89, %d" % extra)
    k("s_cselect_b32 s90, %d, %d" % (base+1, base))
    k("s_add_u32 s89, s89, %d" % (32*bar))
    arrive(k, 89, 90)

def split_waves(k, wave0, others):
    lo, join = k.label("others"), k.label("join")
    k.settle(vm=False)
    st = k.fork()
    k("s_cmp_eq_u32 s3, 0")
    k("s_cbranch_scc0 " + lo)
    wave0(); k.settle()
    k("s_branch " + join)
    k.restore(st)
    k(lo + ":")
    others(); k.settle(vm=False)
    k(join + ":")
    k("s_barrier")
    k.vmq = []; k.lgq = []

def touch_code(k):
    skip, here = k.label("notouch"), k.label("here")
    k("s_sub_u32 s53, s5, 16")
    k("s_lshl_b32 s53, s53, 2")
    k("s_add_u32 s53, s53, s3")
    k("s_lshl_b32 s53, s53, 12")
    k("s_cmp_lt_u32 s53, dft_end-%s-4096" % k.name)
    k("s_cbranch_scc0 " + skip)
    k("s_sub_u32 s54, s6, dft_tables-%s" % k.name)
    k("s_subb_u32 s55, s7, 0")
    k("v_lshl_add_u32 v2, v0, 6, s53")
    k("v_mov_b32 v3, 0")
    k("v_lshl_add_u64 v[2:3], v[2:3], 0, s[54:55]")
    k("global_load_dword v255, v[2:3], off")
    k.vmq.pop()
    k(skip + ":")

B_IN, B_OUT, B_W, B_Z = (0, 2), (1, 3), 4, 5

def setup(k):
    L = {n: k.label(n) for n in ("nx", "col", "w2", "half", "w2c", "issue", "five", "none", "j1", "j2", "j3", "j4", "join")}
    k("v_mov_b32 v68, 0x%x" % OOB); k("v_mov_b32 v69, 0x%x" % OOB)
    k("s_mov_b32 s22, 0"); k("s_mov_b32 s38, 126"); k("s_mov_b32 s61, 0"); k("s_mov_b32 s15, 0x00020000")
    k("s_cmp_lt_u32 s2, 128"); k("s_cbranch_scc0 " + L["nx"])
    k("s_mov_b32 s62, 0"); k("s_mov_b32 s23, 0"); k("s_mov_b32 s60, s2")
    k("s_lshr_b32 s40, s2, 5"); k("s_lshl_b32 s40, s40, 9"); k("s_and_b32 s41, s2, 31"); k("s_add_u32 s40, s40, s41")
    k("s_and_b32 s41, s3, 1"); k("s_lshl_b32 s41, s41, 8"); k("s_add_u32 s40, s40, s41")
    k("s_lshr_b32 s41, s3, 1"); k("s_lshl_b32 s41, s41, 5"); k("s_add_u32 s40, s40, s41")
    k("s_mul_i32 s40, s40, 1280")
    k("s_mul_i32 s42, s3, 5120"); k("s_mov_b32 s43, 81920"); k("s_mov_b32 s44, 4"); k("s_mov_b32 s45, 256")
    k("s_mov_b32 s12, s%d" % pX); k("s_mov_b32 s13, s%d" % (pX+1)); k("s_mov_b32 s14, %d" % XB)
    k("s_branch " + L["issue"])
    k(L["nx"] + ":")
    k("s_mov_b32 s23, 1"); k("s_mov_b32 s44, 3"); k("s_mov_b32 s14, %d" % (D*F*2))
    k("s_cmp_eq_u32 s68, 0"); k("s_cbranch_scc0 " + L["col"])
    k("s_sub_u32 s60, s5, 20"); k("s_mul_i32 s60, s60, 7"); k("s_add_u32 s60, s60, s4"); k("s_sub_u32 s60, s60, 1")
    k("s_sub_u32 s41, s2, 164")
    k("s_cmp_lt_u32 s2, 192"); k("s_cselect_b32 s60, s60, s41")
    k("s_mov_b32 s22, s60"); k("s_mov_b32 s38, s60")
    k("s_cmp_lt_u32 s60, 54"); k("s_cbranch_scc0 " + L["w2"])
    k("s_mov_b32 s62, 1")
    k("s_and_b32 s40, s60, 1"); k("s_lshl_b32 s40, s40, 2"); k("s_add_u32 s40, s40, s3"); k("s_mul_i32 s40, s40, 34560")
    k("s_lshr_b32 s41, s60, 1"); k("s_lshl_b32 s41, s41, 7"); k("s_add_u32 s40, s40, s41")
    k("s_mul_i32 s42, s3, 10240"); k("s_mov_b32 s43, %d" % (80*3456)); k("s_mov_b32 s45, 3456")
    k("s_mov_b32 s12, s%d" % pW1); k("s_mov_b32 s13, s%d" % (pW1+1))
    k("s_branch " + L["issue"])
    k(L["w2"] + ":")
    k("s_mov_b32 s62, 2"); k("s_sub_u32 s60, s60, 54"); k("s_mul_i32 s42, s3, 10240")
    k("s_cmp_lt_u32 s60, 36"); k("s_cbranch_scc1 " + L["w2c"])
    k("s_sub_u32 s60, s60, 36"); k("s_mul_i32 s60, s60, 3")
    k("s_branch " + L["half"])
    k(L["col"] + ":")
    k("s_mov_b32 s62, 4"); k("s_sub_u32 s60, s2, 128")
    k("s_cmp_eq_u32 s60, 3"); k("s_cbranch_scc1 " + L["none"])
    k("s_cmp_eq_u32 s60, 0"); k("s_cselect_b32 s23, 2, 1"); k("s_cbranch_scc1 " + L["none"])
    k("s_add_u32 s41, s5, 12")
    k("s_cmp_lt_u32 s2, 160"); k("s_cselect_b32 s60, s60, s41")
    k(L["half"] + ":")
    k("s_mov_b32 s62, 3"); k("s_add_u32 s38, s60, 90")
    k("s_and_b32 s61, s60, 1"); k("s_lshr_b32 s60, s60, 1"); k("s_add_u32 s60, s60, 36"); k("s_mul_i32 s42, s3, 5120")
    k(L["w2c"] + ":")
    k("s_mul_i32 s40, s60, 40960"); k("s_mul_i32 s41, s3, 10240"); k("s_add_u32 s40, s40, s41")
    k("s_mul_i32 s41, s61, 640"); k("s_add_u32 s40, s40, s41")
    k("s_mov_b32 s43, 1280"); k("s_mov_b32 s45, 128")
    k("s_mov_b32 s12, s%d" % pW2); k("s_mov_b32 s13, s%d" % (pW2+1))
    k(L["issue"] + ":")
    k("v_lshrrev_b32 v1, s44, v0")
    k("v_lshlrev_b32 v2, s44, v1")
    k("v_sub_u32 v2, v0, v2")
    k("v_mul_lo_u32 v1, v1, s43")
    k("v_lshl_add_u32 v1, v2, 4, v1")
    for n in range(10):
        if n == 5:
            k("s_add_u32 s41, s62, -1"); k("s_cmp_lt_u32 s41, 2"); k("s_cbranch_scc0 " + L["none"])
        k("s_add_u32 m0, s42, %d" % (n*1024))
        if n: k("s_add_u32 s40, s40, s45")
        else: k("s_nop 0")
        k("buffer_load_dwordx4 v1, %s, s40 offen lds" % srd(AUX), tag="raw")
    k(L["none"] + ":")
    k.vmq = [("raw", set(), False)]
    st = k.fork()
    k("s_cmp_eq_u32 s62, 0"); k("s_cbranch_scc0 " + L["j1"])
    p0.px(k, 60); k.settle(); k("s_branch " + L["join"])
    k.restore(st); k(L["j1"] + ":")
    if P["touch"]: touch_code(k)
    st = k.fork()
    k("s_cmp_eq_u32 s62, 1"); k("s_cbranch_scc0 " + L["j2"])
    p0.pw1(k, 60); k.settle(); k("s_branch " + L["join"])
    k.restore(st); k(L["j2"] + ":")
    k("s_cmp_eq_u32 s62, 2"); k("s_cbranch_scc0 " + L["j3"])
    p0.pw2(k, 60); k.settle(); k("s_branch " + L["join"])
    k.restore(st); k(L["j3"] + ":")
    k("s_cmp_eq_u32 s62, 3"); k("s_cbranch_scc0 " + L["j4"])
    p0.pw2_half(k, 60, 61); k.settle(); k("s_branch " + L["join"])
    k.restore(st); k(L["j4"] + ":")
    p0.pmisc2(k, 60); k.settle()
    k(L["join"] + ":")
    k.vmq = [("st", set(), False)]; k.lgq = []

def arrive_setup(k, weights=True):
    other, skip = k.label("wjob"), k.label("nojob")
    init_check(k)
    st = k.fork()
    k("s_cmp_eq_u32 s23, 0")
    k("s_cbranch_scc0 " + other)
    arrive_on(k, 0, 2, [8]*16)
    k("s_branch " + skip)
    k.restore(st)
    k(other + ":")
    if weights:
        k("s_cmp_eq_u32 s23, 2")
        k("s_cbranch_scc1 " + skip)
        arrive_on(k, B_W, 38, CNT_W)
    k(skip + ":")

def by_wave(k, fns):
    join = k.label("join")
    k.settle(vm=False)
    st = k.fork()
    groups = {}
    for w, f in enumerate(fns): groups.setdefault(id(f), (f, []))[1].append(w)
    items = list(groups.values())
    for n, (f, ws) in enumerate(items):
        nxt = k.label("next")
        k.restore(st)
        last = n == len(items) - 1
        if not last:
            assert len(ws) == 1
            k("s_cmp_eq_u32 s3, %d" % ws[0]); k("s_cbranch_scc0 " + nxt)
        f(); k.settle(vm=False)
        if not last:
            k("s_branch " + join); k(nxt + ":")
    k(join + ":")
    k("s_barrier")
    k.vmq = []; k.lgq = []

CNT_W = [sum(1 for j in range(127) if j & 15 == n) for n in range(16)]
CNT_Z = [sum(1 for j in range(92) if j & 15 == n) for n in range(16)]
CNT_OUT = [sum(1 for j in range(164) if j & 15 == n) + 4 for n in range(16)]

def build():
    k = Kern(NAME + "_kernel", 256, 256, lds=LDS_BYTES, vgpr=256, agpr=256, sgpr=102)
    k.stamp_regs = list(range(70, 90))
    prologue(k)
    k.protected = {6, 7, 8, 9, 10, 11, 20, 21} | set(range(24, 38))
    k.stamp_regs = list(range(70, 90))
    k.stamp("start")
    cph.role_flag(k)
    if P["latew"]:
        nt = k.label("notab")
        k("s_cmp_eq_u32 s68, 0"); k("s_cbranch_scc1 " + nt)
        cph.pre(k); k.vmq = []
        k(nt + ":")
    setup(k)
    k.stamp("p_end")
    if k.only: k("s_mov_b32 s100, s70"); k.stamp_names = []
    k.flush_stamps(STAMP, 0)
    k.protected = {6, 7, 8, 9, 10, 11, 22, 23, 32, 33, 34, 35, 36, 37}
    k.stamp_regs = list(range(39, 47)) + [49] + list(range(24, 32)) + [20, 21, 100]
    ff.roles(k)
    cph.role_flag(k)
    assert not (P["latew"] and (P["xs"] & 1 or P["gate0"]))
    if P["flip"]: H[1] = H[0]
    nothing = lambda: None
    k.bg_gap = P["bgap"]
    for layer in range(2):
        k.dbg_layer = layer
        bin_, bout = B_IN[layer], B_OUT[layer]
        idle, go = k.label("idle"), k.label("go")
        tail_idx = list(range(11 - P["ntail"], 11))
        xs = P["xs"] >> layer & 1
        byidle = xs and layer and P["pzidle"]
        dr_idx = list(range(P["ndr"])) if layer else []
        win_idx = list(range(len(dr_idx), len(dr_idx) + P["nwin"])) if layer else []
        n0 = len(dr_idx) + len(win_idx)
        mid_idx = list(range(n0, n0 + (P["nmid"] if layer else P["nmid0"]*P["gate0"])))
        n0 += len(mid_idx)
        out_idx = list(range(n0, n0 + (P["nout"] if layer else P["nout0"])))
        w2out = lambda: [l for idx in out_idx for l in ff.w2_loads(k, idx)]
        g1_idx = [i for i in range(11) if i not in mid_idx + win_idx + dr_idx + out_idx and (layer == 0 or i not in tail_idx)]
        w2dr = lambda: [l for idx in dr_idx for l in ff.w2_loads(k, idx)]
        w2mid = lambda: [l for idx in mid_idx for l in ff.w2_loads(k, idx)]
        w2win = lambda: [l for idx in win_idx for l in ff.w2_loads(k, idx)]
        add_own = lambda bar: arrive_on(k, bar, 2, [16]*16)
        add_out = lambda: add_own(bout)
        poll_out = lambda: poll(k, bout)
        poll_w = lambda: poll(k, B_W)
        if k.stamps_on and not (k.only and layer): k("s_mov_b32 s101, 0")
        ff.pre_s(k, layer)
        if layer == 0 or not tail_idx: ff.pre_w(k, layer)
        k.settle(vm=False)
        entry = k.fork()
        k("s_cmp_eq_u32 s68, 0")
        k("s_cbranch_scc1 " + idle)
        latew = layer == 0 and P["latew"]
        if latew: k("v_lshlrev_b32 v15, 4, v0")
        else: cph.pre(k)
        def pre2():
            cph.offsets(k, layer); cph.pre2(k)
            k("v_lshlrev_b32 v1, 4, v0")
        if not P["prelate"]: pre2()
        for l in w2dr(): l()
        if latew:
            nw = k.label("nodrain")
            st = k.fork()
            k("s_cmp_eq_u32 s23, 1"); k("s_cbranch_scc1 " + nw)
            k.wait(vm="st")
            k.restore(st)
            k(nw + ":")
        else: k.wait(vm="tab")
        k.stamp("drained")
        k("s_barrier")
        def w0():
            if layer == 0: arrive_setup(k, not latew)
            else: add_own(bin_)
            if P["prelate"]: pre2()
            if xs and not byidle: cph.poison_out(k, 20)
            for l in w2win(): l()
            flag_load(k, bin_, 18)
            cph.tables(k)
            flag_wait(k, 18)
        def w123():
            if P["prelate"]: pre2()
            if xs and not byidle: cph.poison_out(k, 20)
            for l in w2win(): l()
            if layer:
                ff.w1_dma3(k, 0, 66, "w1")
                k("s_mov_b32 s89, 66"); ff.w1_block(k, 89)
            cph.tables(k)
            k.wait(vm="px")
        split_waves(k, w0, w123)
        k.stamp("c_go")
        def tail_blocks():
            k("s_add_u32 s89, s3, 63"); ff.w1_block(k, 89)
        tch = lambda va: ff.touch_w2(k, layer, va) if P["touch3"] >> layer & 1 else []
        gated = layer == 0 and P["gate0"]
        late = tch(12) + (w2mid() if layer else (ff.w1_dma(k, 0, 16, "w1") + [tail_blocks] + w2mid() if gated else []))
        cph.main(k, late, (lambda: flag_load(k, B_Z if layer else B_W, 14), lambda: flag_wait(k, 14), gated) if gated or byidle else None,
                 (lambda: hint_issue(k, bout), lambda: hint_check(k), P["hint"]) if xs else
                 ((lambda: late_report(k), lambda: hint_check(k), 3) if latew else None), layer == 0 and P["norm0"])
        k.stamp("c_stored")
        ungated = layer == 0 and not gated
        if ungated: flag_load(k, B_W, 22)
        ff.pre_v(k)
        if not xs:
            k.wait(vm="cst"); k.stamp("c_drained"); k("s_barrier")
        def rest():
            if ungated: flag_wait(k, 22)
            ff.w1_dma3(k, 0 if ungated else 67, 147 if ungated else 148, "w1")
            for l in w2out(): l()
        def first():
            if not xs: add_out()
            if ungated: flag_wait(k, 22)
            for l in w2out(): l()
            poll_out()
        split_waves(k, first, rest)
        k("s_branch " + go)
        k.restore(entry)
        k(idle + ":")
        def second():
            sk = k.label("nosecond")
            st = k.fork()
            k("s_sub_u32 s88, s22, 54"); k("s_cmp_lt_u32 s88, 36"); k("s_cbranch_scc0 " + sk)
            p0.pw2_second(k); k.settle()
            k.restore(st)
            k(sk + ":")
        early = P["ndr"] or P["nwin"] or P["touch2"] or P["ntail"]
        need = not (layer and P["flip"])
        def marks():
            if layer == 0 and early:
                second(); ff.poison_first(k)
            elif need:
                for l in ff.poison(k, H[layer], 32*HBLK): l()
        for l in w2dr(): l()
        if layer == 0 and P["pzfirst"]:
            k("v_lshlrev_b32 v1, 4, v0")
            pzs = ff.poison(k, H[layer], 32*HBLK)
            for l in pzs[:P["pzfirst"]]: l()
        k.wait(vm="st" if layer == 0 else "fin"); k("s_barrier")
        split_waves(k, (lambda: arrive_setup(k)) if layer == 0 else (lambda: add_own(bin_)), nothing)
        if layer == 0 and P["pzfirst"]:
            k("s_lshl_b32 s90, s22, 2"); k("s_add_u32 s90, s90, s3"); k("s_mul_i32 s90, s90, %d" % (19*1024))
            k("s_add_u32 s90, s90, %d" % ((P["pzfirst"]-1)//4*4096))
            for l in pzs[P["pzfirst"]:]: l()
            if early: second()
            ff.pre_v(k)
            k("s_waitcnt vmcnt(0)"); k("s_barrier")
        else:
            ff.pre_v(k)
            marks()
            if layer == 0 and early:
                flag_load(k, B_W, 22); k("s_waitcnt vmcnt(0)"); flag_wait(k, 22); k("s_barrier")
            elif need:
                k("s_waitcnt vmcnt(0)"); k("s_barrier")
        k.stamp("i_poison")
        if layer == 0 and early and not P["pzfirst"]:
            split_waves(k, add_out, lambda: ff.w1_dma3(k, 0, 147, "w1"))
            for l in tch(21) + w2mid() + w2out(): l()
        elif layer == 0:
            if early: split_waves(k, lambda: (add_out(), poll_w()), nothing)
            else: split_waves(k, lambda: (add_out(), poll_w(), second()), second)
            k.stamp("i_wready")
            for l in tch(21) + ff.w1_dma(k, 0, 37, "w1") + w2mid() + w2out(): l()
        else:
            if byidle:
                for l in ff.poison(k, XG[3], XB): l()
                k.wait(vm="pz"); k("s_barrier")
            split_waves(k, lambda: (arrive_on(k, B_Z, 22, CNT_Z) if byidle else None, add_out(), poll(k, bin_)), lambda: (ff.w1_dma3(k, 66, 147, "w1"), ff.w1_dma3(k, 0, 66, "w1")))
            for l in tch(21) + w2win() + w2mid() + w2out(): l()
        k.stamp("i_fetched")
        split_waves(k, poll_out, nothing)
        k(go + ":")
        k.stamp("g_go")
        pending = ff.g1(k, layer, g1_idx, True)
        ff.g2(k, layer, pending, tail_idx if layer == 0 else [])
        k.stamp("issued_end")
        if layer == 1 and k.stamps_on: k("s_waitcnt vmcnt(0)")
        k.stamp("end")
        k.stamp_val("#retry", 101)
        if k.only and layer == 1:
            k.stamp("last"); k.stamp_val("entry", 100); k.stamp_val("#lastretry", 101)
        if layer or not k.only: k.flush_stamps(STAMP, 1 + layer)
        if k.stamps_on and layer == 0 and not k.only: k.vmq.append(("fin", set(), False)); k("s_nop 0")
    if k.dbg_mode:
        lab = k.label("nodbg")
        k("s_waitcnt vmcnt(0)")
        k.dbg_layer = 2; k.dbg_mode = ("end",); k.dbg_regs = k.dbg_regs[:len(k.dbg_list)] + [20]; k.stamp("end")
        k("s_or_b32 s98, s2, s3"); k("s_cmp_eq_u32 s98, 0"); k("s_cbranch_scc0 " + lab)
        A, B, mult = P["ampA"], P["ampB"], P["amp"]
        k("s_sub_u32 s90, s%d, s%d" % (k.dbg_regs[B], k.dbg_regs[A]))
        k("s_mul_i32 s90, s90, %d" % mult)
        k("s_min_u32 s90, s90, 50000")
        sp = k.label("amp")
        k(sp + ":")
        k("s_memrealtime s[98:99]"); k("s_waitcnt lgkmcnt(0)")
        k("s_sub_u32 s98, s98, s%d" % k.dbg_regs[len(k.dbg_list)-1])
        k("s_cmp_lt_u32 s98, s90"); k("s_cbranch_scc1 " + sp)
        k(lab + ":")
        print(k.dbg_list)
    finish(k)
    return k

def init_check(k):
    again, ok = k.label("again"), k.label("ok")
    k.srd(AUX2, pDBG, 256)
    k("s_mov_b32 s91, 0")
    k(again + ":")
    k("buffer_load_dword v16, off, %s, 0 sc1" % srd(AUX2))
    k("s_add_u32 s91, s91, 1")
    k("s_waitcnt vmcnt(0)")
    k("v_readfirstlane_b32 s88, v16")
    k("s_cmp_ge_u32 s91, %d" % SPIN)
    k("s_cbranch_scc1 " + ok)
    k("s_cmp_eq_u32 s88, 1")
    k("s_cbranch_scc0 " + again)
    k(ok + ":")

if __name__ == "__main__":
    out = sys.argv[1]
    for a_ in sys.argv[2:]:
        if a_ == "stamps": Kern.stamps_on = True
        elif a_.startswith("wsoff="): WSOFF[0] = int(a_[6:]) << 20
        elif a_ == "reuse": U[1] = U[0]; XG[2] = XG[0]; XG[3] = XG[1]
        elif a_ == "ends": Kern.stamps_on = True; Kern.only = ("entry", "last", "#lastretry")
        elif a_.startswith("few="): Kern.stamps_on = True; Kern.few = True; Kern.only = ("entry", "last", "#lastretry") + tuple(a_[4:].split(","))
        elif a_ == "dbg2": Kern.dbg_mode = ("entry", "start"); Kern.dbg_regs = [100, 101]
        elif a_ == "dbg": Kern.dbg_mode = ("start", "drained", "c_go", "c_drained", "g_go", "g1_end", "g2_mfma", "end")
        else:
            n, val = a_.split("="); assert n in P, n; P[n] = eval(val)
    k = build()
    open(out, "w").write(assemble(HEADER, [k], [k], TABTXT + "dft_end:\n"))
    print(k.count, "nops", k.nops)
    if Kern.stamps_on: json.dump(k.stamp_log, open(out + ".stamps.json", "w"))
```

```python
from emit import *
from layout import *
import tables
TAB, TABTXT = tables.build()

sB, sW, sX, sI = 2, 3, 4, 5
sTAB = 6
WS, AUX, AUX2 = 8, 12, 16
pX, pW1, pB1, pW2, pB2, pOUT, pDBG, pWS = 20, 24, 26, 28, 30, 32, 34, 36
ONES = 0x3f803f80
WSOFF = [0]

def srd(s): return "s[%d:%d]" % (s, s+3)
def v(a, n=1): return "v%d" % a if n == 1 else "v[%d:%d]" % (a, a+n-1)
def a(x, n=1): return "a%d" % x if n == 1 else "a[%d:%d]" % (x, x+n-1)

def prologue(k, ngrid=256, ws=True):
    k("s_cmp_ge_u32 s2, %d" % ngrid)
    k("s_cbranch_scc1 L_%s_end" % k.name)
    k.stamp("entry")
    k("s_load_dwordx2 s[20:21], s[0:1], 0")
    k("s_load_dwordx8 s[24:31], s[0:1], 48")
    k("s_load_dwordx4 s[32:35], s[0:1], 80")
    k("s_load_dwordx2 s[36:37], s[0:1], 96")
    k("v_lshrrev_b32 v1, 6, v0")
    k("v_and_b32 v0, 63, v0")
    k("v_readfirstlane_b32 s3, v1")
    k("s_and_b32 s4, s2, 7")
    k("s_lshr_b32 s5, s2, 3")
    lab = k.label("pc")
    k("s_getpc_b64 s[6:7]")
    k(lab + ":")
    k("s_add_u32 s6, s6, dft_tables-%s" % lab)
    k("s_addc_u32 s7, s7, 0")
    if ws: ws_srd(k)

def ws_srd(k):
    if WSOFF[0]:
        k("s_add_u32 s36, s36, 0x%x" % WSOFF[0]); k("s_addc_u32 s37, s37, 0")
    k.srd(WS, pWS, WS_USED)

def finish(k):
    k("L_%s_end:" % k.name)
    k("s_endpgm")
    for t in k.tails: t()

def tab_addr(k, vd, voff, const):
    k("v_add_u32 v%d, 0x%x, v%d" % (vd, const, voff))
    k("v_mov_b32 v%d, 0" % (vd+1))
    k("v_lshl_add_u64 %s, %s, 0, s[6:7]" % (v(vd, 2), v(vd, 2)))

def m80_loads(k, dst, vtmp, vl16, kind="v"):
    tab_addr(k, vtmp, vl16, TAB["M80"] + 4096)
    tab_addr(k, vtmp+2, vl16, TAB["M80"] + 12288)
    R = v if kind == "v" else a
    out = []
    for n in range(13):
        base, off = (vtmp, n*1024 - 4096) if n < 8 else (vtmp+2, n*1024 - 12288)
        out.append("global_load_dwordx4 %s, %s, off offset:%d" % (R(dst+4*n, 4), v(base, 2), off))
    return out

def dft80_mfmas(A0, A1, A2, M, Dd, kind="v"):
    R = v if kind == "v" else a
    out = []
    for ot in range(5):
        out.append("v_mfma_f32_16x16x32_bf16 %s, %s, %s, 0" % (v(Dd+4*ot, 4), v(A0, 4), R(M+8*ot, 4)))
    for ot in range(5):
        out.append("v_mfma_f32_16x16x32_bf16 %s, %s, %s, %s" % (v(Dd+4*ot, 4), v(A1, 4), R(M+8*ot+4, 4), v(Dd+4*ot, 4)))
    for ot in range(5):
        out.append("v_mfma_f32_16x16x16_bf16 %s, %s, %s, %s" % (v(Dd+4*ot, 4), v(A2, 2), R(M+40+2*ot, 2), v(Dd+4*ot, 4)))
    return out

def u_addr(k, vd, vt):
    k("v_bfe_u32 v%d, v0, 1, 3" % vd)
    k("v_lshlrev_b32 v%d, 16, v%d" % (vd, vd))
    k("v_and_b32 v%d, 1, v0" % vt)
    k("v_lshl_add_u32 v%d, v%d, 5, v%d" % (vd, vt, vd))
    k("v_lshrrev_b32 v%d, 4, v0" % vt)
    k("v_lshl_add_u32 v%d, v%d, 3, v%d" % (vd, vt, vd))

def u_stores(k, Dd, vU, s0, stmp, tag="ust"):
    for ot in range(5):
        k("v_cvt_pk_bf16_f32 v%d, v%d, v%d" % (Dd+4*ot, Dd+4*ot, Dd+4*ot+1))
        k("v_cvt_pk_bf16_f32 v%d, v%d, v%d" % (Dd+4*ot+1, Dd+4*ot+2, Dd+4*ot+3))
        if ot: k("s_add_u32 s%d, s%d, 0x%x" % (stmp, s0, ot*8*65536))
        k("buffer_store_dwordx2 %s, v%d, %s, s%d offen sc1" % (v(Dd+4*ot, 2), vU, srd(WS), stmp if ot else s0), tag=tag)

def xsum(k, vx, vt, bits):
    for b in bits:
        for n, x in enumerate(vx):
            if b < 2:
                perm = "[1,0,3,2]" if b == 0 else "[2,3,0,1]"
                k("v_add_f32_dpp v%d, v%d, v%d quad_perm:%s row_mask:0xf bank_mask:0xf" % (x, x, x, perm))
            else:
                k("v_mov_b32 v%d, v%d" % (vt+n, x))
        if b >= 2:
            for n, x in enumerate(vx):
                k("v_permlane%d_swap_b32 v%d, v%d" % (16 if b == 4 else 32, x, vt+n))
            for n, x in enumerate(vx):
                k("v_add_f32 v%d, v%d, v%d" % (x, x, vt+n))

def retouch(k, lo, hi, va, dst, s0, first=0):
    k("s_lshl_b32 s%d, s5, 2" % s0)
    k("s_add_u32 s%d, s%d, s3" % (s0, s0))
    if first: k("s_sub_u32 s%d, s%d, %d" % (s0, s0, first))
    k("s_lshl_b32 s%d, s%d, 12" % (s0, s0))
    k("s_min_u32 s%d, s%d, %s-%s-4096" % (s0, s0, hi, lo))
    k("v_lshl_add_u32 v%d, v0, 6, s%d" % (va, s0))
    k("v_mov_b32 v%d, 0" % (va+1))
    k("s_sub_u32 s%d, s6, dft_tables-%s" % (s0, lo))
    k("s_subb_u32 s%d, s7, 0" % (s0+1))
    k("v_lshl_add_u64 %s, %s, 0, s[%d:%d]" % (v(va, 2), v(va, 2), s0, s0+1))
    k("global_load_dword %s, %s, off" % (dst, v(va, 2)))
```

```python
from common import *

sKP, sC, sRH, sCB = 70, 71, 72, 73
sXO, sW1O, sHS, sHS3 = 74, 75, 76, 77
sCNT, sCNTP = 78, 79
sHB = [80, 81, 82, 83]
sWB = [84, 85, 86, 87]
sT0, sT1, sT2 = 88, 89, 90
sSPIN = 91
vL, vA0, vA1, vA2, vX, vH3, vBQ, vSIG, vONE, vBS, vRW = 1, 2, 3, 4, 5, 6, 7, 8, 9, 10, 11
vHL = 12
SB, TMP = 16, 24
ACCP, ACCS, GR = 32, 80, 88
XBR = 96
RING, NRING = 220, 9
G2ACC, HR, RB, RT = 16, 96, 216, 236
SPIN_LIMIT = 100000
NS = 7
M80R = 40

P = dict(rt=2, dbl=0, exp=0, flip=1, xs=2, outpol=0, J=3, touch2=1, slp=0, map42=1, la=14, nx=3, epi=3, gap=4, wgap=4, hgap=4, hpre=2, slots=(1, 5, 9, 13, 17), h0=32, hB=0, hC=3, thr=60)

def roles(k):
    if P["map42"]:
        k("s_lshr_b32 s70, s4, 1")
        k("s_lshl_b32 s70, s70, 2")
        k("s_lshr_b32 s88, s5, 3")
        k("s_add_u32 s70, s70, s88")
        k("s_and_b32 s88, s4, 1")
        k("s_and_b32 s89, s5, 7")
        k("s_lshl_b32 s71, s88, 3")
        k("s_add_u32 s71, s71, s89")
        k("s_lshr_b32 s72, s89, 2")
        k("s_and_b32 s73, s89, 3")
        k("s_lshl_b32 s88, s88, 2")
        k("s_add_u32 s73, s73, s88")
    else:
        k("s_lshr_b32 s70, s5, 4")
        k("s_lshl_b32 s88, s4, 1")
        k("s_add_u32 s70, s70, s88")
        k("s_and_b32 s71, s5, 15")
        k("s_lshr_b32 s72, s71, 3")
        k("s_and_b32 s73, s71, 7")
    k("s_mul_i32 s75, s71, %d" % LW1)
    k("s_lshl_b32 s69, s3, 10")
    k("s_add_u32 s75, s75, s69")
    k("s_add_u32 s75, s75, 0x%x" % W1P)

def w1_dma3(k, lo, hi, tag, nw=3):
    k("s_add_u32 s89, s75, %d" % ((lo-4+nw)*1024))
    k("s_add_u32 s88, s69, %d" % ((lo-4+nw)*1024))
    for j in range((hi - lo)//nw):
        k("s_add_u32 m0, s88, %d" % (j*nw*1024))
        if j: k("s_add_u32 s89, s89, %d" % (nw*1024))
        else: k("s_nop 0")
        k("buffer_load_dwordx4 v%d, %s, s89 offen lds" % (vL, srd(WS)), tag=tag)
        if j >= P["thr"]: k("s_waitcnt vmcnt(%d)" % P["thr"])

def w1_dma(k, lo, hi, tag):
    out = []
    for j in range(lo, hi):
        def one(j=j):
            k("s_add_u32 m0, s69, %d" % (j*4096))
            k("s_add_u32 s88, s75, %d" % (j*4096))
            k("buffer_load_dwordx4 v%d, %s, s88 offen lds" % (vL, srd(WS)), tag=tag)
        out.append(one)
    return out

def pre_v(k):
    k.comment("feed-forward: addresses")
    k("v_lshlrev_b32 v%d, 4, v0" % vL)
    k("v_add_u32 v%d, %d, v%d" % (vA0, PT_OFF[0], vL))
    k("v_add_u32 v%d, %d, v%d" % (vA1, PT_OFF[2], vL))
    k("v_add_u32 v%d, %d, v%d" % (vA2, PT_OFF[4], vL))
    k("v_and_b32 v16, 15, v0")
    k("v_lshrrev_b32 v17, 4, v0")
    k("v_lshlrev_b32 v18, 4, v16")
    k("v_lshl_add_u32 v%d, v17, 9, v18" % vX)
    k("s_mul_i32 s88, s71, 3")
    k("v_add_u32 v19, s88, v17")
    k("v_and_b32 v20, 1, v19")
    k("v_lshl_add_u32 v18, v20, 3, v18")
    k("v_bfe_u32 v20, v19, 1, 2")
    k("v_lshl_add_u32 v18, v20, 8, v18")
    k("v_lshrrev_b32 v20, 3, v19")
    k("v_add_u32 v20, 48, v20")
    k("v_lshl_add_u32 v18, v20, 12, v18")
    k("v_add_u32 v19, 1, v17")
    k("v_lshrrev_b32 v19, 2, v19")
    k("v_lshl_add_u32 v%d, v19, 30, v18" % vH3)
    k("v_lshrrev_b32 v19, 2, v16")
    k("v_lshl_add_u32 v19, v19, 4, v16")
    k("v_lshlrev_b32 v%d, 2, v19" % vBQ)
    k("v_add_lshl_u32 v%d, v16, 48, 2" % vBS)
    k("s_lshl_b32 s88, s3, 7")
    k("s_add_u32 s88, s88, %d" % L_RS2)
    k("v_lshl_add_u32 v%d, v16, 2, s88" % vRW)
    k("v_min_u32 v16, 1, v0")
    k("v_lshlrev_b32 v%d, 30, v16" % vSIG)
    k("v_mov_b32 v%d, 1" % vONE)
    for r, m in ((1, 0x22222222), (2, 0x44444444), (3, 0x88888888)):
        k("s_mov_b32 s%d, 0x%x" % (90+2*r, m)); k("s_mov_b32 s%d, 0x%x" % (91+2*r, m))
    for lam in range(4):
        k("s_add_u32 s88, s3, %d" % (lam+1))
        k("s_and_b32 s88, s88, 3")
        k("s_lshl_b32 s88, s88, 10")
        k("v_add_u32 v%d, s88, v%d" % (vHL+lam, vL))

def pre_s(k, layer):
    k("s_lshl_b32 s88, s70, 2")
    k("s_add_u32 s88, s88, s3")
    k("s_mul_i32 s74, s88, 40960")
    k("s_add_u32 s74, s74, 0x%x" % XG[2*layer+1])
    k("s_lshr_b32 s89, s88, 1")
    k("s_mul_i32 s77, s89, %d" % HBLK)
    k("s_and_b32 s90, s3, 1")
    k("s_lshl_b32 s90, s90, 11")
    k("s_add_u32 s77, s77, s90")
    k("s_add_u32 s77, s77, 0x%x" % H[layer])
    k("s_lshl_b32 s90, s71, 13")
    k("s_add_u32 s76, s77, s90")
    k("s_lshl_b32 s89, s70, 1")
    k("s_add_u32 s89, s89, s72")
    k("s_mul_i32 s89, s89, %d" % HBLK)
    k("s_add_u32 s89, s89, 0x%x" % H[layer])
    step_bases(k, 89, 4096, sHB)

def step_bases(k, base, unit, regs):
    k("s_mul_i32 s88, s3, %d" % (8*unit)); k("s_add_u32 s%d, s%d, s88" % (regs[0], base))
    k("s_mul_i32 s88, s3, %d" % unit); k("s_add_u32 s88, s88, %d" % (48*unit)); k("s_add_u32 s%d, s%d, s88" % (regs[1], base))
    k("s_add_u32 s%d, s%d, %d" % (regs[2], regs[1], 4*unit))
    k("s_cmp_lt_u32 s3, 2"); k("s_cselect_b32 s%d, s%d, 0x%x" % (regs[2], regs[2], OOB))
    k("s_mul_i32 s88, s3, %d" % (4*unit)); k("s_add_u32 s88, s88, %d" % (32*unit)); k("s_add_u32 s%d, s%d, s88" % (regs[3], base))

def pre_w(k, layer):
    k("s_mul_i32 s89, s73, %d" % LW2)
    k("s_add_u32 s89, s89, 0x%x" % W2P[layer])
    step_bases(k, 89, 5120, sWB)

def pre(k, layer):
    pre_s(k, layer); pre_v(k)

def step_base(idx):
    if idx < 4: return 0, 2*idx
    if idx == 4: return 1, 0
    if idx == 5: return 2, 0
    if idx < 10: return 0, 2*(idx-6) + 1
    return 3, idx-10

def w2_reg(idx, dt):
    return a(20*(idx % 12)+4*dt, 4)

def w2_loads(k, idx):
    b, n = step_base(idx)
    out = []
    for dt in range(5):
        def one(dt=dt):
            if dt == 0: k("s_add_u32 s89, s%d, %d" % (sWB[b], n*5120))
            if dt == 4: k("s_add_u32 s89, s%d, %d" % (sWB[b], n*5120 + 4096))
            k("buffer_load_dwordx4 %s, v%d, %s, s89 offen offset:%d" % (w2_reg(idx, dt), vL, srd(WS), (dt & 3)*1024))
        out.append(one)
    return out

def poison(k, off, nbytes, vz=64):
    n = -(-nbytes // (368*1024))
    for r in range(4): k("v_mov_b32 v%d, -1" % (vz+r))
    k("s_add_u32 s%d, s%d, 0x%x" % (AUX, pWS, off))
    k("s_addc_u32 s%d, s%d, 0" % (AUX+1, pWS+1))
    k("s_mov_b32 s%d, %d" % (AUX+2, nbytes))
    k("s_mov_b32 s%d, 0x00020000" % (AUX+3))
    k("s_lshl_b32 s90, s22, 2")
    k("s_add_u32 s90, s90, s3")
    k("s_mul_i32 s90, s90, %d" % (n*1024))
    out = []
    for j in range(n):
        def one(j=j):
            if j and j % 4 == 0: k("s_add_u32 s90, s90, 4096")
            k("buffer_store_dwordx4 %s, v%d, %s, s90 offen offset:%d sc1" % (v(vz, 4), vL, srd(AUX), (j & 3)*1024), tag="pz")
        out.append(one)
    return out

def poison_first(k, vz=64):
    for r in range(4): k("v_mov_b32 v%d, -1" % (vz+r))
    k("s_add_u32 s%d, s%d, 0x%x" % (AUX, pWS, H[0]))
    k("s_addc_u32 s%d, s%d, 0" % (AUX+1, pWS+1))
    k("s_mov_b32 s%d, %d" % (AUX+2, 32*HBLK))
    k("s_mov_b32 s%d, 0x00020000" % (AUX+3))
    k("s_lshl_b32 s90, s22, 2")
    k("s_add_u32 s90, s90, s3")
    k("s_sub_u32 s89, s90, 216")
    k("s_max_i32 s89, s89, 0")
    k("s_min_u32 s89, s89, 144")
    k("s_mul_i32 s90, s90, 23")
    k("s_mul_i32 s89, s89, 10")
    k("s_sub_u32 s90, s90, s89")
    k("s_lshl_b32 s90, s90, 10")
    done = k.label("marked")
    for j in range(23):
        if j == 13:
            k("s_sub_u32 s88, s22, 54"); k("s_cmp_lt_u32 s88, 36"); k("s_cbranch_scc1 " + done)
        if j and j % 4 == 0: k("s_add_u32 s90, s90, 4096")
        k("buffer_store_dwordx4 %s, v%d, %s, s90 offen offset:%d sc1" % (v(vz, 4), vL, srd(AUX), (j & 3)*1024))
    k(done + ":")

def poison_h(k, layer, vz):
    for r in range(4): k("v_mov_b32 v%d, -1" % (vz+r))
    k("s_mul_i32 s90, s2, 3")
    k("s_add_u32 s90, s90, s3")
    k("s_mul_i32 s90, s90, 9216")
    k("s_add_u32 s90, s90, 0x%x" % (H[layer] - 9216))
    for j in range(9):
        if j and j % 4 == 0: k("s_add_u32 s90, s90, 4096")
        k("buffer_store_dwordx4 %s, v%d, %s, s90 offen offset:%d sc1" % (v(vz, 4), vL, srd(WS), (j & 3)*1024), tag="ph")

def w1_block(k, sblk):
    k("s_lshl_b32 s88, s%d, 10" % sblk)
    k("s_mov_b32 m0, s88")
    k("s_sub_u32 s88, s88, s69")
    k("s_add_u32 s88, s88, s75")
    k("buffer_load_dwordx4 v%d, %s, s88 offen lds" % (vL, srd(WS)), tag="w1")

def x_check(s):
    b = XBR + 8*s
    return ["v_max3_u32 v31, v%d, v%d, v%d" % (b, b+1, b+2), "v_max3_u32 v31, v31, v%d, v%d" % (b+3, b+4),
            "v_max3_u32 v31, v31, v%d, v%d" % (b+5, b+6), "v_max_u32 v31, v31, v%d" % (b+7), "v_cmp_eq_u32 vcc, -1, v31"]

def x_branch(k, s, last):
    retry, back = k.label("xretry"), k.label("xback")
    k("s_cbranch_vccnz " + retry)
    k(back + ":")
    def tail():
        loop = k.label("xloop")
        k.vmq = []; k.lgq = []; k.hist = []
        k(retry + ":")
        k("s_mov_b32 s54, 0")
        k(loop + ":")
        for n in range(2*s, 2*last + 2):
            if n == 2*s or n % 4 == 0: k("s_add_u32 s53, s52, %d" % ((n >> 2)*4096))
            k("buffer_load_dwordx4 %s, v%d, %s, s53 offen offset:%d sc1" % (v(XBR+4*n, 4), vX, srd(WS), ((n >> 1) & 1)*2048 + (n & 1)*256))
        k("s_add_u32 s54, s54, 1")
        if k.stamps_on: k("s_add_u32 s101, s101, 0x100")
        k("s_waitcnt vmcnt(0)")
        for l in x_check(s): k(l)
        k("s_cmp_ge_u32 s54, %d" % SPIN_LIMIT)
        k("s_cbranch_scc1 " + back)
        k("s_nop 2")
        k("s_cbranch_vccnz " + loop)
        k("s_branch " + back)
    k.tails.append(tail)

def poison_next(k, vz):
    out = ["v_mov_b32 v%d, -1" % (vz+r) for r in range(4)]
    out += ["s_lshl_b32 s95, s2, 2", "s_add_u32 s95, s95, s3", "s_mul_i32 s95, s95, 6912", "s_add_u32 s95, s95, 0x%x" % H[1]]
    for j in range(7):
        if j == 4: out.append("s_add_u32 s95, s95, 4096")
        if j == 6: out.append("s_mov_b32 exec_hi, 0xffff")
        out.append("buffer_store_dwordx4 %s, v%d, %s, s95 offen offset:%d sc1" % (v(vz, 4), vL, srd(WS), (j & 3)*1024))
    return out

def touch_next(k):
    def setup():
        k("s_and_b32 s97, s70, 3")
        k("s_lshl_b32 s97, s97, 1")
        k("s_add_u32 s97, s97, s72")
        k("s_lshl_b32 s97, s97, 2")
        k("s_add_u32 s97, s97, s3")
        k("s_mul_i32 s97, s97, 8640")
        k("s_mul_i32 s96, s73, %d" % LW2)
        k("s_add_u32 s96, s96, s97")
        k("s_add_u32 s96, s96, 0x%x" % W2P[1])
        k("v_lshlrev_b32 v11, 6, v0")
    def one(j):
        if j: k("s_add_u32 s96, s96, %d" % (4096 if j == 1 else 448))
        k("buffer_load_dword v%d, v11, %s, s96 offen" % ((208, 210, 211)[j], srd(WS)))
    return [setup] + [lambda j=j: one(j) for j in range(3)]

def touch_w2(k, layer, va):
    def one(j):
        if j == 0:
            k("s_and_b32 s60, s70, 3")
            k("s_lshl_b32 s60, s60, 1")
            k("s_add_u32 s60, s60, s72")
            k("s_lshl_b32 s60, s60, 2")
            k("s_add_u32 s60, s60, s3")
            k("s_mul_i32 s60, s60, 8640")
            k("s_mul_i32 s61, s73, %d" % LW2)
            k("s_add_u32 s60, s60, s61")
            k("s_add_u32 s60, s60, 0x%x" % W2P[layer])
            k("v_lshlrev_b32 v%d, 6, v0" % va)
        else: k("s_add_u32 s60, s60, %d" % (4096 if j == 1 else 448))
        k("buffer_load_dword a%d, v%d, %s, s60 offen" % (252+j, va, srd(WS)))
    return [lambda j=j: one(j) for j in range(3)]

def w2_stage(k):
    out = []
    for idx in (11, 12, 13):
        b, n = step_base(idx)
        for dt in range(5):
            def one(idx=idx, dt=dt, b=b, n=n):
                if idx == 11 and dt == 0:
                    k("s_mul_i32 s91, s3, 15360"); k("s_add_u32 s91, s91, %d" % S_OFF)
                j = (idx-11)*5 + dt
                if j % 4 == 0:
                    k("s_add_u32 m0, s91, %d" % (j*1024))
                    k("s_add_u32 s89, s%d, %d" % (sWB[b], n*5120 + dt*1024))
                k("buffer_load_dwordx4 v%d, %s, s89 offen offset:%d lds" % (vL, srd(WS), (j % 4)*1024), tag="w2s")
            out.append(one)
    return out

def h_loads(k, idx):
    if P["exp"] & 2: return []
    b, n = step_base(idx)
    out = []
    for lam in range(4):
        def one(lam=lam):
            if lam == 0: k("s_add_u32 s90, s%d, %d" % (sHB[b], n*4096))
            k("buffer_load_dwordx4 %s, v%d, %s, s90 offen sc1" % (v(HR+16*(idx % NS)+4*lam, 4), vHL+lam, srd(WS)), tag="h%d" % idx)
        out.append(one)
    return out

def x_load(k, n):
    s, tt = n >> 1, n & 1
    if n and n % 4 == 0: k("s_add_u32 s74, s74, 4096")
    k("buffer_load_dwordx4 %s, v%d, %s, s74 offen offset:%d sc1" % (v(XBR+4*n, 4), vX, srd(WS), (s & 1)*2048 + tt*256), tag="x%d" % n)

def signal(k, stage, tag):
    def f():
        if stage == 0: k.stamp("sigA_pre")
        k.wait(vm=tag)
        k("buffer_atomic_add v%d, v%d, %s, s%d offen offset:%d sc1" % (vONE, vSIG, srd(WS), sCNT, stage*256))
        k.stamp("sig%d" % stage)
    return f

def poll_issue(k, stage, vp):
    return lambda: k("buffer_load_dword v%d, off, %s, s%d offset:%d sc1" % (vp, srd(WS), sCNTP, stage*256))

def poll_check(k, vp, soff, off, want):
    ok, again = k.label("ok"), k.label("again")
    k("v_readfirstlane_b32 s88, v%d" % vp)
    k("s_mov_b32 s%d, 0" % sSPIN)
    k("s_cmp_ge_u32 s88, %d" % want)
    k("s_cbranch_scc1 " + ok)
    st = k.fork()
    k(again + ":")
    k("buffer_load_dword v%d, off, %s, s%d offset:%d sc1" % (vp, srd(WS), soff, off))
    k("s_add_u32 s%d, s%d, 1" % (sSPIN, sSPIN))
    k("s_waitcnt vmcnt(0)")
    if P["slp"]: k("s_sleep %d" % P["slp"])
    k("v_readfirstlane_b32 s88, v%d" % vp)
    k("s_cmp_ge_u32 s%d, %d" % (sSPIN, SPIN_LIMIT))
    k("s_cbranch_scc1 " + ok)
    k("s_cmp_ge_u32 s88, %d" % want)
    k("s_cbranch_scc0 " + again)
    k.restore(st)
    k(ok + ":")
    k.stamp_val("#spin%d" % (off // 256), sSPIN)

def relu_ops(flip):
    return ("v_mul_f32 v%d, -v%d, |v%d|", "v_pk_max_u16 v%d, v%d, s79") if flip else ("v_mul_f32 v%d, v%d, |v%d|", "v_pk_max_i16 v%d, v%d, 0")

def pair_epilogue(p, tag, flip):
    out = []; mul, mx = relu_ops(flip)
    for tt in range(2):
        b = ACCP + 16*p + 8*tt
        for r in range(8): out.append(mul % (b+r, b+r, b+r))
        for r in range(4): out.append("v_cvt_pk_bf16_f32 v%d, v%d, v%d" % (b+r, b+2*r, b+2*r+1))
        for r in range(4): out.append(mx % (b+r, b+r))
        out.append(("buffer_store_dwordx4 %s, v%d, %s, s%d offen offset:%d sc1" % (v(b, 4), vL, srd(WS), sHS, tt*1024), tag))
        if P["dbl"]: out.append(("buffer_store_dwordx4 %s, v%d, %s, s%d offen offset:%d" % (v(b, 4), vL, srd(WS), sHS, tt*1024), tag))
    if P["exp"] & 4: out = [x for x in out if not isinstance(x, tuple)]
    if P["exp"] & 16: out = [x for x in out if isinstance(x, tuple)]
    return out

def short_epilogue(tag, flip):
    out = []; mul, mx = relu_ops(flip)
    for tt in range(2):
        b = ACCS + 4*tt
        for r in range(4): out.append(mul % (b+r, b+r, b+r))
        for r in range(2): out.append("v_cvt_pk_bf16_f32 v%d, v%d, v%d" % (b+r, b+2*r, b+2*r+1))
        for r in range(2): out.append(mx % (b+r, b+r))
        out.append(("buffer_store_dwordx2 %s, v%d, %s, s%d offen offset:%d sc1" % (v(b, 2), vH3, srd(WS), sHS3, tt*1024), tag))
    return out

def stats_ops():
    c = f2u(1.0/D)
    out = []
    both = lambda f: [f(GR+4*tt, SB+4*tt, TMP+4*tt, tt) for tt in range(2)]
    out += both(lambda G, S_, T, tt: "ds_bpermute_b32 v%d, v%d, v%d" % (T, vBS, ACCS+4*tt))
    for r in range(1, 4):
        out += both(lambda G, S_, T, tt: "v_cndmask_b32 v%d, v%d, v%d, s[%d:%d]" % (G, G, G+r, 90+2*r, 91+2*r))
    out += both(lambda G, S_, T, tt: "ds_bpermute_b32 v%d, v%d, v%d" % (G+1, vBQ, G))
    for f in (
        lambda G, S_, T, tt: "v_mov_b32 v%d, 0" % (S_+3),
        lambda G, S_, T, tt: "v_mul_f32 v%d, 0x%x, v%d" % (T, f2u(-1.0/D), T),
        lambda G, S_, T, tt: "v_cvt_pk_bf16_f32 v%d, v%d, v%d" % (S_, T, T),
        lambda G, S_, T, tt: "v_lshlrev_b32 v%d, 16, v%d" % (T+1, S_),
        lambda G, S_, T, tt: "v_sub_f32 v%d, v%d, v%d" % (T+1, T, T+1),
        lambda G, S_, T, tt: "v_mul_f32 v%d, 0x%x, v%d" % (G, c, G+1),
        lambda G, S_, T, tt: "v_fma_f32 v%d, -v%d, v%d, v%d" % (G, T, T, G),
        lambda G, S_, T, tt: "v_max_f32 v%d, 0, v%d" % (G, G),
        lambda G, S_, T, tt: "v_add_f32 v%d, 0x%x, v%d" % (G, f2u(1e-5), G),
        lambda G, S_, T, tt: "v_sqrt_f32 v%d, v%d" % (T+2, G),
        lambda G, S_, T, tt: "v_rcp_f32 v%d, v%d" % (G, G),
        lambda G, S_, T, tt: "v_cvt_pk_bf16_f32 v%d, v%d, v%d" % (S_+1, T+1, T+2),
        lambda G, S_, T, tt: "v_and_b32 v%d, 0xffff0000, v%d" % (T+3, S_+1),
        lambda G, S_, T, tt: "v_sub_f32 v%d, v%d, v%d" % (T+3, T+2, T+3),
        lambda G, S_, T, tt: "v_cvt_pk_bf16_f32 v%d, v%d, 0" % (S_+2, T+3),
        lambda G, S_, T, tt: "ds_write_b32 v%d, v%d offset:%d" % (vRW, G, tt*64)):
        out += both(f)
    return out

def extract_setup(k):
    return ["s_lshr_b32 s78, s73, 1", "s_mov_b32 s79, 0x05040100", "s_bitcmp0_b32 s73, 0", "s_cselect_b32 s79, s79, 0x07060302",
            "v_and_b32 v24, 15, v0", "v_mul_u32_u24 v24, 160, v24", "v_lshrrev_b32 v25, 4, v0", "v_lshl_add_u32 v24, v25, 2, v24",
            "s_and_b32 s88, s3, 1", "s_mul_i32 s88, s88, 5120", "s_add_u32 s88, s88, %d" % L_RES,
            "s_lshr_b32 s91, s3, 1", "s_cmp_eq_u32 s91, s72", "s_cselect_b32 s88, s88, 0x30000",
            "v_add_u32 v24, s88, v24", "v_add_u32 v25, 2560, v24"]

def extract_block(k, u, tt):
    def f():
        k("s_set_gpr_idx_on s78, gpr_idx(SRC0,SRC1)")
        for e in range(2):
            x = XBR + 16*(u+e) + 4*tt
            k("v_perm_b32 v%d, v%d, v%d, s79" % (26+2*tt+e, x+8, x))
        k("s_set_gpr_idx_off")
        k("ds_write2_b32 v%d, v%d, v%d offset0:%d offset1:%d" % (24+tt, 26+2*tt, 27+2*tt, 4*u, 4*u+4))
    return f

def put(k, x):
    if callable(x): x()
    elif isinstance(x, tuple): k(x[0], tag=x[1])
    else: k(x)

def g1(k, layer, w2_idx, late_image):
    k.comment("first GEMM")
    flip = layer and P["flip"]; xs = P["xs"] >> layer & 1
    LA = P["la"]
    groups = [[(6, s), (0, s), (1, s)] for s in range(20)]
    G2_ = len(groups)
    nx = P["nx"]
    half = lambda p, a_, b_: [[(t, s) for s in (2*u, 2*u+1) for t in (2*p, 2*p+1)] for u in range(a_, b_)]
    groups += half(1, 0, nx) + [[("x", 0), ("x", 1), ("x", 6)]] + half(1, nx, 10)
    G3_ = len(groups)
    groups += [[("x", 2), ("x", 3)]] + half(2, 0, 10) + [[("x", 4), ("x", 5)]]
    frags = [(g, f) for g, fs in enumerate(groups) for f in fs]
    slot = lambda n: a(RING + 4*(n % NRING), 4)
    def read(n):
        g, (t, s) = frags[n]
        if t == "x": txt = "v%d offset:%d" % (vL, EX_OFF + ((s+1) % 7)*1024)
        elif t == 6: txt = "v%d offset:%d" % (vL, S_OFF + s*1024)
        else: txt = "v%d offset:%d" % ((vA0, vA1, vA2)[t >> 1], (t & 1)*20480 + s*1024)
        return ("ds_read_b128 %s, %s" % (slot(n), txt), "g%d" % g)
    def acc(t, tt): return v(ACCS+4*tt, 4) if t == 6 else v(ACCP+16*(t >> 1)+8*tt+4*(t & 1), 4)
    mm = []
    for n, (g, (t, s)) in enumerate(frags):
        for tt in range(2):
            if t == "x": mm.append((g, n, "v_mfma_f32_16x16x32_bf16 %s, %s, %s, %s" % (acc(s, tt), slot(n), v(SB+4*tt, 4), acc(s, tt))))
            else: mm.append((g, n, "v_mfma_f32_16x16x32_bf16 %s, %s, %s, %s" % (acc(t, tt), slot(n), v(XBR+8*s+4*tt, 4), acc(t, tt) if s else "0")))
        if g < G2_ and t == 1:
            for tt in range(2):
                x = v(XBR+8*s+4*tt, 4)
                mm.append((g, None, "v_mfma_f32_16x16x32_bf16 %s, %s, %s, %s" % (v(GR+4*tt, 4), x, x, v(GR+4*tt, 4) if s else "0")))
    first = {}
    for i, (g, n, _) in enumerate(mm): first.setdefault(g, i)
    M2, M3, END = first[G2_], first[G3_], len(mm)
    MX = first[G2_ + nx]
    fill = {i: [] for i in range(END)}
    def spread(ops, i0, num, den=1):
        for j, op in enumerate(ops): fill[min(i0 + j*den//num, END-1)].append(op)
        return i0 + len(ops)*den//num + 1
    for n in range(LA, 40):
        fill[8*((n-LA) >> 1) + 1 + 4*(n & 1)].append(lambda n=n: x_load(k, n))
    if layer == 1:
        spread(extract_setup(k), 2, 1, 1)
        for j in range(5):
            for tt in range(2): fill[32*j + 32 + (3*tt + 2 if j < 4 else tt)].append(extract_block(k, 2*j, tt))
    st = stats_ops()
    spread(st, M2 + 3, len(st), MX - M2 - 5)
    nex = spread((["s_mov_b32 s79, 0x80008000"] if flip else []) + pair_epilogue(0, "hA", flip) + short_epilogue("hA", flip), MX + 8, P["epi"], 2)
    spread(["s_add_u32 s76, s76, 4096"] + pair_epilogue(1, "hB", flip), M3 + 9, P["epi"], 2)
    w2l = [l for idx in w2_idx for l in w2_loads(k, idx)]
    if P["exp"] & 1: w2l = []
    gap = P["gap"]
    i = 8*((40-LA) >> 1) + 4
    for l in w2l:
        fill[min(i, END-1)].append(l); i += P["wgap"]
    i = max(i, M2 + 2)
    for l in ([] if P["exp"] & 1 else w2_stage(k)):
        fill[min(i, END-1)].append(l); i += gap
    hl = [l for idx in range(6) for l in h_loads(k, idx)]
    nin = 0
    i = max(i, M3 + P["h0"])
    for j, l in enumerate(hl):
        i = max(i, M3 + 4 + 8*((j >> 2) + 1))
        if i >= END: break
        fill[i].append(l); nin += 1; i += P["hgap"]
    k("s_mov_b32 s52, s74")
    for n in range(LA): x_load(k, n)
    for s_ in range(1, 20):
        fill[8*s_ - (8 if xs else 1)].append(lambda s_=s_: k.wait(vm="x%d" % (2*s_+1)))
        if xs: spread(x_check(s_), 8*s_ - 7, 1, 1)
    k.wait(vm="x1")
    k("s_barrier")
    nread = 0
    while nread < NRING - 3: put(k, read(nread)); nread += 1
    last_use = {n: i for i, (g, n, _) in enumerate(mm) if n is not None}
    for i, (g, n, txt) in enumerate(mm):
        if i == 0: k.stamp("g1_start")
        if i == 8: k.stamp("g1_x0")
        if i == M2: k.stamp("g1_p1")
        if i == M3: k.stamp("g1_p2")
        if i == first[g]:
            if g == 0 and xs:
                for l in x_check(0): k(l)
                k("s_nop 1")
            if g < G2_ and xs: x_branch(k, g, min(19, g - 1 + LA//2) if g else LA//2 - 1)
            k.wait(lg="g%d" % g)
            if g == G2_: k("s_barrier")
        k(txt)
        if (i & 1) == 0 and nread < len(frags) and (nread < NRING or last_use[nread - NRING] <= i):
            put(k, read(nread)); nread += 1
        for x in fill[i]: put(k, x)
    assert nread == len(frags)
    k("s_lshl_b32 s88, s71, 12")
    k("s_add_u32 s76, s77, s88")
    k("s_add_u32 s76, s76, %d" % (32*4096))
    for x in pair_epilogue(2, "hC", flip): put(k, x)
    first_step = max(0, min(len(hl), 4*P["hpre"]) - nin)
    for x in hl[nin:nin+first_step]: put(k, x)
    return hl[nin+first_step:]

def check_ops(idx, vt, flip):
    b = HR + 16*(idx % NS)
    op3, op2 = ("v_min3_u32", "v_min_u32") if flip else ("v_or3_b32", "v_or_b32")
    out = ["%s v%d, v%d, v%d, v%d" % (op3, vt, b, b+1, b+2)]
    for r in range(3, 15, 2): out.append("%s v%d, v%d, v%d, v%d" % (op3, vt, vt, b+r, b+r+1))
    out.append("%s v%d, v%d, v%d" % (op2, vt, vt, b+15))
    if not flip: out.append("v_cmp_gt_i32 vcc, 0, v%d" % vt)
    elif idx == 5: out.append("v_cmp_gt_u32 vcc, s78, v%d" % vt)
    else: out.append("v_cmp_le_i32 vcc, 0, v%d" % vt)
    return out

def check_branch(k, idx, vt, flip):
    if P["exp"] & 6: return
    retry, back = k.label("retry"), k.label("back")
    k("s_cbranch_vccnz " + retry)
    k(back + ":")
    def tail():
        b_, n = step_base(idx)
        loop = k.label("loop")
        k.vmq = []; k.lgq = []; k.hist = []
        k(retry + ":")
        k("s_mov_b32 s%d, 0" % sSPIN)
        k("s_add_u32 s88, s%d, %d" % (sHB[b_], n*4096))
        k(loop + ":")
        for lam in range(4):
            k("buffer_load_dwordx4 %s, v%d, %s, s88 offen sc1" % (v(HR+16*(idx % NS)+4*lam, 4), vHL+lam, srd(WS)))
        k("s_add_u32 s%d, s%d, 1" % (sSPIN, sSPIN))
        if k.stamps_on: k("s_add_u32 s101, s101, 1")
        k("s_waitcnt vmcnt(0)")
        for l in check_ops(idx, vt, flip): k(l)
        k("s_cmp_ge_u32 s%d, %d" % (sSPIN, SPIN_LIMIT))
        k("s_cbranch_scc1 " + back)
        k("s_nop 2")
        k("s_cbranch_vccnz " + loop)
        k("s_branch " + back)
    k.tails.append(tail)

def m80_dma(k):
    def one(j):
        if j == 0:
            k("v_add_u32 v6, s69, v%d" % vL)
            tab_addr(k, 6, 6, TAB["M80"])
            k("s_mov_b32 s96, 4096"); k("s_mov_b32 s97, 0")
        k("s_add_u32 m0, s69, %d" % (L_M80 + j*4096))
        if j: k("v_lshl_add_u64 v[6:7], v[6:7], 0, s[96:97]")
        k("global_load_lds_dwordx4 v[6:7], off", tag="m80")
    return [lambda j=j: one(j) for j in range(4)]

def g2(k, layer, pending, tail_idx=()):
    k.comment("second GEMM")
    k.stamp("g1_end")
    flip = layer and P["flip"]
    if flip:
        k("s_cmp_lt_u32 s3, 2"); k("s_cselect_b32 s78, 0x80000000, 0")
    real = k
    setup = []
    def k(text, tag=None): setup.append((text, tag) if tag else text)
    vE = 248
    k("v_lshrrev_b32 v%d, 4, v0" % vE)
    def b2_dma():
        real("s_mul_i32 s74, s73, 320")
        real("s_add_u32 s74, s74, 0x%x" % (B2P + layer*2560))
        real("s_add_u32 m0, s69, %d" % L_B2)
        real("s_mov_b64 exec, 0xfffff")
        real("buffer_load_dwordx4 v%d, %s, s74 offen lds" % (vL, srd(WS)), tag="b2")
        real("s_mov_b64 exec, -1")
    setup.append(b2_dma)
    k("s_add_u32 s74, s69, %d" % L_B2)
    k("v_mul_u32_u24 v%d, 80, v%d" % (vE+1, vE))
    k("v_add_u32 v%d, s74, v%d" % (vE+1, vE+1))
    k("v_and_b32 v%d, 15, v0" % (vE+2))
    k("s_lshl_b32 s92, s70, 3")
    k("s_lshl_b32 s74, s72, 2")
    k("s_add_u32 s92, s92, s74")
    k("s_add_u32 s92, s92, s3")
    pre_ops = []
    if layer == 0:
        k("v_lshlrev_b32 v%d, 4, v%d" % (vE+3, vE+2))
        k("v_lshl_add_u32 v%d, v%d, 12, v%d" % (vE+4, vE, vE+3))
        k("v_lshrrev_b32 v%d, 5, v0" % (vE+5))
        k("v_lshl_add_u32 v%d, v%d, 12, v%d" % (vE+5, vE+5, vE+3))
        k("v_bfe_u32 v%d, v0, 4, 1" % (vE+3))
        k("v_lshl_add_u32 v%d, v%d, 3, v%d" % (vE+5, vE+3, vE+5))
        k("s_lshr_b32 s74, s92, 1")
        k("s_mul_i32 s93, s74, 40960")
        k("s_and_b32 s74, s92, 1")
        k("s_lshl_b32 s74, s74, 8")
        k("s_add_u32 s93, s93, s74")
        k("s_lshl_b32 s74, s73, 9")
        k("s_add_u32 s93, s93, s74")
        k("s_add_u32 s74, s93, 0x%x" % XG[1])
        k("buffer_load_dwordx4 %s, v%d, %s, s74 offen sc1" % (v(RT, 4), vE+4, srd(WS)))
        k("s_add_u32 s74, s93, 0x%x" % (XG[1] + 16384))
        k("buffer_load_dwordx4 %s, v%d, %s, s74 offen sc1" % (v(RT+4, 4), vE+4, srd(WS)))
        k("s_add_u32 s74, s93, 0x%x" % (XG[1] + 32768))
        k("buffer_load_dwordx2 %s, v%d, %s, s74 offen sc1" % (v(RT+8, 2), vE+5, srd(WS)))
        src = [(RT + (e >> 1), e & 1) for e in range(20)]
    else:
        k("v_mul_u32_u24 v%d, 160, v%d" % (vE+3, vE+2))
        k("s_mul_i32 s74, s3, 2560")
        k("s_add_u32 s74, s74, %d" % L_RES)
        k("v_add_u32 v%d, s74, v%d" % (vE+3, vE+3))
        k("v_lshl_add_u32 v%d, v%d, 4, v%d" % (vE+4, vE, vE+3))
        k("v_lshrrev_b32 v%d, 5, v0" % (vE+5))
        k("v_lshl_add_u32 v%d, v%d, 4, v%d" % (vE+5, vE+5, vE+3))
        k("ds_read_b128 %s, v%d" % (v(RT, 4), vE+4))
        k("ds_read_b128 %s, v%d offset:64" % (v(RT+4, 4), vE+4))
        k("ds_read_b128 %s, v%d offset:128" % (v(RT+8, 4), vE+5))
        k("v_and_b32 v%d, 16, v0" % (vE+4))
        k("v_xor_b32 v%d, 16, v%d" % (vE+4, vE+4))
        src = [(RT + 4*(e >> 3) + (e & 3), (e >> 2) & 1) for e in range(16)]
        for r in range(4):
            pre_ops.append("v_lshlrev_b32 v%d, v%d, v%d" % (RT+8+r, vE+4, RT+8+r))
            src.append((RT + 8 + r, 1))
    k("s_lshl_b32 s74, s72, 2")
    k("s_add_u32 s74, s74, s3")
    k("s_lshl_b32 s74, s74, 6")
    k("s_add_u32 s74, s74, %d" % L_RS2)
    k("v_lshl_add_u32 v%d, v%d, 2, s74" % (vE+3, vE+2))
    k("ds_read_b32 v%d, v%d" % (vE+6, vE+3))
    for e, (r, hi) in enumerate(src):
        pre_ops.append("v_and_b32 v%d, 0xffff0000, v%d" % (vE+7, r) if hi else "v_lshlrev_b32 v%d, 16, v%d" % (vE+7, r))
        pre_ops.append("v_add_f32 v%d, v%d, v%d" % (RB+e, RB+e, vE+7))
    red = []
    for lam in range(3):
        red.append(2+lam)
        k("s_add_u32 s74, s3, %d" % (lam+1))
        k("s_and_b32 s74, s74, 3")
        k("s_mul_i32 s74, s74, 15360")
        k("s_add_u32 s74, s74, %d" % (L_RED + lam*5120))
        k("v_add_u32 v%d, s74, v%d" % (2+lam, vL))
    k("s_mul_i32 s74, s3, 15360")
    k("s_add_u32 s74, s74, %d" % L_RED)
    k("v_add_u32 v5, s74, v%d" % vL)
    if layer == 0:
        u_addr(k, 212, 213)
        k("s_lshl_b32 s74, s73, 7")
        k("s_add_u32 s74, s74, s92")
        k("s_lshl_b32 s74, s74, 6")
        k("s_add_u32 s94, s74, 0x%x" % U[1])
        k("v_lshlrev_b32 v214, 3, v%d" % (vE+2))
        k("v_lshl_add_u32 v214, v%d, 2, v214" % vE)
        k("s_lshl_b32 s95, s92, 7")
        k("s_add_u32 s95, s95, 0x%x" % ST[1])
    else:
        for j, src_ in enumerate(("s%d" % pOUT, "s%d" % (pOUT+1), "0x%x" % XB, "0x00020000")): k("s_mov_b32 s%d, %s" % (AUX+j, src_))
        k("v_and_b32 v212, 7, v0")
        k("v_bfe_u32 v213, v0, 3, 1")
        k("v_lshl_add_u32 v212, v212, 1, v213")
        k("v_mul_u32_u24 v212, 40960, v212")
        k("v_lshl_add_u32 v213, v%d, 4, v212" % vE)
        k("v_lshl_add_u32 v212, v%d, 3, v212" % vE)
        k("s_lshr_b32 s74, s92, 5")
        k("s_lshl_b32 s74, s74, 9")
        k("s_and_b32 s94, s92, 31")
        k("s_add_u32 s74, s74, s94")
        k("s_mul_i32 s74, s74, 1280")
        k("s_mul_i32 s94, s73, 160")
        k("s_add_u32 s94, s94, s74")
    k = real
    def mf(idx, lam, dt):
        d = v(G2ACC+20*lam+4*dt, 4)
        return "v_mfma_f32_16x16x32_bf16 %s, %s, %s, %s" % (d, w2_reg(idx, dt), v(HR+16*(idx % NS)+4*lam, 4), d if idx else "0")
    J = P["J"]; NK = 14 - J
    F_ = {(idx, n): [] for idx in range(NK) for n in range(20)}
    pb, pc = P["hB"], P["hC"]
    def checked(idx):
        def ready():
            assert k.tagcount.pop("h%d" % idx) == 4
            k.wait(vm="h%d" % idx)
        if P["exp"] & 6: return [] if P["exp"] & 2 else [ready]
        return [ready] + check_ops(idx, 10, flip)
    for idx in range(1, NK+1):
        for j, l in enumerate(checked(idx)): F_[idx-1, 7+j].append(l)
    slots = [(idx, n) for idx in range(NK) for n in P["slots"]]
    used = set()
    def place(ops, after):
        for op in ops:
            sl = next(x for x in slots if x[0] > after and x not in used)
            used.add(sl); F_[sl].append(op)
    place(pending, -1)
    for idx in range(6, 14): place(h_loads(k, idx), max(pb if idx < 10 else pc, idx - NS))
    if layer == 0: place(m80_dma(k), 0)
    F_[0, 19].append(lambda: (k("s_waitcnt lgkmcnt(0)"), k("s_barrier")))
    quiet = (0, 2, 3, 4, 6, 17, 18, 19)
    spots = [(idx, n) for idx in range(1, 6) for n in quiet]
    for j, l in enumerate(setup): F_[spots[j*len(spots)//len(setup)]].append(l)
    F_[1, 0].append(lambda: (k.wait(vm="w2s"), k("s_mul_i32 s88, s3, 15360"), k("s_add_u32 s88, s88, %d" % S_OFF), k("v_add_u32 v11, s88, v%d" % vL)))
    for j in range(15): F_[2 + j // 5, 2 + j % 5].append("ds_read_b128 %s, v11 offset:%d" % (w2_reg(11 + j // 5, j % 5), j*1024))
    if layer == 0 and P["rt"] & 2: F_[5, 19].append(lambda: retouch(k, "L_tail0", "L_last", 210, "v209", 52))
    F_[6, 2].append(lambda: k.wait(vm="b2"))
    for dt in range(5): F_[6, 3+dt].append("ds_read_b128 %s, v%d offset:%d" % (v(RB+4*dt, 4), vE+1, dt*16))
    spots = [(idx, n) for idx in range(7, NK) for n in (0, 2, 3, 4, 5, 6, 17, 18, 19)]
    if P["exp"] & 8: pre_ops = []
    for j, l in enumerate(pre_ops): F_[spots[j*len(spots)//len(pre_ops)]].append(l)
    if layer == 0:
        F_[NK-1, 19].append(lambda: (k.wait(vm="m80"), k("s_barrier"), k("v_add_u32 v6, %d, v%d" % (L_M80, vL))))
    else:
        F_[NK-1, 19].append("s_barrier")
    for l in checked(0): put(k, l)
    k("s_nop 1")
    for idx in range(NK):
        check_branch(k, idx, 10, flip)
        if idx in (0, 5): k.stamp("g2_step%d" % idx)
        for n, m in enumerate([mf(idx, lam, dt) for lam in range(4) for dt in range(5)]):
            k(m)
            for x in F_[idx, n]: put(k, x)
    late = []
    if layer == 0:
        late += ["ds_read_b128 %s, v6 offset:%d" % (a(M80R+4*j, 4), j*1024) for j in range(13)]
        if P["touch2"]: k.bg += touch_next(k)
    f = []
    for lam in range(4):
        m = [mf(idx, lam, dt) for idx in range(NK, 14) for dt in range(5)]
        if lam == 0:
            for j in range(J):
                check_branch(k, NK+j, 10, flip)
                rest = interleave(k, m[5*j:5*j+5], checked(NK+1+j) if j < J-1 else [], 3)
                assert not rest
        else:
            for n, x in enumerate(m):
                k(x)
                if n >= 3 and f: put(k, f.pop(0))
                elif late: put(k, late.pop(0))
                k.drip()
            for x in f: put(k, x)
        f = [("ds_write_b128 v%d, %s offset:%d" % (red[lam], v(G2ACC+20*lam+4*dt, 4), dt*1024), "red") for dt in range(5)] if lam < 3 else []
    for x in late: put(k, x)
    k.wait(lg="red")
    if layer == 0: k("L_tail0:")
    k.stamp("g2_mfma")
    k("s_barrier")
    for sl in range(3):
        for dt in range(5):
            k("ds_read_b128 %s, v5 offset:%d" % (v(HR+20*sl+4*dt, 4), sl*5120 + dt*1024))
    O = G2ACC + 60
    if tail_idx:
        pre_w(k, layer+1)
        k.bg += [l for idx in tail_idx for l in w2_loads(k, idx)]
    for sl in range(3):
        for e in range(0, 20, 2):
            k("v_pk_add_f32 %s, %s, %s" % (v(O+e, 2), v(O+e, 2), v(HR+20*sl+e, 2))); k.drip()
    for e in range(0, 20, 2):
        k("v_pk_fma_f32 %s, %s, %s, %s op_sel_hi:[1,0,1]%s" % (v(O+e, 2), v(O+e, 2), v(vE+6, 2), v(RB+e, 2), " neg_lo:[1,0,0] neg_hi:[1,0,0]" if flip else "")); k.drip()
    XP = 36
    for e in range(10):
        k("v_cvt_pk_bf16_f32 v%d, v%d, v%d" % (XP+e, O+2*e, O+2*e+1))
    if layer == 0:
        m = dft80_mfmas(XP, XP+4, XP+8, M80R, 16, "a")
        st = ["s_add_u32 s88, s93, 0x%x" % XG[2],
              ("buffer_store_dwordx4 %s, v%d, %s, s88 offen sc1" % (v(XP, 4), vE+4, srd(WS)), "fin"),
              "s_add_u32 s88, s93, 0x%x" % (XG[2] + 16384),
              ("buffer_store_dwordx4 %s, v%d, %s, s88 offen sc1" % (v(XP+4, 4), vE+4, srd(WS)), "fin"),
              "s_add_u32 s88, s93, 0x%x" % (XG[2] + 32768),
              ("buffer_store_dwordx2 %s, v%d, %s, s88 offen sc1" % (v(XP+8, 2), vE+5, srd(WS)), "fin"),
              ]
        sm = ["v_pk_add_f32 v[46:47], %s, %s" % (v(O, 2), v(O+2, 2)), "v_pk_mul_f32 v[48:49], %s, %s" % (v(O, 2), v(O, 2)),
              "v_pk_fma_f32 v[48:49], %s, %s, v[48:49]" % (v(O+2, 2), v(O+2, 2))]
        for e in range(4, 20, 2):
            sm += ["v_pk_add_f32 v[46:47], v[46:47], %s" % v(O+e, 2), "v_pk_fma_f32 v[48:49], %s, %s, v[48:49]" % (v(O+e, 2), v(O+e, 2))]
        sm += ["v_add_f32 v46, v46, v47", "v_add_f32 v47, v48, v49"]
        def sums_out():
            xsum(k, [46, 47], 48, [4, 5])
            k("v_cmp_gt_u32 vcc, 16, v0")
            k("v_cndmask_b32 v46, v47, v46, vcc")
            k("s_mov_b32 exec_hi, 0")
            if not P["exp"] & 32: k("buffer_atomic_add_f32 v46, v214, %s, s95 offen" % srd(WS), tag="fin")
            k("s_mov_b64 exec, -1")
        rest = interleave(k, m, st + sm, 2)
        for x in rest: put(k, x)
        sums_out()
        u_stores(k, 16, 212, 94, 88, tag="fin")
        if k.bg: print("second GEMM: %d background items left for after the stores" % len(k.bg))
        while k.bg: k.bg.pop(0)()
    else:
        pol = ("", " sc1", " nt", " sc0 sc1")[P["outpol"]]
        k("buffer_store_dwordx4 %s, v213, %s, s94 offen%s" % (v(XP, 4), srd(AUX), pol))
        k("buffer_store_dwordx4 %s, v213, %s, s94 offen offset:64%s" % (v(XP+4, 4), srd(AUX), pol))
        k("buffer_store_dwordx2 %s, v212, %s, s94 offen offset:128%s" % (v(XP+8, 2), srd(AUX), pol))
```

```python
import sys, json
from common import *
import p0, cph, ff

HEADER = open(__file__.replace("fused.py", "header.txt")).read()
SPIN = 100000
P = ff.P
P.update(p0.PP); p0.PP = P
P.update(amp=0, ampA=0, ampB=0, pwait=0, ntail=0, touch3=0, hint=1, pre0=0, latew=0, pzfirst=0, nout=0, nout0=6, prelate=0, pzidle=0, gate0=0, ndr=0, nwin=3, nmid=4, nmid0=2, bgap=20, prefirst=1, touch=1, twait=2, ithr=24)

def flag_load(k, bar, vt):
    k("v_and_b32 v%d, 15, v0" % vt)
    k("v_lshlrev_b32 v%d, 8, v%d" % (vt, vt))
    k("v_add_u32 v%d, 0x%x, v%d" % (vt, GBAR + bar*8192 + 4096, vt))
    k("buffer_load_dword v%d, v%d, %s, 0 offen sc1" % (vt+1, vt, srd(WS)))

def flag_wait(k, vt):
    again, ok = k.label("again"), k.label("ok")
    k("s_mov_b32 s91, 0")
    k("v_cmp_eq_u32 vcc, 0, v%d" % (vt+1))
    k("s_cmp_eq_u64 vcc, 0")
    k("s_cbranch_scc1 " + ok)
    st = k.fork()
    k(again + ":")
    k("buffer_load_dword v%d, v%d, %s, 0 offen sc1" % (vt+1, vt, srd(WS)))
    k("s_add_u32 s91, s91, 1")
    k("s_waitcnt vmcnt(0)")
    k("v_cmp_eq_u32 vcc, 0, v%d" % (vt+1))
    k("s_cmp_ge_u32 s91, %d" % SPIN)
    k("s_cbranch_scc1 " + ok)
    k("s_cmp_eq_u64 vcc, 0")
    k("s_cbranch_scc0 " + again)
    k.restore(st)
    k(ok + ":")

def poll(k, bar, vt=18):
    flag_load(k, bar, vt); flag_wait(k, vt)

def arrive(k, sline, swant, vt=16):
    done = k.label("notlast")
    k("s_lshl_b32 s88, s%d, 8" % sline)
    k("s_add_u32 s88, s88, 0x%x" % GBAR)
    k("v_mov_b32 v%d, 1" % vt)
    k("v_mov_b32 v%d, 1" % (vt+1))
    k("s_mov_b64 exec, 1")
    k("buffer_atomic_add v%d, off, %s, s88 sc0 sc1" % (vt, srd(WS)))
    k("v_readfirstlane_b32 s91, v%d" % vt)
    k("s_add_u32 s88, s88, 4096")
    k("s_add_u32 s91, s91, 1")
    k("s_cmp_eq_u32 s91, s%d" % swant)
    k("s_cbranch_scc0 " + done)
    st = k.fork()
    k("buffer_store_dword v%d, off, %s, s88 sc1" % (vt+1, srd(WS)))
    k.restore(st)
    k(done + ":")
    k("s_mov_b64 exec, -1")

def hint_issue(k, bar):
    k("s_and_b32 s55, s2, 15")
    k("s_add_u32 s55, s55, %d" % (32*bar))
    k("s_lshl_b32 s55, s55, 8")
    k("s_add_u32 s55, s55, 0x%x" % GBAR)
    k("s_cmp_eq_u32 s3, 0")
    k("s_cselect_b32 s55, s55, 0x%x" % OOB)
    k("s_cselect_b32 s56, 15, -1")
    k("v_mov_b32 v14, 1"); k("v_mov_b32 v15, 1")
    k("s_mov_b64 exec, 1")
    k("buffer_atomic_add v14, off, %s, s55 sc0 sc1" % srd(WS))
    k("s_mov_b64 exec, -1")

def late_report(k):
    base = min(CNT_W); extra = sum(c > base for c in CNT_W)
    k("s_and_b32 s55, s38, 15")
    k("s_cmp_lt_u32 s55, %d" % extra)
    k("s_cselect_b32 s56, %d, %d" % (base, base-1))
    k("s_add_u32 s55, s55, %d" % (32*B_W))
    k("s_lshl_b32 s55, s55, 8")
    k("s_add_u32 s55, s55, 0x%x" % GBAR)
    k("s_lshl_b32 s57, s3, 2")
    k("s_add_u32 s57, s57, s23")
    k("s_cmp_eq_u32 s57, 1")
    k("s_cselect_b32 s55, s55, 0x%x" % OOB)
    k("s_cselect_b32 s56, s56, -1")
    k("v_mov_b32 v14, 1"); k("v_mov_b32 v15, 1")
    k("s_mov_b64 exec, 1")
    k("buffer_atomic_add v14, off, %s, s55 sc0 sc1" % srd(WS))
    k("s_mov_b64 exec, -1")

def hint_check(k):
    done = k.label("notlast")
    k("v_readfirstlane_b32 s57, v14")
    k("s_add_u32 s55, s55, 4096")
    k("s_cmp_eq_u32 s57, s56")
    k("s_cbranch_scc0 " + done)
    st = k.fork()
    k("s_mov_b64 exec, 1")
    k("buffer_store_dword v15, off, %s, s55 sc1" % srd(WS))
    k("s_mov_b64 exec, -1")
    k.restore(st)
    k(done + ":")

def arrive_on(k, bar, sidx, counts):
    base = min(counts); extra = sum(c > base for c in counts)
    assert counts == [base + (n < extra) for n in range(16)]
    k("s_and_b32 s89, s%d, 15" % sidx)
    k("s_cmp_lt_u32 s89, %d" % extra)
    k("s_cselect_b32 s90, %d, %d" % (base+1, base))
    k("s_add_u32 s89, s89, %d" % (32*bar))
    arrive(k, 89, 90)

def split_waves(k, wave0, others):
    lo, join = k.label("others"), k.label("join")
    k.settle(vm=False)
    st = k.fork()
    k("s_cmp_eq_u32 s3, 0")
    k("s_cbranch_scc0 " + lo)
    wave0(); k.settle()
    k("s_branch " + join)
    k.restore(st)
    k(lo + ":")
    others(); k.settle(vm=False)
    k(join + ":")
    k("s_barrier")
    k.vmq = []; k.lgq = []

def touch_code(k):
    skip, here = k.label("notouch"), k.label("here")
    k("s_sub_u32 s53, s5, 16")
    k("s_lshl_b32 s53, s53, 2")
    k("s_add_u32 s53, s53, s3")
    k("s_lshl_b32 s53, s53, 12")
    k("s_cmp_lt_u32 s53, dft_end-%s-4096" % k.name)
    k("s_cbranch_scc0 " + skip)
    k("s_sub_u32 s54, s6, dft_tables-%s" % k.name)
    k("s_subb_u32 s55, s7, 0")
    k("v_lshl_add_u32 v2, v0, 6, s53")
    k("v_mov_b32 v3, 0")
    k("v_lshl_add_u64 v[2:3], v[2:3], 0, s[54:55]")
    k("global_load_dword v255, v[2:3], off")
    k.vmq.pop()
    k(skip + ":")

B_IN, B_OUT, B_W, B_Z = (0, 2), (1, 3), 4, 5

def setup(k):
    L = {n: k.label(n) for n in ("nx", "col", "w2", "half", "w2c", "issue", "five", "none", "j1", "j2", "j3", "j4", "join")}
    k("v_mov_b32 v68, 0x%x" % OOB); k("v_mov_b32 v69, 0x%x" % OOB)
    k("s_mov_b32 s22, 0"); k("s_mov_b32 s38, 126"); k("s_mov_b32 s61, 0"); k("s_mov_b32 s15, 0x00020000")
    k("s_cmp_lt_u32 s2, 128"); k("s_cbranch_scc0 " + L["nx"])
    k("s_mov_b32 s62, 0"); k("s_mov_b32 s23, 0"); k("s_mov_b32 s60, s2")
    k("s_lshr_b32 s40, s2, 5"); k("s_lshl_b32 s40, s40, 9"); k("s_and_b32 s41, s2, 31"); k("s_add_u32 s40, s40, s41")
    k("s_and_b32 s41, s3, 1"); k("s_lshl_b32 s41, s41, 8"); k("s_add_u32 s40, s40, s41")
    k("s_lshr_b32 s41, s3, 1"); k("s_lshl_b32 s41, s41, 5"); k("s_add_u32 s40, s40, s41")
    k("s_mul_i32 s40, s40, 1280")
    k("s_mul_i32 s42, s3, 5120"); k("s_mov_b32 s43, 81920"); k("s_mov_b32 s44, 4"); k("s_mov_b32 s45, 256")
    k("s_waitcnt lgkmcnt(0)")
    k("s_mov_b32 s12, s%d" % pX); k("s_mov_b32 s13, s%d" % (pX+1)); k("s_mov_b32 s14, %d" % XB)
    k("s_branch " + L["issue"])
    k(L["nx"] + ":")
    k("s_mov_b32 s23, 1"); k("s_mov_b32 s44, 3"); k("s_mov_b32 s14, %d" % (D*F*2))
    k("s_cmp_eq_u32 s68, 0"); k("s_cbranch_scc0 " + L["col"])
    k("s_sub_u32 s60, s5, 20"); k("s_mul_i32 s60, s60, 7"); k("s_add_u32 s60, s60, s4"); k("s_sub_u32 s60, s60, 1")
    k("s_sub_u32 s41, s2, 164")
    k("s_cmp_lt_u32 s2, 192"); k("s_cselect_b32 s60, s60, s41")
    k("s_mov_b32 s22, s60"); k("s_mov_b32 s38, s60")
    k("s_cmp_lt_u32 s60, 54"); k("s_cbranch_scc0 " + L["w2"])
    k("s_mov_b32 s62, 1")
    k("s_and_b32 s40, s60, 1"); k("s_lshl_b32 s40, s40, 2"); k("s_add_u32 s40, s40, s3"); k("s_mul_i32 s40, s40, 34560")
    k("s_lshr_b32 s41, s60, 1"); k("s_lshl_b32 s41, s41, 7"); k("s_add_u32 s40, s40, s41")
    k("s_mul_i32 s42, s3, 10240"); k("s_mov_b32 s43, %d" % (80*3456)); k("s_mov_b32 s45, 3456")
    k("s_waitcnt lgkmcnt(0)")
    k("s_mov_b32 s12, s%d" % pW1); k("s_mov_b32 s13, s%d" % (pW1+1))
    k("s_branch " + L["issue"])
    k(L["w2"] + ":")
    k("s_mov_b32 s62, 2"); k("s_sub_u32 s60, s60, 54"); k("s_mul_i32 s42, s3, 10240")
    k("s_cmp_lt_u32 s60, 36"); k("s_cbranch_scc1 " + L["w2c"])
    k("s_sub_u32 s60, s60, 36"); k("s_mul_i32 s60, s60, 3")
    k("s_branch " + L["half"])
    k(L["col"] + ":")
    k("s_mov_b32 s62, 4"); k("s_sub_u32 s60, s2, 128")
    k("s_cmp_eq_u32 s60, 3"); k("s_cbranch_scc1 " + L["none"])
    k("s_cmp_eq_u32 s60, 0"); k("s_cselect_b32 s23, 2, 1"); k("s_cbranch_scc1 " + L["none"])
    k("s_add_u32 s41, s5, 12")
    k("s_cmp_lt_u32 s2, 160"); k("s_cselect_b32 s60, s60, s41")
    k(L["half"] + ":")
    k("s_mov_b32 s62, 3"); k("s_add_u32 s38, s60, 90")
    k("s_and_b32 s61, s60, 1"); k("s_lshr_b32 s60, s60, 1"); k("s_add_u32 s60, s60, 36"); k("s_mul_i32 s42, s3, 5120")
    k(L["w2c"] + ":")
    k("s_mul_i32 s40, s60, 40960"); k("s_mul_i32 s41, s3, 10240"); k("s_add_u32 s40, s40, s41")
    k("s_mul_i32 s41, s61, 640"); k("s_add_u32 s40, s40, s41")
    k("s_mov_b32 s43, 1280"); k("s_mov_b32 s45, 128")
    k("s_waitcnt lgkmcnt(0)")
    k("s_mov_b32 s12, s%d" % pW2); k("s_mov_b32 s13, s%d" % (pW2+1))
    k(L["issue"] + ":")
    k("v_lshrrev_b32 v1, s44, v0")
    k("v_lshlrev_b32 v2, s44, v1")
    k("v_sub_u32 v2, v0, v2")
    k("v_mul_lo_u32 v1, v1, s43")
    k("v_lshl_add_u32 v1, v2, 4, v1")
    for n in range(10):
        if n == 5:
            k("s_add_u32 s41, s62, -1"); k("s_cmp_lt_u32 s41, 2"); k("s_cbranch_scc0 " + L["none"])
        k("s_add_u32 m0, s42, %d" % (n*1024))
        if n: k("s_add_u32 s40, s40, s45")
        else: k("s_nop 0")
        k("buffer_load_dwordx4 v1, %s, s40 offen lds" % srd(AUX), tag="raw")
    k(L["none"] + ":")
    k("s_waitcnt lgkmcnt(0)")
    ws_srd(k)
    k.protected |= {8, 9, 10, 11}
    k.vmq = [("raw", set(), False)]
    st = k.fork()
    k("s_cmp_eq_u32 s62, 0"); k("s_cbranch_scc0 " + L["j1"])
    p0.px(k, 60); k.settle(); k("s_branch " + L["join"])
    k.restore(st); k(L["j1"] + ":")
    if P["touch"]: touch_code(k)
    st = k.fork()
    k("s_cmp_eq_u32 s62, 1"); k("s_cbranch_scc0 " + L["j2"])
    p0.pw1(k, 60); k.settle(); k("s_branch " + L["join"])
    k.restore(st); k(L["j2"] + ":")
    k("s_cmp_eq_u32 s62, 2"); k("s_cbranch_scc0 " + L["j3"])
    p0.pw2(k, 60); k.settle(); k("s_branch " + L["join"])
    k.restore(st); k(L["j3"] + ":")
    k("s_cmp_eq_u32 s62, 3"); k("s_cbranch_scc0 " + L["j4"])
    p0.pw2_half(k, 60, 61); k.settle(); k("s_branch " + L["join"])
    k.restore(st); k(L["j4"] + ":")
    p0.pmisc2(k, 60); k.settle()
    k(L["join"] + ":")
    k.vmq = [("st", set(), False)]; k.lgq = []

def arrive_setup(k, weights=True):
    other, skip = k.label("wjob"), k.label("nojob")
    init_check(k)
    st = k.fork()
    k("s_cmp_eq_u32 s23, 0")
    k("s_cbranch_scc0 " + other)
    arrive_on(k, 0, 2, [8]*16)
    k("s_branch " + skip)
    k.restore(st)
    k(other + ":")
    if weights:
        k("s_cmp_eq_u32 s23, 2")
        k("s_cbranch_scc1 " + skip)
        arrive_on(k, B_W, 38, CNT_W)
    k(skip + ":")

def by_wave(k, fns):
    join = k.label("join")
    k.settle(vm=False)
    st = k.fork()
    groups = {}
    for w, f in enumerate(fns): groups.setdefault(id(f), (f, []))[1].append(w)
    items = list(groups.values())
    for n, (f, ws) in enumerate(items):
        nxt = k.label("next")
        k.restore(st)
        last = n == len(items) - 1
        if not last:
            assert len(ws) == 1
            k("s_cmp_eq_u32 s3, %d" % ws[0]); k("s_cbranch_scc0 " + nxt)
        f(); k.settle(vm=False)
        if not last:
            k("s_branch " + join); k(nxt + ":")
    k(join + ":")
    k("s_barrier")
    k.vmq = []; k.lgq = []

CNT_W = [sum(1 for j in range(127) if j & 15 == n) for n in range(16)]
CNT_Z = [sum(1 for j in range(92) if j & 15 == n) for n in range(16)]
CNT_OUT = [sum(1 for j in range(164) if j & 15 == n) + 4 for n in range(16)]

def build():
    k = Kern(NAME + "_kernel", 256, 256, lds=LDS_BYTES, vgpr=256, agpr=256, sgpr=102)
    k.stamp_regs = list(range(70, 90))
    prologue(k, ws=False)
    k.lgq = []
    k.protected = {6, 7, 20, 21} | set(range(24, 38))
    k.stamp_regs = list(range(70, 90))
    k.stamp("start")
    cph.role_flag(k)
    if P["latew"]:
        nt = k.label("notab")
        k("s_cmp_eq_u32 s68, 0"); k("s_cbranch_scc1 " + nt)
        cph.pre(k); k.vmq = []
        k(nt + ":")
    setup(k)
    k.stamp("p_end")
    if k.only: k("s_mov_b32 s100, s70"); k.stamp_names = []
    k.flush_stamps(STAMP, 0)
    k.protected = {6, 7, 8, 9, 10, 11, 22, 23, 32, 33, 34, 35, 36, 37}
    k.stamp_regs = list(range(39, 47)) + [49] + list(range(24, 32)) + [20, 21, 100]
    ff.roles(k)
    cph.role_flag(k)
    assert not P["latew"]
    assert not (P["latew"] and (P["xs"] & 1 or P["gate0"]))
    if P["flip"]: H[1] = H[0]
    nothing = lambda: None
    k.bg_gap = P["bgap"]
    for layer in range(2):
        k.dbg_layer = layer
        bin_, bout = B_IN[layer], B_OUT[layer]
        idle, go = k.label("idle"), k.label("go")
        tail_idx = list(range(11 - P["ntail"], 11))
        xs = P["xs"] >> layer & 1
        byidle = xs and layer and P["pzidle"]
        dr_idx = list(range(P["ndr"])) if layer else []
        win_idx = list(range(len(dr_idx), len(dr_idx) + P["nwin"])) if layer else []
        n0 = len(dr_idx) + len(win_idx)
        mid_idx = list(range(n0, n0 + (P["nmid"] if layer else P["nmid0"]*P["gate0"])))
        n0 += len(mid_idx)
        out_idx = list(range(n0, n0 + (P["nout"] if layer else P["nout0"])))
        w2out = lambda: [l for idx in out_idx for l in ff.w2_loads(k, idx)]
        g1_idx = [i for i in range(11) if i not in mid_idx + win_idx + dr_idx + out_idx and (layer == 0 or i not in tail_idx)]
        w2dr = lambda: [l for idx in dr_idx for l in ff.w2_loads(k, idx)]
        w2mid = lambda: [l for idx in mid_idx for l in ff.w2_loads(k, idx)]
        w2win = lambda: [l for idx in win_idx for l in ff.w2_loads(k, idx)]
        add_own = lambda bar: arrive_on(k, bar, 2, [16]*16)
        add_out = lambda: add_own(bout)
        poll_out = lambda: poll(k, bout)
        poll_w = lambda: poll(k, B_W)
        if k.stamps_on and not (k.only and layer): k("s_mov_b32 s101, 0")
        ff.pre_s(k, layer)
        if layer == 0 or not tail_idx: ff.pre_w(k, layer)
        k.settle(vm=False)
        entry = k.fork()
        k("s_cmp_eq_u32 s68, 0")
        k("s_cbranch_scc1 " + idle)
        latew = layer == 0 and P["latew"]
        if latew: k("v_lshlrev_b32 v15, 4, v0")
        else: cph.pre(k)
        def pre2():
            cph.offsets(k, layer); cph.pre2(k)
            k("v_lshlrev_b32 v1, 4, v0")
        if not P["prelate"]: pre2()
        for l in w2dr(): l()
        if latew:
            nw = k.label("nodrain")
            st = k.fork()
            k("s_cmp_eq_u32 s23, 1"); k("s_cbranch_scc1 " + nw)
            k.wait(vm="st")
            k.restore(st)
            k(nw + ":")
        else: k.wait(vm="tab")
        k.stamp("drained")
        k("s_barrier")
        def w0():
            if layer == 0: arrive_setup(k, not latew)
            else: add_own(bin_)
            if P["prelate"]: pre2()
            if xs and not byidle: cph.poison_out(k, 20)
            for l in w2win(): l()
            flag_load(k, bin_, 18)
            cph.tables(k)
            flag_wait(k, 18)
        def w123():
            if layer == 0 and P["rt"] & 1: retouch(k, go, "L_tail0", 22, "a250", 88, 1)
            if P["prelate"]: pre2()
            if xs and not byidle: cph.poison_out(k, 20)
            for l in w2win(): l()
            if layer:
                ff.w1_dma3(k, 0, 66, "w1")
                k("s_mov_b32 s89, 66"); ff.w1_block(k, 89)
            cph.tables(k)
            k.wait(vm="px")
        split_waves(k, w0, w123)
        k.stamp("c_go")
        def tail_blocks():
            k("s_add_u32 s89, s3, 63"); ff.w1_block(k, 89)
        tch = lambda va: ff.touch_w2(k, layer, va) if P["touch3"] >> layer & 1 else []
        gated = layer == 0 and P["gate0"]
        pre0 = P["pre0"] if layer == 0 and not gated else 0
        late = tch(12) + (w2mid() if layer else (ff.w1_dma(k, 0, 16, "w1") + [tail_blocks] + w2mid() if gated else []))
        cph.main(k, late, (lambda: flag_load(k, B_Z if layer else B_W, 14), lambda: flag_wait(k, 14), gated) if gated or byidle or pre0 else None,
                 (lambda: hint_issue(k, bout), lambda: hint_check(k), P["hint"]) if xs else
                 ((lambda: late_report(k), lambda: hint_check(k), 3) if latew else None), layer == 0 and P["norm0"])
        k.stamp("c_stored")
        ungated = layer == 0 and not gated and not pre0
        if ungated: flag_load(k, B_W, 22)
        for l in ff.w1_dma(k, 0, pre0, "w1"): l()
        ff.pre_v(k)
        if not xs:
            k.wait(vm="cst"); k.stamp("c_drained"); k("s_barrier")
        def rest():
            if ungated: flag_wait(k, 22)
            if pre0: ff.w1_dma3(k, 147 - (147 - 4*pre0 + 2)//3*3, 147, "w1")
            else: ff.w1_dma3(k, 0 if ungated else 67, 147 if ungated else 148, "w1")
            for l in w2out(): l()
        def first():
            if not xs: add_out()
            if ungated: flag_wait(k, 22)
            for l in w2out(): l()
            poll_out()
        split_waves(k, first, rest)
        k("s_branch " + go)
        k.restore(entry)
        k(idle + ":")
        def second():
            sk = k.label("nosecond")
            st = k.fork()
            k("s_sub_u32 s88, s22, 54"); k("s_cmp_lt_u32 s88, 36"); k("s_cbranch_scc0 " + sk)
            p0.pw2_second(k); k.settle()
            k.restore(st)
            k(sk + ":")
        early = P["ndr"] or P["nwin"] or P["touch2"] or P["ntail"]
        need = not (layer and P["flip"])
        def marks():
            if layer == 0 and early:
                second()
                if not P["exp"] & 64: ff.poison_first(k)
            elif need:
                for l in ff.poison(k, H[layer], 32*HBLK): l()
        for l in w2dr(): l()
        if layer == 0 and P["pzfirst"]:
            k("v_lshlrev_b32 v1, 4, v0")
            pzs = ff.poison(k, H[layer], 32*HBLK)
            for l in pzs[:P["pzfirst"]]: l()
        k.wait(vm="st" if layer == 0 else "fin"); k("s_barrier")
        split_waves(k, (lambda: arrive_setup(k)) if layer == 0 else (lambda: add_own(bin_)), nothing)
        if layer == 0 and P["pzfirst"]:
            k("s_lshl_b32 s90, s22, 2"); k("s_add_u32 s90, s90, s3"); k("s_mul_i32 s90, s90, %d" % (19*1024))
            k("s_add_u32 s90, s90, %d" % ((P["pzfirst"]-1)//4*4096))
            for l in pzs[P["pzfirst"]:]: l()
            if early: second()
            ff.pre_v(k)
            k("s_waitcnt vmcnt(0)"); k("s_barrier")
        else:
            ff.pre_v(k)
            marks()
            if layer == 0 and early:
                flag_load(k, B_W, 22); k("s_waitcnt vmcnt(0)"); flag_wait(k, 22); k("s_barrier")
            elif need:
                k("s_waitcnt vmcnt(0)"); k("s_barrier")
        k.stamp("i_poison")
        if layer == 0 and early and not P["pzfirst"]:
            split_waves(k, add_out, lambda: ff.w1_dma3(k, 0, 147, "w1"))
            for l in tch(21) + w2mid() + w2out(): l()
        elif layer == 0:
            if early: split_waves(k, lambda: (add_out(), poll_w()), nothing)
            else: split_waves(k, lambda: (add_out(), poll_w(), second()), second)
            k.stamp("i_wready")
            for l in tch(21) + ff.w1_dma(k, 0, 37, "w1") + w2mid() + w2out(): l()
        else:
            if byidle:
                for l in ff.poison(k, XG[3], XB): l()
                k.wait(vm="pz"); k("s_barrier")
            split_waves(k, lambda: (arrive_on(k, B_Z, 22, CNT_Z) if byidle else None, add_out(), poll(k, bin_)), lambda: (ff.w1_dma3(k, 66, 147, "w1"), ff.w1_dma3(k, 0, 66, "w1")))
            for l in tch(21) + w2win() + w2mid() + w2out(): l()
        k.stamp("i_fetched")
        split_waves(k, poll_out, nothing)
        k(go + ":")
        k.stamp("g_go")
        pending = ff.g1(k, layer, g1_idx, True)
        ff.g2(k, layer, pending, tail_idx if layer == 0 else [])
        k.stamp("issued_end")
        if layer == 1 and k.stamps_on: k("s_waitcnt vmcnt(0)")
        k.stamp("end")
        k.stamp_val("#retry", 101)
        if k.only and layer == 1:
            k.stamp("last"); k.stamp_val("entry", 100); k.stamp_val("#lastretry", 101)
        if layer or not k.only: k.flush_stamps(STAMP, 1 + layer)
        if k.stamps_on and layer == 0 and not k.only: k.vmq.append(("fin", set(), False)); k("s_nop 0")
    k("L_last:")
    if k.dbg_mode:
        lab = k.label("nodbg")
        k("s_waitcnt vmcnt(0)")
        k.dbg_layer = 2; k.dbg_mode = ("end",); k.dbg_regs = k.dbg_regs[:len(k.dbg_list)] + [20]; k.stamp("end")
        k("s_or_b32 s98, s2, s3"); k("s_cmp_eq_u32 s98, 0"); k("s_cbranch_scc0 " + lab)
        A, B, mult = P["ampA"], P["ampB"], P["amp"]
        k("s_sub_u32 s90, s%d, s%d" % (k.dbg_regs[B], k.dbg_regs[A]))
        k("s_mul_i32 s90, s90, %d" % mult)
        k("s_min_u32 s90, s90, 50000")
        sp = k.label("amp")
        k(sp + ":")
        k("s_memrealtime s[98:99]"); k("s_waitcnt lgkmcnt(0)")
        k("s_sub_u32 s98, s98, s%d" % k.dbg_regs[len(k.dbg_list)-1])
        k("s_cmp_lt_u32 s98, s90"); k("s_cbranch_scc1 " + sp)
        k(lab + ":")
        print(k.dbg_list)
    finish(k)
    return k

def init_check(k):
    again, ok = k.label("again"), k.label("ok")
    k.srd(AUX2, pDBG, 256)
    k("s_mov_b32 s91, 0")
    k(again + ":")
    k("buffer_load_dword v16, off, %s, 0 sc1" % srd(AUX2))
    k("s_add_u32 s91, s91, 1")
    k("s_waitcnt vmcnt(0)")
    k("v_readfirstlane_b32 s88, v16")
    k("s_cmp_ge_u32 s91, %d" % SPIN)
    k("s_cbranch_scc1 " + ok)
    k("s_cmp_eq_u32 s88, 1")
    k("s_cbranch_scc0 " + again)
    k(ok + ":")

if __name__ == "__main__":
    out = sys.argv[1]
    for a_ in sys.argv[2:]:
        if a_ == "stamps": Kern.stamps_on = True
        elif a_.startswith("wsoff="): WSOFF[0] = int(a_[6:]) << 20
        elif a_ == "reuse": U[1] = U[0]; XG[2] = XG[0]; XG[3] = XG[1]
        elif a_ == "ends": Kern.stamps_on = True; Kern.only = ("entry", "last", "#lastretry")
        elif a_.startswith("few="): Kern.stamps_on = True; Kern.few = True; Kern.only = ("entry", "last", "#lastretry") + tuple(a_[4:].split(","))
        elif a_ == "dbg2": Kern.dbg_mode = ("entry", "start"); Kern.dbg_regs = [100, 101]
        elif a_ == "dbg": Kern.dbg_mode = ("start", "drained", "c_go", "c_drained", "g_go", "g1_end", "g2_mfma", "end")
        else:
            n, val = a_.split("="); assert n in P, n; P[n] = eval(val)
    k = build()
    open(out, "w").write(assemble(HEADER, [k], [k], TABTXT + "dft_end:\n"))
    print(k.count, "nops", k.nops)
    if Kern.stamps_on: json.dump(k.stamp_log, open(out + ".stamps.json", "w"))
```
